```python
import torch

def _softmax(x, axis=-1):
    return torch.softmax(x, dim=axis)

def _gelu(x):
    return torch.nn.functional.gelu(x, approximate='tanh')

def _silu(x):
    return torch.nn.functional.silu(x)

def _sigmoid(x):
    return torch.sigmoid(x)

def _layernorm(x, axis=-1, eps=1e-05):
    m = x.mean(dim=axis, keepdim=True)
    v = x.var(dim=axis, keepdim=True, unbiased=False)
    return (x - m) / torch.sqrt(v + eps)

def _scatter_add(tgt, idx, src, axis=0):
    return tgt.clone().index_add_(axis, idx, src)

def _segment_sum(src, seg, n):
    out = torch.zeros((n,) + src.shape[1:], dtype=src.dtype)
    return out.index_add_(0, seg, src)

def _pad(x, pw):
    flat = tuple((v for pair in reversed(pw) for v in pair))
    return torch.nn.functional.pad(x, flat)
kernel_name = 'adaLN_cond__sliding_block__glu_gated_glu__prompt'

def setup_inputs():

    _w = lambda a: (lambda t: t.to(torch.bfloat16) if t.is_floating_point() else t)(torch.as_tensor(a))

    def _A_setup():
        B, S, D = (1, 2048, 640)
        return {'x': _w((lambda *s: torch.randn(*s, dtype=torch.bfloat16) * 0.05)(B, S, D)), 'wqkv': _w((lambda *s: torch.randn(*s, dtype=torch.bfloat16) * 0.05)(D, 3 * D)), 'wo': _w((lambda *s: torch.randn(*s, dtype=torch.bfloat16) * 0.05)(D, D))}
    _A_in = _A_setup()

    def _B_setup():
        B, S, D, F = (1, 2048, 640, 1536)
        return {'x': _w((lambda *s: torch.randn(*s, dtype=torch.bfloat16) * 0.05)(B, S, D)), 'w_gate': _w((lambda *s: torch.randn(*s, dtype=torch.bfloat16) * 0.05)(D, F)), 'w_up': _w((lambda *s: torch.randn(*s, dtype=torch.bfloat16) * 0.05)(D, F)), 'w_down': _w((lambda *s: torch.randn(*s, dtype=torch.bfloat16) * 0.05)(F, D))}
    _B_in = _B_setup()
    return {'A_x': _A_in['x'], 'A_wqkv': _A_in['wqkv'], 'A_wo': _A_in['wo'], 'B_x': _B_in['x'], 'B_w_gate': _B_in['w_gate'], 'B_w_up': _B_in['w_up'], 'B_w_down': _B_in['w_down'], 'c': _w((lambda *s: torch.randn(*s, dtype=torch.bfloat16) * 0.1)(1, 640) * 8.0), 'w_mod': _w((lambda *s: torch.randn(*s, dtype=torch.bfloat16) * 0.1)(640, 6 * 640) * 640 ** (-0.5) * 8.0)}

def reference(A_x, A_wqkv, A_wo, B_x, B_w_gate, B_w_up, B_w_down, c, w_mod):

    def _A_ref(x, wqkv, wo):
        B, S, D = x.shape
        H = 32
        Dh = D // H
        W = 256
        qkv = (lambda x, *d: x.permute(*d))((x @ wqkv).reshape(B, S, 3, H, Dh), 2, 0, 3, 1, 4)
        q, k, v = (qkv[0], qkv[1], qkv[2])
        scores = torch.einsum('bhqd,bhkd->bhqk', q, k) * Dh ** (-0.5)
        idx = torch.arange(S)
        mask = (idx[:, None] - idx[None, :] >= 0) & (idx[:, None] - idx[None, :] < W)
        scores = torch.where(mask[None, None], scores, -1000000000.0)
        p = _softmax(scores, axis=-1)
        o = torch.einsum('bhqk,bhkd->bhqd', p, v)
        return (lambda x, *d: x.permute(*d))(o, 0, 2, 1, 3).reshape(B, S, D) @ wo

    def _B_ref(x, w_gate, w_up, w_down):
        g = torch.einsum('bsd,df->bsf', x, w_gate)
        u = torch.einsum('bsd,df->bsf', x, w_up)
        h = _sigmoid(g) * u
        return torch.einsum('bsf,fd->bsd', h, w_down)
    x = A_x
    mod = (_silu(c) @ w_mod).reshape(c.shape[0], 6, 1, -1)
    sa, ca, ga, sb, cb, gb = (mod[:, 0].clone(), mod[:, 1].clone(), mod[:, 2].clone(), mod[:, 3].clone(), mod[:, 4].clone(), mod[:, 5].clone())
    h = _layernorm(x, axis=-1) * (1 + ca) + sa
    x = x + ga * _A_ref(h, A_wqkv, A_wo)
    h = _layernorm(x, axis=-1) * (1 + cb) + sb
    x = x + gb * _B_ref(h, B_w_gate, B_w_up, B_w_down)
    return x
```

```python
import re

TRANS = ("v_exp_f32", "v_log_f32", "v_rcp_f32", "v_rsq_f32", "v_sqrt_f32", "v_sin_f32", "v_cos_f32")
RMW = ("v_fmac_f32", "v_dot2c_f32_bf16", "v_pk_fmac_f16")
SPECIAL = {"vcc": ("s", 106, 2), "vcc_lo": ("s", 106, 1), "vcc_hi": ("s", 107, 1), "m0": ("s", 124, 1),
           "exec": ("s", 126, 2), "exec_lo": ("s", 126, 1), "exec_hi": ("s", 127, 1)}
_REG = re.compile(r"^-?\|?(?:abs\()?([vsa])(?:(\d+)|\[(\d+):(\d+)\])\)?\|?$")


def regs_of(tok):
    tok = tok.strip()
    if tok in SPECIAL:
        k, b, n = SPECIAL[tok]
        return [(k, b + i) for i in range(n)]
    m = _REG.match(tok)
    if not m:
        return []
    k = m.group(1)
    if m.group(2) is not None:
        return [(k, int(m.group(2)))]
    return [(k, i) for i in range(int(m.group(3)), int(m.group(4)) + 1)]


class Inst:
    __slots__ = ("text", "op", "defs", "uses", "kind", "ops", "mods", "tag", "passes", "srcc", "srcab", "noflush")

    def __init__(self, text, tag=None):
        self.text = text
        self.tag = tag
        self.noflush = False
        code = text.split(";")[0].strip()
        parts = code.split(None, 1)
        op = parts[0]
        for suf in ("_e32", "_e64"):
            if op.endswith(suf):
                op = op[: -len(suf)]
        self.op = op
        rest = parts[1] if len(parts) > 1 else ""
        toks = [t.strip() for t in re.split(r",(?![^\[]*\])", rest)] if rest else []
        mods = ""
        if toks:
            last = toks[-1].split(None, 1)
            toks[-1] = last[0] if last else ""
            mods = last[1] if len(last) > 1 else ""
        self.ops, self.mods = toks, mods
        self.passes = 0
        self.srcc, self.srcab = [], []
        R = [regs_of(t) for t in toks]
        flat = lambda l: [r for x in l for r in x]
        defs, uses = [], []
        if op.startswith("v_mfma"):
            self.kind = "mfma"
            self.passes = 8 if "32x32" in op else 4
            defs, uses = R[0], flat(R[1:])
            self.srcab, self.srcc = R[1] + R[2], R[3]
        elif op.startswith("buffer_") or op.startswith("global_"):
            self.kind = "vmem"
            if op in ("buffer_wbl2", "buffer_inv"):
                pass
            elif "lds" in mods.split() or "_lds_" in op:
                uses = flat(R) + [("s", 124)]
            elif "_load" in op:
                defs, uses = R[0], flat(R[1:])
            elif "_atomic" in op:
                uses = flat(R)
                if "sc0" in mods.split():
                    defs = R[0]
            else:
                uses = flat(R)
        elif op.startswith("ds_"):
            self.kind = "ds"
            if op.startswith("ds_read") or "permute" in op or "swizzle" in op:
                defs, uses = R[0], flat(R[1:])
            else:
                uses = flat(R)
        elif op.startswith("s_load") or op in ("s_memtime", "s_memrealtime"):
            self.kind = "smem"
            defs, uses = R[0], flat(R[1:])
        elif op in ("s_waitcnt", "s_nop", "s_barrier", "s_endpgm", "s_sleep", "s_setprio"):
            self.kind = op[2:]
        elif op.startswith("s_cbranch") or op in ("s_branch", "s_setpc_b64"):
            self.kind = "branch"
            uses = flat(R)
            if "vcc" in op:
                uses = regs_of("vcc")
        elif op.startswith("s_cmp") or op.startswith("s_bitcmp"):
            self.kind = "salu"
            uses = flat(R)
        elif op.startswith("s_"):
            self.kind = "salu"
            defs, uses = R[0], flat(R[1:])
            if op in ("s_addk_i32", "s_mulk_i32", "s_cmov_b32", "s_cmov_b64"):
                uses = uses + R[0]
            if "saveexec" in op:
                defs = defs + regs_of("exec")
                uses = uses + regs_of("exec")
        elif op.startswith("v_"):
            self.kind = "valu"
            if "permlane" in op and "swap" in op:
                defs, uses = flat(R), flat(R)
            elif op.startswith("v_swap"):
                defs, uses = flat(R), flat(R)
            elif "_co_" in op:
                defs, uses = R[0] + R[1], flat(R[2:])
            else:
                defs, uses = R[0], flat(R[1:])
                if op in RMW or "dpp" in op or "UNUSED_PRESERVE" in mods:
                    uses = uses + R[0]
        else:
            raise ValueError("unknown instruction: " + text)
        self.defs, self.uses = defs, uses

    def is_dpp(self):
        return self.op.endswith("_dpp")

    def is_trans(self):
        return self.op in TRANS

    def is_dot(self):
        return self.op.startswith("v_dot")

    def wide_store(self):
        return self.kind == "vmem" and "_store_dwordx" in self.op and self.op[-1] in "34"

    def store_data(self):
        if self.op.startswith("buffer_store"):
            return regs_of(self.ops[0])
        return regs_of(self.ops[1])


class Label:
    def __init__(self, name):
        self.name = name


class Raw:
    def __init__(self, text):
        self.text = text


class WaitTok:
    def __init__(self, tag, counter):
        self.tag, self.counter = tag, counter


class Reset:
    def __init__(self, vm=True, lgkm=True):
        self.vm, self.lgkm = vm, lgkm


class Snapshot:
    def __init__(self, name, restore):
        self.name, self.restore = name, restore


class Asm:
    def __init__(self):
        self.items = []
        self.ntag = 0

    def __call__(self, text, tag=None):
        out = None
        for line in text.split("\n"):
            line = line.strip()
            if not line or line.startswith(";"):
                continue
            if line.endswith(":"):
                self.items.append(Label(line[:-1]))
            elif line.startswith("."):
                self.items.append(Raw(line))
            else:
                out = Inst(line, tag)
                self.items.append(out)
        return out

    def tagged(self, text):
        self.ntag += 1
        self(text, tag=self.ntag)
        return self.ntag

    def label(self, name):
        self.items.append(Label(name))

    def comment(self, text):
        self.items.append(Raw("; " + text))

    def wait_vm(self, tag):
        self.items.append(WaitTok(tag, "vm"))

    def wait_lgkm(self, tag):
        self.items.append(WaitTok(tag, "lgkm"))

    def branch(self, text, noflush=False):
        i = Inst(text)
        i.noflush = noflush
        self.items.append(i)

    def save(self, name):
        self.items.append(Snapshot(name, False))

    def restore(self, name):
        self.items.append(Snapshot(name, True))


def insert_waits(items):
    out = []
    vm, lg = [], []
    snaps = {}

    def emit(vn, ln):
        s = []
        if vn is not None:
            s.append("vmcnt(%d)" % min(vn, 63))
            del vm[: len(vm) - min(vn, 63)]
        if ln is not None:
            s.append("lgkmcnt(%d)" % min(ln, 15))
            del lg[: len(lg) - min(ln, 15)]
        out.append(Inst("s_waitcnt " + " ".join(s)))

    for it in items:
        if isinstance(it, Snapshot):
            if it.restore:
                vm[:], lg[:] = [list(x) for x in snaps[it.name]]
            else:
                snaps[it.name] = (list(vm), list(lg))
            continue
        if isinstance(it, WaitTok):
            q = vm if it.counter == "vm" else lg
            idx = [i for i, e in enumerate(q) if e[0] == it.tag]
            if idx:
                n = len(q) - 1 - idx[-1]
                if it.counter == "vm":
                    emit(n, None)
                else:
                    emit(None, 0 if any(e[2] for e in q) else n)
            continue
        if not isinstance(it, Inst):
            out.append(it)
            continue
        if it.kind == "waitcnt":
            m = re.search(r"vmcnt\((\d+)\)", it.text)
            if m:
                del vm[: max(0, len(vm) - int(m.group(1)))]
            m = re.search(r"lgkmcnt\((\d+)\)", it.text)
            if m:
                n = int(m.group(1))
                if n == 0 or not any(e[2] for e in lg):
                    del lg[: max(0, len(lg) - n)]
            out.append(it)
            continue
        touched = set(it.defs) | set(it.uses)
        vn = ln = None
        for i in range(len(vm) - 1, -1, -1):
            if vm[i][1] & touched:
                vn = len(vm) - 1 - i
                break
        for i in range(len(lg) - 1, -1, -1):
            if lg[i][1] & touched:
                ln = 0 if any(e[2] for e in lg) else len(lg) - 1 - i
                break
        if vn is not None or ln is not None:
            emit(vn, ln)
        out.append(it)
        if it.kind == "vmem":
            vm.append((it.tag, set(it.defs), False))
        elif it.kind == "ds":
            lg.append((it.tag, set(it.defs), False))
        elif it.kind == "smem":
            if it.op in ("s_memtime", "s_memrealtime"):
                pass
            else:
                lg.append((it.tag, set(it.defs), True))
    return out


def _need(p, c):
    n = 0
    pd, cu, cd = set(p.defs), set(c.uses), set(c.defs)
    if p.kind == "mfma":
        P8 = p.passes == 8
        if c.kind == "mfma":
            if pd & set(c.srcab):
                n = max(n, 12 if P8 else 8)
            if pd & set(c.srcc):
                if not (c.srcc == p.defs and c.passes == p.passes):
                    n = max(n, 10 if P8 else 6)
            elif pd & cd:
                n = max(n, 10 if P8 else 6)
        elif c.kind in ("valu", "vmem", "ds"):
            if pd & (cu | cd):
                n = max(n, 12 if P8 else 8)
            if c.kind == "valu" and set(p.srcc) & cd:
                n = max(n, 7 if P8 else 3)
    elif p.kind == "valu":
        vd = {r for r in pd if r[0] != "s"}
        sd = {r for r in pd if r[0] == "s"}
        if c.kind == "mfma" and vd & cu:
            n = max(n, 2)
        if c.kind == "valu":
            if p.is_trans() and not c.is_trans() and vd & cu:
                n = max(n, 1)
            if p.is_dot():
                if c.op == p.op:
                    ab = set(regs_of(c.ops[1]) + regs_of(c.ops[2]))
                    if vd & ab:
                        n = max(n, 3)
                elif vd & (cu | cd):
                    n = max(n, 3)
            if "readfirstlane" in c.op or "readlane" in c.op:
                if vd & cu:
                    n = max(n, 1)
                if sd & cu:
                    n = max(n, 4)
            if (c.is_dpp() or "permlane" in c.op) and vd & cu:
                n = max(n, 2)
            if sd & cu:
                n = max(n, 2)
            if "sdwa" in p.op and vd & (cu | cd):
                n = max(n, 1)
        elif c.kind in ("vmem", "ds"):
            if p.is_dot() and vd & cu:
                n = max(n, 3)
            if p.is_trans() and vd & cu:
                n = max(n, 1)
            if c.kind == "vmem" and sd & cu:
                n = max(n, 5)
        elif c.kind in ("salu", "smem") and sd & cu:
            n = max(n, 1)
    elif p.kind == "salu":
        if ("s", 124) in pd and c.kind == "vmem" and ("s", 124) in cu:
            n = max(n, 1)
    if p.kind == "vmem" and p.wide_store():
        if set(p.store_data()) & cd:
            n = max(n, 2)
    return n


MAXW = 12


def insert_nops(items):
    out = []
    hist = []
    snaps = {}

    def states(i):
        if i.kind == "nop":
            return int(i.ops[0]) + 1
        return 1

    def push(i):
        s = states(i)
        for h in hist:
            h[1] += s
        hist[:] = [h for h in hist if h[1] < MAXW]
        hist.append([i, 0])
        out.append(i)

    def pad(n):
        while n > 0:
            k = min(n, 16)
            push(Inst("s_nop %d" % (k - 1)))
            n -= k

    def worst(p):
        if p.kind == "mfma":
            return 12 if p.passes == 8 else 8
        if p.kind == "valu":
            return 5 if any(r[0] == "s" for r in p.defs) else (3 if p.is_dot() else 2)
        if p.kind == "salu":
            return 1 if ("s", 124) in p.defs else 0
        if p.kind == "vmem" and p.wide_store():
            return 2
        return 0

    for it in items:
        if not isinstance(it, Inst):
            out.append(it)
            continue
        need = 0
        if it.kind == "branch" and not it.noflush:
            for p, d in hist:
                need = max(need, worst(p) - d - 1)
        for p, d in hist:
            need = max(need, _need(p, it) - d)
        if need > 0:
            pad(need)
        push(it)
    return out


def render(items):
    lines = []
    for it in items:
        if isinstance(it, Label):
            lines.append(it.name + ":")
        elif isinstance(it, Raw):
            lines.append(it.text)
        elif isinstance(it, Inst):
            lines.append("  " + it.text)
    return "\n".join(lines)


def finish(asm):
    return render(insert_nops(insert_waits(asm.items)))


class Regs:
    def __init__(self, kind, lo, hi):
        self.kind, self.free, self.hi = kind, set(range(lo, hi)), hi
        self.high = lo

    def alloc(self, n=1, align=None):
        align = align or (1 if n == 1 else (4 if (self.kind == "s" and n >= 4) else 2))
        for b in range(0, self.hi - n + 1, align):
            if all(b + i in self.free for i in range(n)):
                for i in range(n):
                    self.free.discard(b + i)
                self.high = max(self.high, b + n)
                return Reg(self.kind, b, n)
        raise RuntimeError("out of %s registers (want %d, free %d)" % (self.kind, n, len(self.free)))

    def release(self, *rs):
        for r in rs:
            if isinstance(r, (list, tuple)):
                self.release(*r)
                continue
            for i in range(r.n):
                assert r.b + i not in self.free, "double free"
                self.free.add(r.b + i)

    def clone(self):
        c = Regs(self.kind, 0, self.hi)
        c.free, c.high = set(self.free), self.high
        return c


class Reg:
    def __init__(self, kind, b, n):
        self.kind, self.b, self.n = kind, b, n

    def __str__(self):
        return "%s%d" % (self.kind, self.b) if self.n == 1 else "%s[%d:%d]" % (self.kind, self.b, self.b + self.n - 1)

    __repr__ = __str__

    def __getitem__(self, i):
        if isinstance(i, slice):
            a, b, _ = i.indices(self.n)
            return Reg(self.kind, self.b + a, b - a)
        assert 0 <= i < self.n
        return Reg(self.kind, self.b + i, 1)
```

```python
import sys, os, struct
sys.path.insert(0, os.path.dirname(os.path.abspath(__file__)))
from asmlib import *

NAME = "adaLN_cond__sliding_block__glu_gated_glu__prompt"
OPT = dict(prof=0, out_sc1=1, clean=1, force_slow=0, force_fb=0)
for a_ in sys.argv[2:]:
    k_, v_ = a_.split("=")
    OPT[k_] = int(v_)

WS_E, WS_MOD1, WS_MOD2 = 0, 0x1000, 0xC000
WS_FLAG, WS_HFLAG, WS_STATS, WS_PROF = 0x10000, 0x18000, 0x20000, 0x60000
WS_H1, WS_O, WS_H2, WS_HB, WS_HALO, WS_END = 0x100000, 0x380000, 0x600000, 0x880000, 0xE80000, 0x1480000
ACT, HBG = 327680, 786432
L_MOD2F, L_PART2 = 0, 1280
L_QX = 2048
L_K, L_V = 8192, 32768
L_PART, L_SILU, L_MOD1F, L_MODEF = 8192, 9472, 10752, 15872
L_WQ = 57344
L_WO = 57344
L_RED = 8192
L_GU = 40960
L_WD = 0
L_REDD = 8 * 5120
LDS_BYTES = 163840
BIG = 0xF1800000
OOB = 0x7F000000
POLL_MAX = 1 << 17


def f32(x):
    return struct.unpack("<I", struct.pack("<f", x))[0]


LOG2E = 1.4426950408889634
S = lambda b, n=1: Reg("s", b, n)
sX, sWQ, sWO, sWG, sWU, sWD, sCC, sWM, sOUT, sWS = [S(4 + 4 * i, 4) for i in range(10)]
sT = S(44, 2)
sG, sJ, sW, sW4, sXCC, sMODE = S(46), S(47), S(48), S(49), S(50), S(51)
t0, t1, t2, t3, t4, t5, t6, t7 = [S(52 + i) for i in range(8)]
p0, p1 = S(60, 2), S(62, 2)
sCNT, sHOOK, sPASS, sI, sN = S(64), S(65), S(66), S(67), S(68)
sHI = S(70, 2)
PROF0 = 72

A = Asm()
nlab = [0]


def lab(p):
    nlab[0] += 1
    return "L_%s_%d" % (p, nlab[0])


class Ctx:
    def __init__(self, V):
        self.V, self.nstamp, self.cold = V, 0, []

    def stamp(self):
        if OPT["prof"]:
            assert self.nstamp < 15
            A("s_memrealtime %s" % S(PROF0 + 2 * self.nstamp, 2))
            self.nstamp += 1


def unpack(lo, hi, src):
    A(f"v_lshlrev_b32 {lo}, 16, {src}")
    A(f"v_and_b32 {hi}, 0xffff0000, {src}")


def round_pair(a, b, tmp):
    A(f"v_cvt_pk_bf16_f32 {tmp}, {a}, {b}")
    unpack(a, b, tmp)


def round1(a):
    A(f"v_cvt_pk_bf16_f32 {a}, {a}, {a}")
    A(f"v_and_b32 {a}, 0xffff0000, {a}")


def sum16(x):
    for m in ("quad_perm:[1,0,3,2]", "quad_perm:[2,3,0,1]", "row_half_mirror", "row_mirror"):
        A(f"v_add_f32_dpp {x}, {x}, {x} {m} row_mask:0xf bank_mask:0xf")


def xor16_add(x, tmp):
    A(f"v_mov_b32 {tmp}, {x}")
    A(f"v_permlane16_swap_b32 {tmp}, {x}")
    A(f"v_add_f32 {x}, {x}, {tmp}")


def xor32_op(op, x, tmp):
    A(f"v_mov_b32 {tmp}, {x}")
    A(f"v_permlane32_swap_b32 {tmp}, {x}")
    A(f"{op} {x}, {x}, {tmp}")


def poll(c, loads, check, acquire=True):
    top, done = lab("poll"), lab("pdone")
    A(f"s_mov_b32 {sCNT}, 0")
    A.label(top)
    for l in loads:
        A(l)
    A(f"s_add_u32 {sCNT}, {sCNT}, 1")
    A(f"s_cmp_gt_u32 {sCNT}, {POLL_MAX}")
    A.branch(f"s_cbranch_scc1 {done}", noflush=True)
    A("s_waitcnt vmcnt(0)")
    check()
    A.branch(f"s_cbranch_vccnz {top}")
    A.label(done)
    A("s_waitcnt vmcnt(0)")
    if acquire:
        skip = lab("noacq")
        A(f"s_cmp_eq_u32 {sMODE}, 0")
        A.branch(f"s_cbranch_scc1 {skip}", noflush=True)
        A("buffer_inv sc1")
        A("s_waitcnt vmcnt(0)")
        A.label(skip)


def check_flags(regs):
    def f():
        A(f"v_cmp_ne_u64 vcc, {sT}, {regs[0]}")
        for r in regs[1:]:
            A(f"v_cmp_ne_u64 {p0}, {sT}, {r}")
            A(f"s_or_b64 vcc, vcc, {p0}")
    return f


def signal(c, edge):
    V = c.V
    a, d = V.alloc(1), V.alloc(2)
    A(f"s_lshl_b32 {t0}, {sG}, 12")
    A(f"s_lshl_b32 {t1}, {sJ}, 5")
    A(f"s_add_u32 {t0}, {t0}, {t1}")
    A(f"s_lshl_b32 {t1}, {sW4}, 3")
    A(f"s_add_u32 {t0}, {t0}, {t1}")
    A(f"s_add_u32 {t0}, {t0}, {WS_FLAG + 1024 * edge}")
    A(f"v_mov_b32 {a}, 0")
    A(f"v_mov_b32 {d[0]}, {sT[0]}")
    A(f"v_mov_b32 {d[1]}, {sT[1]}")
    slow, done = lab("sigslow"), lab("sigdone")
    A("s_mov_b64 exec, 1")
    A(f"s_cmp_lg_u32 {sMODE}, 0")
    A("s_waitcnt vmcnt(0)")
    A.branch(f"s_cbranch_scc1 {slow}", noflush=True)
    A(f"buffer_store_dwordx2 {d}, {a}, {sWS}, {t0} offen")
    A.label(done)
    A("s_mov_b64 exec, -1")

    def cold():
        A.label(slow)
        A("buffer_wbl2 sc1")
        A("s_waitcnt vmcnt(0)")
        A(f"buffer_store_dwordx2 {d}, {a}, {sWS}, {t0} offen sc1")
        A.branch(f"s_branch {done}")
    c.cold.append(cold)
    V.release(a, d)


def flag_base(dst, edge):
    A(f"s_lshl_b32 {dst}, {sG}, 12")
    A(f"s_add_u32 {dst}, {dst}, {WS_FLAG + 1024 * edge}")


def prologue():
    V = Regs("v", 0, 256)
    c = Ctx(V)
    v0 = V.alloc(1)
    c.lane = V.alloc(1)
    A("s_cmp_ge_u32 s2, 256")
    A.branch("s_cbranch_scc1 L_end", noflush=True)
    c.stamp()
    for srd, off in ((sWM, 64), (sCC, 56), (sWS, 88), (sX, 0), (sWQ, 8), (sWO, 16), (sWG, 32), (sWU, 40), (sWD, 48), (sOUT, 72)):
        A(f"s_load_dwordx2 {srd[0:2]}, s[0:1], {off}")
    for srd, n in ((sWM, 4915200), (sCC, 1280), (sWS, WS_END), (sX, 2621440), (sWQ, 2457600), (sWO, 819200), (sWG, 1966080),
                   (sWU, 1966080), (sWD, 1966080), (sOUT, 2621440)):
        A(f"s_mov_b32 {srd[2]}, {n}")
        A(f"s_mov_b32 {srd[3]}, 0x20000")
    tmp, r8, c8 = V.alloc(1), V.alloc(1), V.alloc(1)
    A(f"v_lshrrev_b32 {tmp}, 6, {v0}")
    A(f"v_and_b32 {c.lane}, 63, {v0}")
    A(f"v_readfirstlane_b32 {sW}, {tmp}")
    A(f"s_and_b32 {sG}, s2, 7")
    A(f"s_lshr_b32 {sJ}, s2, 3")
    A(f"s_getreg_b32 {sXCC}, hwreg(HW_REG_XCC_ID, 0, 4)")
    A(f"s_mov_b32 {sHI[0]}, 0")
    A(f"s_mov_b32 {sHI[1]}, -1")
    A(f"s_and_b32 {sW4}, {sW}, 3")
    A(f"v_lshrrev_b32 {r8}, 3, {c.lane}")
    A(f"v_and_b32 {c8}, 7, {c.lane}")
    A(f"s_mul_i32 {t0}, {sW}, 80")
    A(f"v_mul_u32_u24 {r8}, 10, {r8}")
    A(f"v_add_u32 {r8}, {t0}, {r8}")
    wo, co = V.alloc(1), V.alloc(1)
    A(f"v_lshlrev_b32 {co}, 1, {r8}")
    A(f"v_mul_u32_u24 {wo}, 0x1e00, {r8}")
    A(f"s_mul_i32 {t1}, {sJ}, 80")
    A(f"v_lshl_add_u32 {tmp}, {c8}, 4, {t1}")
    A(f"v_add_u32 {wo}, {wo}, {tmp}")
    A(f"v_mov_b32 {tmp}, {OOB}")
    A(f"v_cmp_gt_u32 vcc, 5, {c8}")
    A(f"v_cndmask_b32 {wo}, {tmp}, {wo}, vcc")
    c.cv = V.alloc(6, 2)
    c.wm = V.alloc(40, 4)
    A("s_waitcnt lgkmcnt(0)")
    A(f"s_load_dword {sT[0]}, {sWS[0:2]}, {WS_E}")
    A(f"buffer_load_dwordx4 {c.cv[0:4]}, {co}, {sCC}, 0 offen")
    A(f"buffer_load_dword {c.cv[4]}, {co}, {sCC}, 0 offen offset:16")
    A(f"s_mov_b32 {t0}, 0")
    for p in range(10):
        A(f"buffer_load_dwordx4 {c.wm[4 * p:4 * p + 4]}, {wo}, {sWM}, {t0} offen")
        if p < 9:
            A(f"s_add_u32 {t0}, {t0}, 7680")
    c.co, c.c8 = co, c8
    V.release(v0, tmp, r8, wo)
    A(f"s_cmp_ge_u32 {sW}, 4")
    A.branch("s_cbranch_scc1 L_helper")
    A.save("split")
    return c


def tag_setup():
    A("s_waitcnt lgkmcnt(0)")
    A(f"s_add_u32 {sT[0]}, {sT[0]}, 1")
    A(f"s_not_b32 {sT[1]}, {sT[0]}")


def gemv1(c):
    V = c.V
    s = V.alloc(10)
    e = V.alloc(10)
    for i in range(5):
        unpack(s[2 * i], s[2 * i + 1], c.cv[i])
    for i in range(10):
        A(f"v_mul_f32 {e[i]}, {hex(f32(-LOG2E))}, {s[i]}")
    for i in range(10):
        A(f"v_exp_f32 {e[i]}, {e[i]}")
    for i in range(10):
        A(f"v_add_f32 {e[i]}, 1.0, {e[i]}")
    for i in range(10):
        A(f"v_rcp_f32 {e[i]}, {e[i]}")
    for i in range(10):
        A(f"v_mul_f32 {s[i]}, {s[i]}, {e[i]}")
    for i in range(5):
        A(f"v_cvt_pk_bf16_f32 {c.cv[i]}, {s[2 * i]}, {s[2 * i + 1]}")
    for i in range(5):
        A(f"ds_write_b32 {c.co}, {c.cv[i]} offset:{L_SILU + 4 * i}")
    for i in range(10):
        A(f"v_cvt_pk_bf16_f32 {e[i]}, 0, {s[i]}")
        A(f"v_cvt_pk_bf16_f32 {s[i]}, {s[i]}, 0")
    acc = V.alloc(8)
    for p in range(10):
        for i in range(4):
            for h, m in ((0, s), (1, e)):
                src = "0" if p == 0 else acc[2 * i + h]
                A(f"v_dot2_f32_bf16 {acc[2 * i + h]}, {c.wm[4 * p + i]}, {m[p]}, {src}")
    for i in range(4):
        A(f"v_permlane32_swap_b32 {acc[i]}, {acc[i + 4]}")
    for i in range(4):
        A(f"v_add_f32 {acc[i]}, {acc[i]}, {acc[i + 4]}")
    for i in range(2):
        A(f"v_permlane16_swap_b32 {acc[i]}, {acc[i + 2]}")
    r = V.alloc(2)
    for i in range(2):
        A(f"v_add_f32 {r[i]}, {acc[i]}, {acc[i + 2]}")
    for i in range(2):
        A(f"v_add_f32_dpp {r[i]}, {r[i]}, {r[i]} row_ror:8 row_mask:0xf bank_mask:0xf")
    ad, tmp = s[0], s[1]
    A(f"v_lshrrev_b32 {tmp}, 4, {c.lane}")
    A(f"v_lshlrev_b32 {tmp}, 3, {tmp}")
    A(f"v_lshl_add_u32 {ad}, {c.c8}, 5, {tmp}")
    A(f"s_mul_i32 {t0}, {sW}, 160")
    A(f"v_add_u32 {ad}, {t0}, {ad}")
    A(f"v_cmp_gt_u32 vcc, 5, {c.c8}")
    A(f"s_and_saveexec_b64 {p0}, vcc")
    A(f"ds_write_b64 {ad}, {r} offset:{L_PART}")
    A(f"s_mov_b64 exec, {p0}")
    V.release(s, e, acc, r, c.cv, c.wm, c.co, c.c8)


def barrier():
    A("s_waitcnt lgkmcnt(0)")
    A("s_barrier")


def att_masks(c):
    V = c.V
    c.mask = V.alloc(16, 4)
    z, big = V.alloc(1), V.alloc(1)
    A(f"v_lshrrev_b32 {z}, 5, {c.lane}")
    A(f"v_lshlrev_b32 {z}, 2, {z}")
    A(f"v_and_b32 {big}, 31, {c.lane}")
    A(f"v_sub_u32 {z}, {big}, {z}")
    A(f"v_mov_b32 {big}, {hex(BIG)}")
    build_mask(c, z, big)
    V.release(z, big)


def build_mask(c, z, big):
    for r in range(16):
        A(f"v_cmp_le_i32 vcc, {8 * (r >> 2) + (r & 3)}, {z}")
        A(f"v_cndmask_b32 {c.mask[r]}, {big}, 0, vcc") if False else A(f"v_cndmask_b32_e64 {c.mask[r]}, {big}, 0, vcc")


def att_addr(c, sig):
    V = c.V
    c.aK, c.aK4, c.aV = V.alloc(1), V.alloc(1), V.alloc(1)
    t, u = V.alloc(1), V.alloc(1)
    A(f"s_mul_i32 {t0}, {sig}, 1536")
    A(f"v_and_b32 {t}, 31, {c.lane}")
    A(f"v_mul_u32_u24 {t}, 48, {t}")
    A(f"s_add_u32 {t1}, {t0}, {L_K}")
    A(f"v_add_u32 {t}, {t1}, {t}")
    A(f"v_add_u32 {c.aK4}, 32, {t}")
    A(f"v_lshrrev_b32 {u}, 5, {c.lane}")
    A(f"v_lshl_add_u32 {c.aK}, {u}, 4, {t}")
    A(f"v_bfe_u32 {t}, {c.lane}, 2, 2")
    A(f"v_lshl_add_u32 {t}, {u}, 2, {t}")
    A(f"v_mul_u32_u24 {t}, 48, {t}")
    A(f"s_add_u32 {t1}, {t0}, {L_V}")
    A(f"v_add_u32 {c.aV}, {t1}, {t}")
    A(f"v_and_b32 {t}, 3, {c.lane}")
    A(f"v_bfe_u32 {u}, {c.lane}, 4, 1")
    A(f"v_lshl_add_u32 {t}, {u}, 2, {t}")
    A(f"v_lshlrev_b32 {t}, 2, {t}")
    A(f"s_mov_b32 {t1}, 0x45543120")
    A(f"v_lshrrev_b32 {t}, {t}, {t1}") if False else A(f"v_lshrrev_b32_e64 {t}, {t}, {t1}")
    A(f"v_and_b32 {t}, 7, {t}")
    A(f"v_lshl_add_u32 {c.aV}, {t}, 3, {c.aV}")
    V.release(t, u)


def attention(c, role):
    V = c.V
    Q0, Q1 = c.Q0, c.Q1
    Sx = [V.alloc(16, 4), V.alloc(16, 4)]
    O, Cm = V.alloc(16, 4), V.alloc(16, 4)
    P, Vf = V.alloc(8, 4), V.alloc(8, 4)
    Ka, Kb = V.alloc(4, 4), V.alloc(2)
    m, mg, tmp = V.alloc(1), V.alloc(1), V.alloc(1)
    R = role
    off = lambda n: (8 - n) * 1536

    def readK(n):
        A(f"ds_read_b128 {Ka}, {c.aK} offset:{off(n)}")
        A(f"ds_read_b64 {Kb}, {c.aK4} offset:{off(n)}")

    def readV(n):
        for ks in range(2):
            for u in range(2):
                A(f"ds_read_b64_tr_b16 {Vf[4 * ks + 2 * u:4 * ks + 2 * u + 2]}, {c.aV} offset:{off(n) + (16 * ks + 8 * u) * 48}")

    def qk(dst, cin):
        A(f"v_mfma_f32_32x32x16_bf16 {dst}, {Ka}, {Q0}, {cin}")
        A(f"v_mfma_f32_32x32x8bf16_1k {dst}, {Kb}, {Q1}, {dst}")

    A(f"v_mov_b32 {mg}, {hex(BIG)}")
    A(f"s_mov_b32 {sPASS}, 0")
    A.label(f"L_att_{R}")
    readK(0)
    qk(Sx[0], c.mask)
    A(f"v_max3_f32 {m}, {Sx[0][0]}, {Sx[0][1]}, {mg}")
    for r in range(2, 16, 2):
        A(f"v_max3_f32 {m}, {Sx[0][r]}, {Sx[0][r + 1]}, {m}")
    xor32_op("v_max_f32", m, tmp)
    A(f"v_mov_b32 {tmp}, {hex(BIG)}")
    for r in range(16):
        A(f"v_sub_f32 {Cm[r]}, 0, {m}")
        A(f"v_sub_f32 {c.mask[r]}, {tmp}, {c.mask[r]}")
    for r in range(16):
        A(f"v_sub_f32 {Sx[0][r]}, {Sx[0][r]}, {m}")
        A(f"v_sub_f32 {c.mask[r]}, {c.mask[r]}, {m}")
    for n in range(9):
        s = Sx[n & 1]
        if n < 8:
            A(f"s_cmp_eq_u32 {sHOOK}, {n}")
            A.branch(f"s_cbranch_scc1 L_hook_{R}_{n}", noflush=True)
            A.label(f"L_back_{R}_{n}")
            readK(n + 1)
        readV(n)
        order = []
        for r in range(0, 16, 2):
            order += [f"v_exp_f32 {s[r]}, {s[r]}", f"v_exp_f32 {s[r + 1]}, {s[r + 1]}"]
            if r >= 2:
                order.append(f"v_cvt_pk_bf16_f32 {P[r // 2 - 1]}, {s[r - 2]}, {s[r - 1]}")
        for i, x in enumerate(order):
            A(x)
            if i == 4 and n < 8:
                A(f"v_mfma_f32_32x32x16_bf16 {Sx[(n + 1) & 1]}, {Ka}, {Q0}, {c.mask if n == 7 else Cm}")
            if i == 9 and n < 8:
                A(f"v_mfma_f32_32x32x8bf16_1k {Sx[(n + 1) & 1]}, {Kb}, {Q1}, {Sx[(n + 1) & 1]}")
            if i == 15:
                A(f"v_mfma_f32_32x32x16_bf16 {O}, {Vf[0:4]}, {P[0:4]}, {'0' if n == 0 else O}")
        A(f"v_cvt_pk_bf16_f32 {P[7]}, {s[14]}, {s[15]}")
        A(f"v_mfma_f32_32x32x16_bf16 {O}, {Vf[4:8]}, {P[4:8]}, {O}")
    A(f"v_cndmask_b32_e64 {m}, {O[12]}, {O[8]}, {sHI}")
    A(f"s_mov_b32 {t0}, {hex(f32(2.0 ** 40 if not OPT['force_fb'] else 1.5))}")
    A(f"v_cmp_nge_f32 vcc, {t0}, {m}")
    A(f"s_cmp_eq_u32 {sPASS}, 0")
    A(f"s_cselect_b64 vcc, vcc, 0")
    A.branch(f"s_cbranch_vccnz L_fb_{R}")
    A(f"v_rcp_f32 {m}, {m}")
    c.op = P
    for r in range(12):
        A(f"v_mul_f32 {O[r]}, {O[r]}, {m}")
    for r in range(6):
        A(f"v_cvt_pk_bf16_f32 {c.op[r]}, {O[2 * r]}, {O[2 * r + 1]}")

    def cold():
        for n in range(8):
            A.label(f"L_hook_{R}_{n}")
            A(f"s_getpc_b64 {p1}")
            A.label(f"L_hk_{R}_{n}")
            A(f"s_sub_u32 {p1[0]}, {p1[0]}, L_hk_{R}_{n}-L_back_{R}_{n}")
            A(f"s_subb_u32 {p1[1]}, {p1[1]}, 0")
            if n < 7:
                A.branch(f"s_branch L_hookbody_{R}", noflush=True)
        A.label(f"L_hookbody_{R}")
        second, notg0 = lab("hk2"), lab("hkg")
        A(f"s_cmp_lg_u32 {sPASS}, 0")
        A.branch(f"s_cbranch_scc1 {second}", noflush=True)
        c.hook()
        A("s_barrier")
        A.label(second)
        A(f"s_cmp_lg_u32 {sG}, 0")
        A.branch(f"s_cbranch_scc1 {notg0}", noflush=True)
        A("s_nop 7")
        for r in range(16):
            A(f"v_mov_b32 {Cm[r]}, {hex(BIG)}")
            A(f"v_mov_b32 {c.mask[r]}, {hex(BIG)}")
        A.label(notg0)
        A.branch(f"s_setpc_b64 {p1}")
        A.label(f"L_fb_{R}")
        z, big = P[0], P[1]
        A(f"v_lshrrev_b32 {z}, 5, {c.lane}")
        A(f"v_lshlrev_b32 {z}, 2, {z}")
        A(f"v_and_b32 {big}, 31, {c.lane}")
        A(f"v_sub_u32 {z}, {big}, {z}")
        A(f"v_mov_b32 {big}, {hex(BIG)}")
        build_mask(c, z, big)
        for r in range(16):
            A(f"v_sub_f32 {Cm[r]}, {big}, {c.mask[r]}")
        for n in range(1, 9):
            skip = lab("fbskip")
            A(f"s_cmp_eq_u32 {sG}, 0")
            A(f"s_cselect_b32 {t0}, {sHOOK}, 8")
            A(f"s_cmp_lt_u32 {t0}, {n}")
            A.branch(f"s_cbranch_scc1 {skip}")
            readK(n)
            qk(Sx[0], Cm if n == 8 else "0")
            for r in range(0, 16, 2):
                A(f"v_max3_f32 {mg}, {Sx[0][r]}, {Sx[0][r + 1]}, {mg}")
            A.label(skip)
        A(f"s_mov_b32 {sPASS}, 1")
        A.branch(f"s_branch L_att_{R}")
    c.cold.append(cold)
    V.release(Sx, O, Cm, Vf, Ka, Kb, m, mg, tmp, c.mask, c.aK, c.aK4, c.aV, Q0, Q1)


def wd_pattern(c):
    V = c.V
    c.pat = V.alloc(5)
    p, r = V.alloc(1), V.alloc(1)
    A(f"s_and_b32 {t0}, {sJ}, 7")
    A(f"s_mul_i32 {t0}, {t0}, 160")
    for i in range(5):
        A(f"v_add_u32 {p}, {64 * i}, {c.lane}")
        A(f"v_mul_u32_u24 {r}, 0x199a, {p}")
        A(f"v_lshrrev_b32 {r}, 16, {r}")
        A(f"v_mul_u32_u24 {c.pat[i]}, 0x460, {r}")
        A(f"v_lshl_add_u32 {c.pat[i]}, {p}, 4, {c.pat[i]}")
        A(f"v_add_u32 {c.pat[i]}, {t0}, {c.pat[i]}")
    V.release(p, r)


def dma_slab(c, srd, s_src, lds):
    for i in range(5):
        if isinstance(lds, int):
            A(f"s_mov_b32 m0, {lds + 1024 * i}")
        else:
            A(f"s_add_u32 m0, {lds}, {1024 * i}")
        tag = A.tagged(f"buffer_load_dwordx4 {c.pat[i]}, {srd}, {s_src} offen lds")
    return tag


def prof_dump(c, role):
    if not OPT["prof"]:
        return
    V = c.V
    a, d = V.alloc(1), V.alloc(1)
    skip = lab("noprof")
    A(f"s_cmp_lg_u32 {sW4}, 0")
    A.branch(f"s_cbranch_scc1 {skip}")
    A("s_waitcnt lgkmcnt(0)")
    A(f"s_lshl_b32 {t0}, s2, 8")
    A(f"s_add_u32 {t0}, {t0}, {WS_PROF + 128 * role}")
    A(f"v_mov_b32 {a}, 0")
    A("s_mov_b64 exec, 1")
    for i in range(c.nstamp):
        A(f"v_mov_b32 {d}, {S(PROF0 + 2 * i)}")
        A(f"buffer_store_dword {d}, {a}, {sWS}, {t0} offen offset:{4 * i}")
    A("s_mov_b64 exec, -1")
    A.label(skip)
    V.release(a, d)


def tile_gemm(c, nks, s_a0, s_a1, depth, waddr, barrier_at):
    V = c.V
    ring = [[V.alloc(4, 4), V.alloc(4, 4)] for _ in range(depth)]
    W = [V.alloc(20, 4), V.alloc(20, 4)]
    acc = [V.alloc(20, 4), V.alloc(20, 4)]

    def loadA(ks):
        for a, sb in ((0, s_a0), (1, s_a1)):
            A(f"buffer_load_dwordx4 {ring[ks % depth][a]}, {c.l16}, {sWS}, {sb} offen offset:{(ks % 4) * 1024} sc1")
        if ks % 4 == 3:
            A(f"s_add_u32 {s_a0}, {s_a0}, 4096")
            A(f"s_add_u32 {s_a1}, {s_a1}, 4096")

    def readW(ks, ct):
        ad, imm = waddr(ks)
        for u in range(2):
            A(f"ds_read_b64_tr_b16 {W[ks & 1][4 * ct + 2 * u:4 * ct + 2 * u + 2]}, {ad} offset:{imm + 1280 * u + 32 * ct}")

    for ks in range(min(depth, nks)):
        loadA(ks)
    if 0 in barrier_at:
        A("s_barrier")
    for ct in range(5):
        readW(0, ct)
    for ks in range(nks):
        nxt = ks + 1 < nks
        if nxt and (ks + 1) in barrier_at:
            barrier()
        for ct in range(5):
            for a in range(2):
                A(f"v_mfma_f32_16x16x32_bf16 {acc[a][4 * ct:4 * ct + 4]}, {W[ks & 1][4 * ct:4 * ct + 4]}, {ring[ks % depth][a]}, "
                  f"{'0' if ks == 0 else acc[a][4 * ct:4 * ct + 4]}")
                if nxt and a == 0:
                    readW(ks + 1, ct)
        if ks + depth < nks:
            loadA(ks + depth)
    V.release(ring, W)
    return acc


def tile_reduce(c, acc, lds):
    V = c.V
    ad = V.alloc(1)
    A(f"s_mul_i32 {t0}, {sW4}, 5120")
    A(f"s_add_u32 {t0}, {t0}, {lds}")
    A(f"v_add_u32 {ad}, {t0}, {c.l16}")
    for ct in range(5):
        A(f"ds_write_b128 {ad}, {acc[1][4 * ct:4 * ct + 4]} offset:{1024 * ct}")
    A(f"s_xor_b32 {t0}, {sW4}, 1")
    A(f"s_mul_i32 {t0}, {t0}, 5120")
    A(f"s_add_u32 {t0}, {t0}, {lds}")
    A(f"v_add_u32 {ad}, {t0}, {c.l16}")
    barrier()
    for ct in range(5):
        A(f"ds_read_b128 {acc[1][4 * ct:4 * ct + 4]}, {ad} offset:{1024 * ct}")
    for r in range(20):
        A(f"v_add_f32 {acc[0][r]}, {acc[0][r]}, {acc[1][r]}")
    V.release(ad, acc[1])
    return acc[0]


def wtile_addr(c, base, half_bytes):
    V = c.V
    ad, t, u = V.alloc(1), V.alloc(1), V.alloc(1)
    A(f"v_lshrrev_b32 {t}, 5, {c.lane}")
    A(f"v_bfe_u32 {u}, {c.lane}, 4, 1")
    A(f"v_lshlrev_b32 {t}, 4, {t}")
    A(f"v_lshl_add_u32 {t}, {u}, 2, {t}")
    A(f"v_bfe_u32 {u}, {c.lane}, 2, 2")
    A(f"v_add_u32 {t}, {t}, {u}")
    A(f"v_mul_u32_u24 {t}, 0xa0, {t}")
    A(f"v_and_b32 {u}, 3, {c.lane}")
    A(f"v_lshl_add_u32 {t}, {u}, 3, {t}")
    A(f"s_and_b32 {t0}, {sW4}, 1")
    A(f"s_mul_i32 {t0}, {t0}, {half_bytes}")
    A(f"s_add_u32 {t0}, {t0}, {base}")
    A(f"v_add_u32 {ad}, {t0}, {t}")
    V.release(t, u)
    return ad


def tile_streams(base, per_group, tile_bytes, half_bytes, d0, d1):
    A(f"s_mul_i32 {t0}, {sG}, {per_group}")
    A(f"s_and_b32 {t1}, {sW4}, 1")
    A(f"s_mul_i32 {t1}, {t1}, {half_bytes}")
    A(f"s_add_u32 {t0}, {t0}, {t1}")
    A(f"s_add_u32 {t0}, {t0}, {base}")
    A(f"s_lshl_b32 {t1}, {sI}, 2")
    A(f"s_add_u32 {t2}, {t1}, {sW4}")
    A(f"s_mul_i32 {d0}, {t2}, {tile_bytes}")
    A(f"s_add_u32 {d0}, {d0}, {t0}")
    A(f"s_xor_b32 {t2}, {t2}, 1")
    A(f"s_mul_i32 {d1}, {t2}, {tile_bytes}")
    A(f"s_add_u32 {d1}, {d1}, {t0}")


def ln_scalars(mean, var, tmp):
    round1(mean)
    round1(var)
    A(f"v_add_f32 {var}, {hex(f32(1e-5))}, {var}")
    round1(var)
    A(f"v_sqrt_f32 {var}, {var}")
    round1(var)
    A(f"v_rcp_f32 {var}, {var}")


def compute_role(c0):
    c = Ctx(c0.V.clone())
    c.__dict__.update({k: v for k, v in c0.__dict__.items() if k not in ("V", "cold")})
    V = c.V
    lane = c.lane
    xr = V.alloc(12, 4)
    xo, x3, cl, tok = V.alloc(1), V.alloc(1), V.alloc(1), V.alloc(1)
    A(f"v_and_b32 {cl}, 31, {lane}")
    A(f"v_lshrrev_b32 {tok}, 5, {lane}")
    A(f"s_lshl_b32 {t0}, {sJ}, 3")
    A(f"s_lshl_b32 {t1}, {sW4}, 1")
    A(f"s_add_u32 {t0}, {t0}, {t1}")
    A(f"v_add_u32 {tok}, {t0}, {tok}")
    A(f"v_mul_u32_u24 {xo}, 0x500, {tok}")
    A(f"v_lshl_add_u32 {xo}, {cl}, 4, {xo}")
    A(f"s_mul_i32 {t1}, {sG}, {ACT}")
    A(f"v_mov_b32 {x3}, {OOB}")
    A(f"v_cmp_gt_u32 {p1}, 16, {cl}")
    A(f"v_cndmask_b32_e64 {x3}, {x3}, {xo}, {p1}")
    A(f"buffer_load_dwordx4 {xr[0:4]}, {xo}, {sX}, {t1} offen")
    A(f"buffer_load_dwordx4 {xr[4:8]}, {xo}, {sX}, {t1} offen offset:512")
    A(f"buffer_load_dwordx4 {xr[8:12]}, {x3}, {sX}, {t1} offen offset:1024")
    V.release(xo, x3)
    c.l16 = V.alloc(1)
    A(f"v_lshlrev_b32 {c.l16}, 4, {lane}")
    A(f"s_lshr_b32 {sI}, {sJ}, 3")
    A(f"s_and_b32 {sN}, {sJ}, 7")
    att_masks(c)
    gemv1(c)
    c.stamp()
    xf = V.alloc(24)
    mean, var, tmp, m3 = V.alloc(1), V.alloc(1), V.alloc(1), V.alloc(1)
    for i in range(12):
        unpack(xf[2 * i], xf[2 * i + 1], xr[i])
    A(f"v_add_f32 {mean}, {xf[0]}, {xf[1]}")
    for i in range(2, 24):
        A(f"v_add_f32 {mean}, {mean}, {xf[i]}")
    sum16(mean)
    xor16_add(mean, tmp)
    A(f"v_mul_f32 {mean}, {hex(f32(1 / 640))}, {mean}")
    A(f"v_cndmask_b32_e64 {m3}, 0, {mean}, {p1}")
    d = xr
    for i in range(24):
        A(f"v_sub_f32 {d[i % 4]}, {xf[i]}, {mean if i < 16 else m3}")
        if i == 0:
            A(f"v_mul_f32 {var}, {d[0]}, {d[0]}")
        else:
            A(f"v_fmac_f32 {var}, {d[i % 4]}, {d[i % 4]}")
    sum16(var)
    xor16_add(var, tmp)
    A(f"v_mul_f32 {var}, {hex(f32(1 / 640))}, {var}")
    ln_scalars(mean, var, tmp)
    for i in range(0, 24, 2):
        A(f"v_sub_f32 {xf[i]}, {xf[i]}, {mean}")
        A(f"v_sub_f32 {xf[i + 1]}, {xf[i + 1]}, {mean}")
        round_pair(xf[i], xf[i + 1], tmp)
        A(f"v_mul_f32 {xf[i]}, {xf[i]}, {var}")
        A(f"v_mul_f32 {xf[i + 1]}, {xf[i + 1]}, {var}")
        round_pair(xf[i], xf[i + 1], tmp)
    V.release(mean, var, m3)
    tag_setup()
    barrier()
    skip = lab("nopub")
    A(f"s_cmp_lg_u32 {sW4}, 0")
    A.branch(f"s_cbranch_scc1 {skip}")
    pr = V.alloc(32, 4)
    gr = V.alloc(4, 4)
    A("s_mov_b64 exec, 0x3ff")
    for p in range(8):
        A(f"ds_read_b128 {pr[4 * p:4 * p + 4]}, {c.l16} offset:{L_PART + 160 * p}")
    for p in range(1, 8):
        for i in range(4):
            A(f"v_add_f32 {pr[i]}, {pr[i]}, {pr[4 * p + i]}")
    A(f"v_cvt_pk_bf16_f32 {gr[0]}, {pr[0]}, {pr[1]}")
    A(f"v_cvt_pk_bf16_f32 {gr[1]}, {pr[2]}, {pr[3]}")
    A(f"s_xor_b32 {t1}, {sT[1]}, {sXCC}")
    A(f"v_mov_b32 {gr[2]}, {sT[0]}")
    A(f"v_mov_b32 {gr[3]}, {t1}")
    A(f"s_mul_i32 {t0}, {sG}, 5120")
    A(f"s_mul_i32 {t1}, {sJ}, 160")
    A(f"s_add_u32 {t0}, {t0}, {t1}")
    A(f"s_add_u32 {t0}, {t0}, {WS_MOD1}")
    A(f"buffer_store_dwordx4 {gr}, {c.l16}, {sWS}, {t0} offen sc1")
    A("s_mov_b64 exec, -1")
    A.label(skip)
    V.release(pr, gr)
    c.stamp()
    ga, gb = V.alloc(4, 4), V.alloc(4, 4)
    a2 = V.alloc(1)
    A(f"v_and_b32 {a2}, 15, {lane}")
    A(f"v_lshlrev_b32 {a2}, 4, {a2}")
    A(f"s_mul_i32 {t2}, {sG}, 5120")
    A(f"s_mul_i32 {t1}, {sW4}, 1280")
    A(f"s_add_u32 {t2}, {t2}, {t1}")
    A(f"s_add_u32 {t2}, {t2}, {WS_MOD1}")

    def chk():
        A(f"v_xor_b32 {ga[3]}, {sT[1]}, {ga[3]}")
        A(f"v_xor_b32 {gb[3]}, {sT[1]}, {gb[3]}")
        A(f"v_cmp_ne_u32 vcc, {sT[0]}, {ga[2]}")
        A(f"v_cmp_ne_u32 {p0}, {sT[0]}, {gb[2]}")
        A(f"v_or_b32 {tmp}, {ga[3]}, {gb[3]}")
        A(f"s_or_b64 vcc, vcc, {p0}")
        A(f"v_cmp_lt_u32 {p0}, 15, {tmp}")
        A(f"s_or_b64 vcc, vcc, {p0}")
    poll(c, [f"buffer_load_dwordx4 {ga}, {c.l16}, {sWS}, {t2} offen sc1",
             f"buffer_load_dwordx4 {gb}, {a2}, {sWS}, {t2} offen offset:1024 sc1"], chk, acquire=False)
    c.stamp()
    A(f"v_cmp_ne_u32 vcc, {sXCC}, {ga[3]}")
    A(f"v_cmp_ne_u32 {p0}, {sXCC}, {gb[3]}")
    A(f"s_or_b64 vcc, vcc, {p0}")
    A(f"s_cmp_lg_u64 vcc, 0")
    A(f"s_cselect_b32 {t3}, 1, {OPT['force_slow']}")
    A(f"s_cmp_ge_u32 {sW4}, 2")
    A(f"s_cselect_b32 {t4}, 1.0, 0")
    fa, fb = V.alloc(4, 4), V.alloc(4, 4)
    for g_, f_ in ((ga, fa), (gb, fb)):
        unpack(f_[0], f_[1], g_[0])
        unpack(f_[2], f_[3], g_[1])
        for i in range(4):
            A(f"v_add_f32 {f_[i]}, {t4}, {f_[i]}")
        round_pair(f_[0], f_[1], tmp)
        round_pair(f_[2], f_[3], tmp)
    A(f"s_add_u32 {t1}, {t1}, {L_MOD1F}")
    A(f"v_add_u32 {ga[0]}, {t1}, {c.l16}")
    A(f"v_add_u32 {a2}, {t1}, {a2}")
    A(f"ds_write_b128 {ga[0]}, {fa}")
    A(f"ds_write_b128 {a2}, {fb} offset:1024")
    A(f"s_lshl_b32 {t0}, {sW4}, 2")
    A(f"v_mov_b32 {ga[1]}, {t0}")
    A(f"v_mov_b32 {ga[2]}, {t3}")
    A(f"ds_write_b32 {ga[1]}, {ga[2]} offset:{L_MODEF}")
    V.release(gb, fa, fb, a2)
    barrier()
    A(f"v_mov_b32 {ga[0]}, 0")
    A(f"ds_read_b128 {ga}, {ga[0]} offset:{L_MODEF}")
    ma, m3a = V.alloc(1), V.alloc(1)
    A(f"v_lshlrev_b32 {ma}, 5, {cl}")
    A(f"v_and_b32 {m3a}, 15, {cl}")
    A(f"v_lshlrev_b32 {m3a}, 5, {m3a}")
    sc, sh = V.alloc(24, 4), V.alloc(24, 4)
    for k in range(3):
        ad = ma if k < 2 else m3a
        for h in range(2):
            A(f"ds_read_b128 {sc[8 * k + 4 * h:8 * k + 4 * h + 4]}, {ad} offset:{L_MOD1F + 2560 + 1024 * k + 16 * h}")
            A(f"ds_read_b128 {sh[8 * k + 4 * h:8 * k + 4 * h + 4]}, {ad} offset:{L_MOD1F + 1024 * k + 16 * h}")
    A(f"v_or_b32 {ga[0]}, {ga[0]}, {ga[1]}")
    A(f"v_or3_b32 {ga[0]}, {ga[0]}, {ga[2]}, {ga[3]}")
    A(f"v_readfirstlane_b32 {sMODE}, {ga[0]}")
    ho, h3 = ma, m3a
    hd = V.alloc(12, 4)
    A(f"v_lshrrev_b32 {ga[1]}, 5, {tok}")
    A(f"v_mul_u32_u24 {ga[1]}, 0xa000, {ga[1]}")
    A(f"v_and_b32 {ga[2]}, 31, {tok}")
    A(f"v_lshl_add_u32 {ga[1]}, {ga[2]}, 4, {ga[1]}")
    A(f"v_lshl_add_u32 {ga[1]}, {cl}, 9, {ga[1]}")
    A(f"s_mul_i32 {t5}, {sG}, {ACT}")
    A(f"s_add_u32 {t5}, {t5}, {WS_H1}")
    A(f"s_add_u32 {t6}, {t5}, 16384")
    A(f"s_add_u32 {t7}, {t5}, 32768")
    for k in range(3):
        for i in range(8 * k, 8 * k + 8, 2):
            A(f"v_mul_f32 {xf[i]}, {xf[i]}, {sc[i]}")
            A(f"v_mul_f32 {xf[i + 1]}, {xf[i + 1]}, {sc[i + 1]}")
            round_pair(xf[i], xf[i + 1], tmp)
            A(f"v_add_f32 {xf[i]}, {xf[i]}, {sh[i]}")
            A(f"v_add_f32 {xf[i + 1]}, {xf[i + 1]}, {sh[i + 1]}")
            A(f"v_cvt_pk_bf16_f32 {hd[i // 2]}, {xf[i]}, {xf[i + 1]}")
        if k == 2:
            A(f"v_mov_b32 {ga[2]}, {OOB}")
            A(f"v_cndmask_b32_e64 {ga[1]}, {ga[2]}, {ga[1]}, {p1}")
        A(f"buffer_store_dwordx4 {hd[4 * k:4 * k + 4]}, {ga[1]}, {sWS}, {(t5, t6, t7)[k]} offen")
    V.release(xf, xr, sc, sh, ma, m3a, cl, tok, ga)
    signal(c, 0)
    V.release(hd)
    c.stamp()
    w0, w1, tq, tu = V.alloc(1), V.alloc(1), V.alloc(1), V.alloc(1)
    A(f"v_lshrrev_b32 {tq}, 5, {lane}")
    A(f"v_bfe_u32 {tu}, {lane}, 2, 2")
    A(f"v_lshl_add_u32 {tq}, {tq}, 3, {tu}")
    A(f"v_mul_u32_u24 {tq}, 0x90, {tq}")
    A(f"v_add_u32 {tq}, {L_WQ}, {tq}")
    A(f"v_and_b32 {tu}, 3, {lane}")
    A(f"v_bfe_u32 {w1}, {lane}, 4, 1")
    A(f"v_mul_u32_u24 {w0}, 48, {w1}")
    A(f"v_lshl_add_u32 {w0}, {tu}, 3, {w0}")
    A(f"v_add_u32 {w0}, {w0}, {tq}")
    A(f"v_lshl_add_u32 {tu}, {w1}, 2, {tu}")
    A(f"v_lshlrev_b32 {tu}, 2, {tu}")
    A(f"s_mov_b32 {t0}, 0x6cba9800")
    A(f"v_lshrrev_b32_e64 {tu}, {tu}, {t0}")
    A(f"v_and_b32 {tu}, 15, {tu}")
    A(f"v_lshl_add_u32 {w1}, {tu}, 3, {tq}")
    A(f"v_add_u32 {w1}, 32, {w1}")
    sA, sB = t6, t7
    A(f"s_mul_i32 {sA}, {sW4}, 40960")
    A(f"s_add_u32 {sA}, {sA}, {t5}")
    A(f"s_sub_u32 {t0}, 7, {sW4}")
    A(f"s_mul_i32 {sB}, {t0}, 40960")
    A(f"s_add_u32 {sB}, {sB}, {t5}")
    fl = V.alloc(4, 4)
    A(f"v_mov_b32 {tq}, {sW4}")
    A(f"v_mov_b32 {tu}, {t0}")
    A(f"v_and_b32 {fl[0]}, 8, {lane}")
    A(f"v_cmp_eq_u32 vcc, 0, {fl[0]}")
    A(f"v_cndmask_b32 {tq}, {tu}, {tq}, vcc")
    A(f"v_and_b32 {tu}, 7, {lane}")
    A(f"v_lshlrev_b32 {tu}, 4, {tu}")
    A(f"v_lshl_add_u32 {tq}, {tq}, 7, {tu}")
    flag_base(t1, 0)
    poll(c, [f"buffer_load_dwordx4 {fl}, {tq}, {sWS}, {t1} offen sc1"], check_flags([fl[0:2], fl[2:4]]))
    V.release(fl, tq, tu, tmp)
    c.stamp()
    D = 8
    ring = [[V.alloc(4, 4), V.alloc(4, 4)] for _ in range(D)]
    W = [[V.alloc(4, 4), V.alloc(4, 4)] for _ in range(2)]
    acc = [[V.alloc(16, 4), V.alloc(16, 4)] for _ in range(2)]

    def loadA(s):
        for a, sb in ((0, sA), (1, sB)):
            A(f"buffer_load_dwordx4 {ring[s % D][a]}, {c.l16}, {sWS}, {sb} offen offset:{(s % 4) * 1024} sc1")
        if s % 4 == 3:
            A(f"s_add_u32 {sA}, {sA}, 4096")
            A(f"s_add_u32 {sB}, {sB}, 4096")

    def readW(s, T):
        if s == 20:
            A(f"v_add_u32 {(w0, w1)[T]}, {20 * 2304}, {(w0, w1)[T]}")
        for u in range(2):
            A(f"ds_read_b64_tr_b16 {W[s & 1][T][2 * u:2 * u + 2]}, {(w0, w1)[T]} offset:{(s % 20) * 2304 + 576 * u}")

    for s in range(D):
        loadA(s)
    A("s_barrier")
    readW(0, 0)
    readW(0, 1)
    for s in range(40):
        nxt = s + 1 < 40
        if nxt and (s + 1) % 10 == 0:
            A("s_barrier")
        for T in range(2):
            for a in range(2):
                A(f"v_mfma_f32_32x32x16_bf16 {acc[a][T]}, {W[s & 1][T]}, {ring[s % D][a]}, {'0' if s == 0 else acc[a][T]}")
                if nxt and a == 0:
                    readW(s + 1, T)
        if s + D < 40:
            loadA(s + D)
    V.release(ring, W, w0, w1)
    c.stamp()
    ak, a3, ag, ag3, cq1, t = [V.alloc(1) for _ in range(6)]
    A(f"v_and_b32 {t}, 31, {lane}")
    A(f"v_mul_u32_u24 {t}, 48, {t}")
    A(f"v_lshrrev_b32 {ak}, 5, {lane}")
    A(f"v_lshl_add_u32 {ag}, {ak}, 4, {t}")
    A(f"v_add_u32 {ag3}, 32, {t}")
    A(f"v_add_u32 {a3}, {32 + 12288}, {t}")
    A(f"v_cndmask_b32_e64 {ag3}, {a3}, {ag3}, {sHI}")
    A(f"v_add_u32 {ak}, {L_K + 12288}, {ag}")
    A(f"v_add_u32 {a3}, {32 + L_V + 12288}, {t}")
    A(f"v_add_u32 {t}, {32 + L_K + 12288}, {t}")
    A(f"v_cndmask_b32_e64 {a3}, {a3}, {t}, {sHI}")
    qs = f32(20 ** -0.5 * LOG2E)
    A(f"s_mov_b32 {t4}, {hex(qs)}")
    A(f"v_mov_b32 {cq1}, {t4}")
    A(f"v_cndmask_b32_e64 {cq1}, {cq1}, 0, {sHI}")
    A(f"s_lshl_b32 {t0}, {sG}, 5")
    A(f"s_add_u32 {t0}, {t0}, {sJ}")
    A(f"s_mul_i32 {t0}, {t0}, 24576")
    A(f"s_add_u32 {t5}, {t0}, {WS_HALO}")
    Qs = []
    for a in range(2):
        T0, T1 = acc[a]
        kp, vp, tp = V.alloc(4, 4), V.alloc(4, 4), V.alloc(4, 4)
        if a == 0:
            A(f"s_mul_i32 {t1}, {sW4}, 1536")
        else:
            A(f"s_sub_u32 {t1}, 7, {sW4}")
            A(f"s_mul_i32 {t1}, {t1}, 1536")
        A(f"s_add_u32 {t2}, {t5}, {t1}")
        A(f"s_add_u32 {t3}, {t2}, 12288")
        for i in range(4):
            A(f"v_cvt_pk_bf16_f32 {kp[i]}, {T0[8 + 2 * i]}, {T0[9 + 2 * i]}")
        A(f"buffer_store_dwordx4 {kp}, {ag}, {sWS}, {t2} offen sc1")
        for i in range(4):
            A(f"v_cvt_pk_bf16_f32 {vp[i]}, {T1[4 + 2 * i]}, {T1[5 + 2 * i]}")
        A(f"buffer_store_dwordx4 {vp}, {ag}, {sWS}, {t3} offen sc1")
        for i in range(2):
            A(f"v_cvt_pk_bf16_f32 {tp[i]}, {T1[12 + 2 * i]}, {T1[13 + 2 * i]}")
        A(f"v_mov_b32 {tp[2]}, 0x3f80")
        A(f"v_mov_b32 {tp[3]}, 0")
        A(f"buffer_store_dwordx4 {tp}, {ag3}, {sWS}, {t2} offen sc1")
        A(f"v_add_u32 {t}, {t1}, {ak}")
        A(f"ds_write_b128 {t}, {kp}")
        A(f"ds_write_b128 {t}, {vp} offset:{L_V - L_K}")
        A(f"v_add_u32 {t}, {t1}, {a3}")
        A(f"ds_write_b128 {t}, {tp}")
        q0, q1 = V.alloc(4, 4), V.alloc(2)
        for i in range(8):
            A(f"v_mul_f32 {T0[i]}, {t4}, {T0[i]}")
        for i in range(4):
            A(f"v_mul_f32 {T1[i]}, {cq1}, {T1[i]}")
        for i in range(4):
            A(f"v_cvt_pk_bf16_f32 {q0[i]}, {T0[2 * i]}, {T0[2 * i + 1]}")
        for i in range(2):
            A(f"v_cvt_pk_bf16_f32 {q1[i]}, {T1[2 * i]}, {T1[2 * i + 1]}")
        Qs.append((q0, q1, kp, vp, tp))
    A(f"s_mul_i32 {t1}, {sW4}, 1536")
    A(f"s_add_u32 {t1}, {t1}, {L_QX}")
    A(f"v_add_u32 {t}, {t1}, {c.l16}")
    A(f"ds_write_b128 {t}, {Qs[1][0]}")
    A(f"v_lshlrev_b32 {t}, 3, {lane}")
    A(f"v_add_u32 {t}, {t1}, {t}")
    A(f"ds_write_b64 {t}, {Qs[1][1]} offset:1024")
    c.Q0, c.Q1 = Qs[0][0], Qs[0][1]
    V.release(acc, ak, a3, ag, ag3, cq1, t, Qs[1], Qs[0][2:])
    att_addr(c, sW4)
    A(f"s_mov_b32 {sHOOK}, {sW4}")
    barrier()
    c.stamp()

    def hook():
        Vh = c.hookV
        a, dd = Vh.alloc(1), Vh.alloc(4, 4)
        f, tm = Vh.alloc(4, 4), Vh.alloc(1)
        A(f"s_lshl_b32 {t0}, {sG}, 5")
        A(f"s_add_u32 {t0}, {t0}, {sJ}")
        A(f"s_lshl_b32 {t1}, {t0}, 7")
        A(f"s_lshl_b32 {t2}, {sW4}, 3")
        A(f"s_add_u32 {t1}, {t1}, {WS_HFLAG}")
        A(f"s_add_u32 {t2}, {t2}, {t1}")
        A(f"v_mov_b32 {a}, 0")
        A(f"v_mov_b32 {dd[0]}, {sT[0]}")
        A(f"v_mov_b32 {dd[1]}, {sT[1]}")
        A("s_mov_b64 exec, 1")
        A("s_waitcnt vmcnt(0)")
        A(f"buffer_store_dwordx2 {dd[0:2]}, {a}, {sWS}, {t2} offen sc1")
        A("s_mov_b64 exec, -1")
        A(f"s_mul_i32 {t2}, {sW4}, 160")
        A(f"s_mul_i32 {t3}, {sN}, 20")
        A(f"s_add_u32 {t2}, {t2}, {t3}")
        A(f"s_lshl_b32 {t2}, {t2}, 4")
        A(f"s_add_u32 {t2}, {t2}, {WS_MOD2}")
        A(f"v_min_u32 {a}, 19, {lane}")
        A(f"v_lshlrev_b32 {a}, 4, {a}")
        poll(c, [f"buffer_load_dwordx4 {dd}, {a}, {sWS}, {t2} offen sc1"], check_flags([dd[2:4]]), acquire=False)
        A(f"s_cmp_eq_u32 {sW4}, 2")
        A(f"s_cselect_b32 {t4}, 1.0, 0")
        unpack(f[0], f[1], dd[0])
        unpack(f[2], f[3], dd[1])
        for i in range(4):
            A(f"v_add_f32 {f[i]}, {t4}, {f[i]}")
        round_pair(f[0], f[1], tm)
        round_pair(f[2], f[3], tm)
        A(f"s_mul_i32 {t2}, {sW4}, 320")
        A(f"v_add_u32 {a}, {t2}, {a}")
        A(f"ds_write_b128 {a}, {f} offset:{L_MOD2F}")
        nog = lab("nohalo")
        A(f"s_mov_b32 {t3}, {OOB}")
        A(f"s_cmp_eq_u32 {sG}, 0")
        A.branch(f"s_cbranch_scc1 {nog}")
        A(f"s_sub_u32 {t1}, {t1}, 4096")
        A(f"v_and_b32 {a}, 1, {lane}")
        A(f"v_lshlrev_b32 {a}, 4, {a}")
        poll(c, [f"buffer_load_dwordx4 {dd}, {a}, {sWS}, {t1} offen sc1"], check_flags([dd[0:2], dd[2:4]]))
        A(f"s_sub_u32 {t3}, {t0}, 32")
        A(f"s_mul_i32 {t3}, {t3}, 24576")
        A(f"s_add_u32 {t3}, {t3}, {WS_HALO}")
        A.label(nog)
        A(f"s_mul_i32 {t2}, {sW4}, 3072")
        A(f"s_add_u32 {t3}, {t3}, {t2}")
        A(f"s_add_u32 {t4}, {t3}, 12288")
        for base, src in ((L_K, t3), (L_V, t4)):
            A(f"s_add_u32 m0, {t2}, {base}")
            for i in range(3):
                A(f"buffer_load_dwordx4 {c.l16}, {sWS}, {src} offen offset:{1024 * i} sc1 lds")
        A("s_waitcnt vmcnt(0) lgkmcnt(0)")
    c.hook = hook
    hv = Regs("v", 240, 256)
    c.hookV = hv
    attention(c, "c")
    assert V.high <= 240
    c.stamp()
    oa = [V.alloc(1) for _ in range(3)]
    t, u, hi = V.alloc(1), V.alloc(1), V.alloc(1)
    A(f"v_lshrrev_b32 {hi}, 5, {lane}")
    A(f"s_mul_i32 {t0}, {sJ}, 5")
    A(f"v_bfe_u32 {t}, {lane}, 4, 1")
    A(f"v_mul_u32_u24 {t}, 0x5000, {t}")
    A(f"v_and_b32 {u}, 15, {lane}")
    A(f"v_lshl_add_u32 {t}, {u}, 4, {t}")
    for k in range(3):
        A(f"s_add_u32 {t1}, {t0}, {2 * k}")
        A(f"v_add_u32 {u}, {t1}, {hi}")
        A(f"v_lshrrev_b32 {oa[k]}, 2, {u}")
        A(f"v_lshl_add_u32 {oa[k]}, {oa[k]}, 9, {t}")
        x_ = V.alloc(1)
        A(f"v_and_b32 {x_}, 1, {u}")
        A(f"v_lshl_add_u32 {oa[k]}, {x_}, 8, {oa[k]}")
        A(f"v_bfe_u32 {x_}, {u}, 1, 1")
        A(f"v_lshl_add_u32 {oa[k]}, {x_}, 3, {oa[k]}")
        V.release(x_)
    A(f"v_mov_b32 {u}, {OOB}")
    A(f"v_cndmask_b32_e64 {oa[2]}, {oa[2]}, {u}, {sHI}")
    A(f"s_mul_i32 {t5}, {sG}, {ACT}")
    A(f"s_add_u32 {t5}, {t5}, {WS_O}")
    A(f"s_mul_i32 {t1}, {sW4}, 40960")
    A(f"s_add_u32 {t1}, {t1}, {t5}")
    for k in range(3):
        A(f"buffer_store_dwordx2 {c.op[2 * k:2 * k + 2]}, {oa[k]}, {sWS}, {t1} offen")
    A(f"s_mul_i32 {t2}, {sW4}, 1536")
    A(f"s_add_u32 {t2}, {t2}, {L_QX}")
    A(f"v_add_u32 {t}, {t2}, {c.l16}")
    A(f"v_lshlrev_b32 {u}, 3, {lane}")
    A(f"v_add_u32 {u}, {t2}, {u}")
    A(f"s_sub_u32 {t1}, 7, {sW4}")
    A(f"s_mul_i32 {t1}, {t1}, 40960")
    A(f"s_add_u32 {t1}, {t1}, {t5}")
    o2 = V.alloc(6, 4)
    barrier()
    A(f"ds_read_b128 {o2[0:4]}, {t}")
    A(f"ds_read_b64 {o2[4:6]}, {u} offset:1024")
    for k in range(3):
        A(f"buffer_store_dwordx2 {o2[2 * k:2 * k + 2]}, {oa[k]}, {sWS}, {t1} offen")
    signal(c, 1)
    V.release(oa, o2, c.op, hi)
    c.stamp()
    xt = V.alloc(10, 2)
    c.rowoff = V.alloc(1)
    A(f"v_and_b32 {t}, 15, {lane}")
    A(f"s_lshl_b32 {t0}, {sI}, 6")
    A(f"s_lshl_b32 {t1}, {sW4}, 4")
    A(f"s_add_u32 {t0}, {t0}, {t1}")
    tokb = V.alloc(1)
    A(f"v_add_u32 {tokb}, {t0}, {t}")
    A(f"v_mul_u32_u24 {c.rowoff}, 0x500, {tokb}")
    A(f"v_lshrrev_b32 {u}, 4, {lane}")
    A(f"s_mul_i32 {t1}, {sN}, 160")
    A(f"v_lshl_add_u32 {t}, {u}, 3, {t1}")
    A(f"v_add_u32 {c.rowoff}, {c.rowoff}, {t}")
    A(f"s_mul_i32 {t1}, {sG}, {ACT}")
    for ct in range(5):
        A(f"buffer_load_dwordx2 {xt[2 * ct:2 * ct + 2]}, {c.rowoff}, {sX}, {t1} offen offset:{32 * ct}")
    wa = wtile_addr(c, L_WO, 10 * 5120)
    tile_streams(WS_O, ACT, 20480, 10240, t6, t7)
    fl = V.alloc(2)
    A(f"s_lshl_b32 {t0}, {sI}, 1")
    A(f"s_lshr_b32 {t1}, {sW4}, 1")
    A(f"s_add_u32 {t0}, {t0}, {t1}")
    A(f"s_sub_u32 {t1}, 7, {t0}")
    A(f"s_min_u32 {t0}, {t0}, {t1}")
    A(f"s_lshl_b32 {t0}, {t0}, 3")
    flag_base(t1, 1)
    A(f"s_add_u32 {t1}, {t1}, {t0}")
    A(f"v_and_b32 {t}, 31, {lane}")
    A(f"v_lshlrev_b32 {t}, 5, {t}")
    poll(c, [f"buffer_load_dwordx2 {fl}, {t}, {sWS}, {t1} offen sc1"], check_flags([fl]))
    V.release(fl)
    c.stamp()
    acc = tile_gemm(c, 10, t6, t7, 10, lambda ks: (wa, ks * 5120), set())
    V.release(wa)
    mv = V.alloc(20, 4)
    ma = V.alloc(1)
    A(f"v_lshlrev_b32 {ma}, 4, {u}")
    for ct in range(5):
        A(f"ds_read_b128 {mv[4 * ct:4 * ct + 4]}, {ma} offset:{L_MOD2F + 64 * ct}")
    a = tile_reduce(c, acc, L_RED)
    x1 = V.alloc(20)
    c.x1p = V.alloc(10)
    tmp = V.alloc(1)
    for i in range(0, 20, 2):
        round_pair(a[i], a[i + 1], tmp)
        A(f"v_mul_f32 {a[i]}, {a[i]}, {mv[i]}")
        A(f"v_mul_f32 {a[i + 1]}, {a[i + 1]}, {mv[i + 1]}")
        round_pair(a[i], a[i + 1], tmp)
        unpack(x1[i], x1[i + 1], xt[i // 2])
        A(f"v_add_f32 {x1[i]}, {x1[i]}, {a[i]}")
        A(f"v_add_f32 {x1[i + 1]}, {x1[i + 1]}, {a[i + 1]}")
        A(f"v_cvt_pk_bf16_f32 {c.x1p[i // 2]}, {x1[i]}, {x1[i + 1]}")
        unpack(x1[i], x1[i + 1], c.x1p[i // 2])
    V.release(xt)
    gr = V.alloc(4, 4)
    A(f"v_add_f32 {gr[0]}, {x1[0]}, {x1[1]}")
    for i in range(2, 20):
        A(f"v_add_f32 {gr[0]}, {gr[0]}, {x1[i]}")
    xor16_add(gr[0], tmp)
    xor32_op("v_add_f32", gr[0], tmp)
    A(f"v_mul_f32 {gr[0]}, {hex(f32(1 / 80))}, {gr[0]}")
    for i in range(20):
        A(f"v_sub_f32 {a[i % 4]}, {x1[i]}, {gr[0]}")
        if i == 0:
            A(f"v_mul_f32 {gr[1]}, {a[0]}, {a[0]}")
        else:
            A(f"v_fmac_f32 {gr[1]}, {a[i % 4]}, {a[i % 4]}")
    xor16_add(gr[1], tmp)
    xor32_op("v_add_f32", gr[1], tmp)
    A(f"v_mov_b32 {gr[2]}, {sT[0]}")
    A(f"v_mov_b32 {gr[3]}, {sT[1]}")
    A(f"v_lshlrev_b32 {t}, 7, {tokb}")
    A(f"s_lshl_b32 {t0}, {sG}, 15")
    A(f"s_add_u32 {t0}, {t0}, {WS_STATS}")
    A(f"s_lshl_b32 {t1}, {sN}, 4")
    A(f"s_add_u32 {t1}, {t1}, {t0}")
    slow, done = lab("stslow"), lab("stdone")
    A("s_mov_b64 exec, 0xffff")
    A(f"s_cmp_lg_u32 {sMODE}, 0")
    A.branch(f"s_cbranch_scc1 {slow}", noflush=True)
    A(f"buffer_store_dwordx4 {gr}, {t}, {sWS}, {t1} offen")
    A.label(done)
    A("s_mov_b64 exec, -1")

    def cold_st(gr=gr, t=t, slow=slow, done=done):
        A.label(slow)
        A(f"buffer_store_dwordx4 {gr}, {t}, {sWS}, {t1} offen sc1")
        A.branch(f"s_branch {done}")
    c.cold.append(cold_st)
    c.gbp = V.alloc(10)
    for ct in range(5):
        A(f"ds_read_b128 {mv[4 * ct:4 * ct + 4]}, {ma} offset:{L_MOD2F + 960 + 64 * ct}")
    for i in range(10):
        A(f"v_cvt_pk_bf16_f32 {c.gbp[i]}, {mv[2 * i]}, {mv[2 * i + 1]}")
    sh = a
    for ct in range(5):
        A(f"ds_read_b128 {mv[4 * ct:4 * ct + 4]}, {ma} offset:{L_MOD2F + 640 + 64 * ct}")
        A(f"ds_read_b128 {sh[4 * ct:4 * ct + 4]}, {ma} offset:{L_MOD2F + 320 + 64 * ct}")
    g0, g1 = V.alloc(4, 4), V.alloc(4, 4)
    sa_ = V.alloc(1)
    A(f"v_lshl_add_u32 {sa_}, {u}, 5, {t}")
    poll(c, [f"buffer_load_dwordx4 {g0}, {sa_}, {sWS}, {t0} offen sc1",
             f"buffer_load_dwordx4 {g1}, {sa_}, {sWS}, {t0} offen offset:16 sc1"], check_flags([g0[2:4], g1[2:4]]), acquire=False)
    c.stamp()
    mean, var = gr[0], gr[1]
    A(f"v_add_f32 {mean}, {g0[0]}, {g1[0]}")
    xor16_add(mean, tmp)
    xor32_op("v_add_f32", mean, tmp)
    A(f"v_mul_f32 {mean}, 0x3e000000, {mean}")
    A(f"v_sub_f32 {g0[0]}, {g0[0]}, {mean}")
    A(f"v_sub_f32 {g1[0]}, {g1[0]}, {mean}")
    A(f"v_mul_f32 {g0[0]}, {g0[0]}, {g0[0]}")
    A(f"v_fmac_f32 {g0[0]}, {g1[0]}, {g1[0]}")
    A(f"v_add_f32 {var}, {g0[1]}, {g1[1]}")
    A(f"v_fmac_f32 {var}, {hex(f32(80.0))}, {g0[0]}")
    xor16_add(var, tmp)
    xor32_op("v_add_f32", var, tmp)
    A(f"v_mul_f32 {var}, {hex(f32(1 / 640))}, {var}")
    ln_scalars(mean, var, tmp)
    A(f"v_lshrrev_b32 {t}, 5, {tokb}")
    A(f"v_mul_u32_u24 {t}, 0xa000, {t}")
    A(f"v_and_b32 {sa_}, 31, {tokb}")
    A(f"v_lshl_add_u32 {t}, {sa_}, 4, {t}")
    A(f"v_lshrrev_b32 {sa_}, 1, {u}")
    A(f"v_lshl_add_u32 {t}, {sa_}, 9, {t}")
    A(f"v_and_b32 {sa_}, 1, {u}")
    A(f"v_lshl_add_u32 {t}, {sa_}, 3, {t}")
    A(f"s_mul_i32 {t5}, {sG}, {ACT}")
    A(f"s_add_u32 {t5}, {t5}, {WS_H2}")
    A(f"s_mul_i32 {t1}, {sN}, 5120")
    A(f"s_add_u32 {t1}, {t1}, {t5}")
    A(f"s_add_u32 {t2}, {t1}, 4096")
    hp = V.alloc(10, 2)
    for i in range(0, 20, 2):
        A(f"v_sub_f32 {x1[i]}, {x1[i]}, {mean}")
        A(f"v_sub_f32 {x1[i + 1]}, {x1[i + 1]}, {mean}")
        round_pair(x1[i], x1[i + 1], tmp)
        A(f"v_mul_f32 {x1[i]}, {x1[i]}, {var}")
        A(f"v_mul_f32 {x1[i + 1]}, {x1[i + 1]}, {var}")
        round_pair(x1[i], x1[i + 1], tmp)
        A(f"v_mul_f32 {x1[i]}, {x1[i]}, {mv[i]}")
        A(f"v_mul_f32 {x1[i + 1]}, {x1[i + 1]}, {mv[i + 1]}")
        round_pair(x1[i], x1[i + 1], tmp)
        A(f"v_add_f32 {x1[i]}, {x1[i]}, {sh[i]}")
        A(f"v_add_f32 {x1[i + 1]}, {x1[i + 1]}, {sh[i + 1]}")
        A(f"v_cvt_pk_bf16_f32 {hp[i // 2]}, {x1[i]}, {x1[i + 1]}")
        if i % 4 == 2:
            ct = i // 4
            A(f"buffer_store_dwordx2 {hp[2 * ct:2 * ct + 2]}, {t}, {sWS}, {t1 if ct < 4 else t2} offen offset:{1024 * (ct % 4)}")
    signal(c, 2)
    V.release(x1, a, mv, ma, gr, g0, g1, sa_, hp, tokb, tmp)
    g0a, g1a = V.alloc(1), V.alloc(1)
    A(f"v_lshrrev_b32 {t}, 5, {lane}")
    A(f"v_bfe_u32 {u}, {lane}, 2, 2")
    A(f"v_lshl_add_u32 {t}, {t}, 3, {u}")
    A(f"v_mul_u32_u24 {t}, 0xc0, {t}")
    A(f"v_bfe_u32 {u}, {lane}, 4, 1")
    A(f"v_mul_u32_u24 {u}, 0x60, {u}")
    A(f"v_add_u32 {t}, {t}, {u}")
    A(f"v_and_b32 {u}, 3, {lane}")
    A(f"v_lshl_add_u32 {g0a}, {u}, 3, {t}")
    A(f"v_add_u32 {g0a}, {L_GU}, {g0a}")
    A(f"v_add_u32 {g1a}, {20 * 3072}, {g0a}")
    ha = V.alloc(1)
    A(f"v_bfe_u32 {t}, {lane}, 4, 1")
    A(f"v_mul_u32_u24 {t}, 0xc000, {t}")
    A(f"v_and_b32 {u}, 15, {lane}")
    A(f"v_lshl_add_u32 {t}, {u}, 4, {t}")
    A(f"v_lshrrev_b32 {u}, 5, {lane}")
    A(f"v_lshl_add_u32 {ha}, {u}, 8, {t}")
    sAc, sH = t6, t7
    A(f"s_mul_i32 {sAc}, {sW4}, 81920")
    A(f"s_add_u32 {sAc}, {sAc}, {t5}")
    A(f"s_mul_i32 {sH}, {sG}, {HBG}")
    A(f"s_mul_i32 {t0}, {sW4}, {4 * 49152}")
    A(f"s_add_u32 {sH}, {sH}, {t0}")
    A(f"s_mul_i32 {t0}, {sJ}, 1536")
    A(f"s_add_u32 {sH}, {sH}, {t0}")
    A(f"s_add_u32 {sH}, {sH}, {WS_HB}")
    fl = V.alloc(4, 4)
    flag_base(t1, 2)
    A(f"s_lshl_b32 {t0}, {sW4}, 8")
    A(f"s_add_u32 {t1}, {t1}, {t0}")
    A(f"v_and_b32 {t}, 15, {lane}")
    A(f"v_lshlrev_b32 {t}, 4, {t}")
    poll(c, [f"buffer_load_dwordx4 {fl}, {t}, {sWS}, {t1} offen sc1"], check_flags([fl[0:2], fl[2:4]]))
    V.release(fl, t, u)
    c.stamp()
    D = 12
    ring = [V.alloc(4, 4) for _ in range(D)]
    W = [V.alloc(12, 4), V.alloc(12, 4)]
    acc = [[V.alloc(16, 4) for _ in range(3)] for _ in range(2)]
    et = V.alloc(8)
    hq = [V.alloc(4, 4), V.alloc(4, 4)]

    def loadA(n):
        A(f"buffer_load_dwordx4 {ring[n % D]}, {c.l16}, {sWS}, {sAc} offen offset:{(n % 4) * 1024} sc1")
        if n % 4 == 3:
            A(f"s_add_u32 {sAc}, {sAc}, 4096")

    def readW(n, ct):
        s = n % 40
        for u_ in range(2):
            A(f"ds_read_b64_tr_b16 {W[n & 1][4 * ct + 2 * u_:4 * ct + 2 * u_ + 2]}, {g0a if s < 20 else g1a} "
              f"offset:{(s % 20) * 3072 + 768 * u_ + 32 * ct}")

    def glu(p):
        out = []
        for ct in range(3):
            g_, h_ = acc[p][ct], hq[ct & 1]
            for st in range(6):
                for r in range(8):
                    e = et[r]
                    if st == 0:
                        out.append(f"v_mul_f32 {e}, {hex(f32(-LOG2E))}, {g_[r]}")
                    elif st == 1:
                        out.append(f"v_exp_f32 {e}, {e}")
                    elif st == 2:
                        out.append(f"v_add_f32 {e}, 1.0, {e}")
                    elif st == 3:
                        out.append(f"v_rcp_f32 {e}, {e}")
                    elif st == 4:
                        out.append(f"v_mul_f32 {e}, {e}, {g_[8 + r]}")
                    elif r % 2 == 0:
                        out.append(f"v_cvt_pk_bf16_f32 {h_[r // 2]}, {et[r]}, {et[r + 1]}")
            out.append(f"buffer_store_dwordx4 {h_}, {ha}, {sWS}, {sH} offen offset:{512 * ct}")
        if p == 0:
            out.append(f"s_add_u32 {sH}, {sH}, {2 * 49152}")
        return out

    for n in range(D):
        loadA(n)
    A("s_barrier")
    for ct in range(3):
        readW(0, ct)
    pend = []
    for n in range(80):
        p, s = divmod(n, 40)
        nxt = n + 1 < 80
        if n + 1 == 20:
            A("s_barrier")
        if n == 41:
            pend = glu(0)
        for ct in range(3):
            A(f"v_mfma_f32_32x32x16_bf16 {acc[p][ct]}, {W[n & 1][4 * ct:4 * ct + 4]}, {ring[n % D]}, {'0' if s == 0 else acc[p][ct]}")
            if nxt:
                readW(n + 1, ct)
            for _ in range(2 if ct < 2 else 1):
                if pend:
                    A(pend.pop(0))
        if n + D < 80:
            loadA(n + D)
    assert not pend
    barrier()
    c.stamp()
    for x in glu(1):
        A(x)
    signal(c, 3)
    V.release(ring, W, acc, et, hq, g0a, g1a, ha)
    wa = wtile_addr(c, L_WD, 16 * 5120)
    wb = V.alloc(1)
    A(f"v_add_u32 {wb}, {8 * 5120}, {wa}")
    tile_streams(WS_HB, HBG, 49152, 24576, t6, t7)
    fl, t = V.alloc(2), V.alloc(1)
    flag_base(t1, 3)
    A(f"s_and_b32 {t0}, {sW4}, 1")
    A(f"s_lshl_b32 {t0}, {t0}, 9")
    A(f"s_add_u32 {t1}, {t1}, {t0}")
    A(f"s_lshl_b32 {t0}, {sI}, 3")
    A(f"s_add_u32 {t1}, {t1}, {t0}")
    A(f"v_and_b32 {t}, 15, {lane}")
    A(f"v_lshlrev_b32 {t}, 5, {t}")
    poll(c, [f"buffer_load_dwordx2 {fl}, {t}, {sWS}, {t1} offen sc1"], check_flags([fl]))
    V.release(fl, t)
    c.stamp()
    acc = tile_gemm(c, 24, t6, t7, 10, lambda ks: (wa, (ks % 16) * 5120) if (ks % 16) < 8 else (wb, (ks % 16 - 8) * 5120), {0, 4, 8, 12, 16})
    V.release(wa, wb)
    a = tile_reduce(c, acc, L_REDD)
    f, tmp = V.alloc(2), V.alloc(1)
    od = V.alloc(10, 2)
    A(f"s_mul_i32 {t1}, {sG}, {ACT}")
    for i in range(0, 20, 2):
        round_pair(a[i], a[i + 1], tmp)
        unpack(f[0], f[1], c.gbp[i // 2])
        A(f"v_mul_f32 {a[i]}, {a[i]}, {f[0]}")
        A(f"v_mul_f32 {a[i + 1]}, {a[i + 1]}, {f[1]}")
        round_pair(a[i], a[i + 1], tmp)
        unpack(f[0], f[1], c.x1p[i // 2])
        A(f"v_add_f32 {a[i]}, {a[i]}, {f[0]}")
        A(f"v_add_f32 {a[i + 1]}, {a[i + 1]}, {f[1]}")
        A(f"v_cvt_pk_bf16_f32 {od[i // 2]}, {a[i]}, {a[i + 1]}")
        if i % 4 == 2:
            ct = i // 4
            A(f"buffer_store_dwordx2 {od[2 * ct:2 * ct + 2]}, {c.rowoff}, {sOUT}, {t1} offen offset:{32 * ct}{' sc1' if OPT['out_sc1'] else ''}")
    if OPT["prof"]:
        A("s_waitcnt vmcnt(0)")
        A("s_memrealtime %s" % S(PROF0, 2)) if False else None
        A(f"s_memrealtime {p0}")
        A("s_waitcnt lgkmcnt(0)")
        A(f"s_mov_b32 {S(PROF0 + 1)}, {p0[0]}")
    prof_dump(c, 0)
    if OPT["prof"]:
        skip = lab("noprof")
        A(f"s_cmp_lg_u32 {sW4}, 0")
        A.branch(f"s_cbranch_scc1 {skip}")
        A(f"v_mov_b32 {f[0]}, 0")
        A(f"v_mov_b32 {f[1]}, {S(PROF0 + 1)}")
        A(f"buffer_store_dword {f[1]}, {f[0]}, {sWS}, {t0} offen offset:60")
        A.label(skip)
    A("s_endpgm")
    for f_ in c.cold:
        f_()
    return max(V.high, hv.high)


def helper_role(c0):
    c = Ctx(c0.V.clone())
    c.__dict__.update({k: v for k, v in c0.__dict__.items() if k not in ("V", "cold")})
    V = c.V
    lane = c.lane
    A.label("L_helper")
    A.restore("split")
    t, u = V.alloc(1), V.alloc(1)
    A(f"s_getpc_b64 {p0}")
    A.label("L_pc")
    A(f"s_sub_u32 {p0[0]}, {p0[0]}, L_pc-{NAME}_kernel")
    A(f"s_subb_u32 {p0[1]}, {p0[1]}, 0")
    A(f"s_lshl_b32 {t0}, {sJ}, 2")
    A(f"s_add_u32 {t0}, {t0}, {sW4}")
    A(f"s_lshl_b32 {t0}, {t0}, 9")
    A(f"v_and_b32 {t}, 7, {lane}")
    A(f"v_lshl_add_u32 {t}, {t}, 6, {t0}")
    A(f"v_min_u32 {t}, L_end-{NAME}_kernel, {t}")
    A(f"global_load_dword {u}, {t}, {p0}")
    wq, x_ = V.alloc(1), V.alloc(1)
    A(f"v_mul_u32_u24 {t}, 0x1c72, {lane}")
    A(f"v_lshrrev_b32 {t}, 16, {t}")
    A(f"v_mul_u32_u24 {wq}, 9, {t}")
    A(f"v_sub_u32 {wq}, {lane}, {wq}")
    A(f"v_mul_u32_u24 {x_}, 0x5556, {wq}")
    A(f"v_lshrrev_b32 {x_}, 16, {x_}")
    A(f"v_mul_u32_u24 {x_}, 0x4d0, {x_}")
    A(f"v_lshl_add_u32 {wq}, {wq}, 4, {x_}")
    A(f"v_mul_u32_u24 {t}, 0xf00, {t}")
    A(f"s_mul_i32 {t0}, {sJ}, 40")
    A(f"v_add3_u32 {wq}, {wq}, {t}, {t0}")
    A(f"s_mul_i32 {t1}, {sW4}, {7 * 3840}")
    A(f"s_mul_i32 {t2}, {sW4}, 1008")
    A("s_mov_b32 exec_hi, 0x7fffffff")
    wtags = []
    for q in range(23):
        A(f"s_add_u32 m0, {t2}, {L_WQ + 4032 * q}")
        wtags.append(A.tagged(f"buffer_load_dwordx4 {wq}, {sWQ}, {t1} offen lds"))
        A(f"s_add_u32 {t1}, {t1}, {28 * 3840}")
    A("s_mov_b32 exec_hi, -1")
    V.release(wq, x_)
    c.l16 = V.alloc(1)
    A(f"v_lshlrev_b32 {c.l16}, 4, {lane}")
    gemv1(c)
    c.stamp()
    tag_setup()
    barrier()
    wm = V.alloc(20, 4)
    sl, shh = V.alloc(5), V.alloc(5)
    A(f"v_lshrrev_b32 {t}, 1, {lane}")
    A(f"s_lshl_b32 {t0}, {sW4}, 5")
    A(f"v_add_u32 {t}, {t0}, {t}")
    sa_, wo = V.alloc(1), V.alloc(1)
    A(f"v_lshlrev_b32 {sa_}, 1, {t}")
    A(f"v_mul_u32_u24 {wo}, 0x1e00, {t}")
    A(f"v_and_b32 {t}, 1, {lane}")
    A(f"v_lshl_add_u32 {wo}, {t}, 4, {wo}")
    A(f"s_mul_i32 {t3}, {sG}, 20")
    A(f"s_add_u32 {t3}, {t3}, {sJ}")
    A(f"s_lshl_b32 {t0}, {t3}, 5")
    A(f"s_add_u32 {t0}, {t0}, 2560")
    A(f"s_cmp_lt_u32 {sJ}, 20")
    A(f"s_cselect_b32 {t0}, {t0}, {OOB}")
    for p in range(5):
        A(f"buffer_load_dwordx4 {wm[4 * p:4 * p + 4]}, {wo}, {sWM}, {t0} offen")
        A(f"s_add_u32 {t0}, {t0}, {128 * 7680}")
        A(f"ds_read_u16 {sl[p]}, {sa_} offset:{L_SILU + 256 * p}")
    for p in range(5):
        A(f"v_lshlrev_b32 {shh[p]}, 16, {sl[p]}")
    V.release(sa_, wo)
    att_masks(c)
    wd_pattern(c)
    A(f"s_sub_u32 {sHOOK}, 7, {sW4}")
    att_addr(c, sHOOK)
    barrier()
    for k, q in enumerate((5, 11, 17, 22)):
        A.wait_vm(wtags[q])
        A("s_barrier")
        if k == 0:
            c.stamp()
    c.stamp()
    acc = V.alloc(8)
    for p in range(5):
        for i in range(4):
            for h, m in ((0, sl), (1, shh)):
                A(f"v_dot2_f32_bf16 {acc[2 * i + h]}, {wm[4 * p + i]}, {m[p]}, {'0' if p == 0 else acc[2 * i + h]}")
    for i in range(4):
        A(f"v_permlane32_swap_b32 {acc[i]}, {acc[i + 4]}")
    for i in range(4):
        A(f"v_add_f32 {acc[i]}, {acc[i]}, {acc[i + 4]}")
    for i in range(2):
        A(f"v_permlane16_swap_b32 {acc[i]}, {acc[i + 2]}")
    r = V.alloc(2)
    for i in range(2):
        A(f"v_add_f32 {r[i]}, {acc[i]}, {acc[i + 2]}")
    for m in ("row_ror:8", "row_ror:4", "row_ror:2"):
        for i in range(2):
            A(f"v_add_f32_dpp {r[i]}, {r[i]}, {r[i]} {m} row_mask:0xf bank_mask:0xf")
    A(f"v_and_b32 {t}, 1, {lane}")
    A(f"v_lshlrev_b32 {t}, 5, {t}")
    A(f"v_lshrrev_b32 {acc[0]}, 4, {lane}")
    A(f"v_lshl_add_u32 {t}, {acc[0]}, 3, {t}")
    A(f"s_lshl_b32 {t0}, {sW4}, 6")
    A(f"v_add_u32 {t}, {t0}, {t}")
    A(f"ds_write_b64 {t}, {r} offset:{L_PART2}")
    V.release(acc, r, wm, sl, shh)
    gs, gl = V.alloc(3), V.alloc(3)
    A(f"s_mul_i32 {t0}, {sJ}, 96")
    A(f"s_lshr_b32 {t1}, {sW4}, 1")
    A(f"s_mul_i32 {t2}, {t1}, {32 * 3072}")
    A(f"s_add_u32 {t0}, {t0}, {t2}")
    A(f"s_mul_i32 {t1}, {t1}, {32 * 192}")
    A(f"s_and_b32 {t2}, {sW4}, 1")
    A(f"s_mul_i32 {t2}, {t2}, 96")
    A(f"s_add_u32 {t1}, {t1}, {t2}")
    A(f"s_add_u32 {t1}, {t1}, {L_GU}")
    for i in range(3):
        A(f"v_add_u32 {t}, {64 * i}, {lane}")
        A(f"v_mul_u32_u24 {u}, 0x2aab, {t}")
        A(f"v_lshrrev_b32 {u}, 16, {u}")
        A(f"v_lshlrev_b32 {t}, 4, {t}")
        A(f"v_mul_u32_u24 {gs[i]}, 0xba0, {u}")
        A(f"v_add3_u32 {gs[i]}, {gs[i]}, {t}, {t0}")
        A(f"v_mul_u32_u24 {gl[i]}, 0x60, {u}")
        A(f"v_add3_u32 {gl[i]}, {gl[i]}, {t}, {t1}")
    A(f"s_bitcmp1_b32 {sW4}, 0")
    A(f"s_cselect_b32 {sWG[0]}, {sWU[0]}, {sWG[0]}")
    A(f"s_cselect_b32 {sWG[1]}, {sWU[1]}, {sWG[1]}")
    barrier()
    c.stamp()
    c.Q0, c.Q1 = V.alloc(4, 4), V.alloc(2)
    qa, qb = V.alloc(1), V.alloc(1)
    A(f"s_mul_i32 {t1}, {sW4}, 1536")
    A(f"s_add_u32 {t1}, {t1}, {L_QX}")
    A(f"v_add_u32 {qa}, {t1}, {c.l16}")
    A(f"v_lshlrev_b32 {qb}, 3, {lane}")
    A(f"v_add_u32 {qb}, {t1}, {qb}")
    A(f"ds_read_b128 {c.Q0}, {qa}")
    A(f"ds_read_b64 {c.Q1}, {qb} offset:1024")
    skip = lab("nopub2")
    A(f"s_cmp_lg_u32 {sW4}, 0")
    A.branch(f"s_cbranch_scc1 {skip}")
    A(f"s_cmp_ge_u32 {sJ}, 20")
    A.branch(f"s_cbranch_scc1 {skip}")
    pr, gr = V.alloc(16, 4), V.alloc(4, 4)
    A("s_mov_b64 exec, 15")
    for p in range(4):
        A(f"ds_read_b128 {pr[4 * p:4 * p + 4]}, {c.l16} offset:{L_PART2 + 64 * p}")
    for p in range(1, 4):
        for i in range(4):
            A(f"v_add_f32 {pr[i]}, {pr[i]}, {pr[4 * p + i]}")
    A(f"v_cvt_pk_bf16_f32 {gr[0]}, {pr[0]}, {pr[1]}")
    A(f"v_cvt_pk_bf16_f32 {gr[1]}, {pr[2]}, {pr[3]}")
    A(f"v_mov_b32 {gr[2]}, {sT[0]}")
    A(f"v_mov_b32 {gr[3]}, {sT[1]}")
    A(f"s_lshl_b32 {t0}, {t3}, 6")
    A(f"s_add_u32 {t0}, {t0}, {WS_MOD2}")
    A(f"buffer_store_dwordx4 {gr}, {c.l16}, {sWS}, {t0} offen sc1")
    A("s_mov_b64 exec, -1")
    A("s_waitcnt lgkmcnt(0)")
    A.label(skip)
    V.release(pr, gr)
    A(f"s_mul_i32 {t0}, {sW4}, 40960")
    A(f"s_mul_i32 {t1}, {sW4}, 5120")
    A(f"s_add_u32 {t1}, {t1}, {L_WO}")
    for q in range(5):
        wo_tag = dma_slab(c, sWO, t0, t1)
        if q < 4:
            A(f"s_add_u32 {t0}, {t0}, {4 * 40960}")
            A(f"s_add_u32 {t1}, {t1}, {4 * 5120}")
    gu = V.alloc(120, 4)
    A(f"s_mov_b32 {t0}, 0")
    for q in range(10):
        for i in range(3):
            A(f"buffer_load_dwordx4 {gu[12 * q + 4 * i:12 * q + 4 * i + 4]}, {gs[i]}, {sWG}, {t0} offen")
        if q < 9:
            A(f"s_add_u32 {t0}, {t0}, {64 * 3072}")
    V.release(gs)
    c.hook = lambda: None
    attention(c, "h")
    A(f"ds_write_b128 {qa}, {c.op[0:4]}")
    A(f"ds_write_b64 {qb}, {c.op[4:6]} offset:1024")
    V.release(c.op, qa, qb)
    c.stamp()
    A.wait_vm(wo_tag)
    barrier()
    c.stamp()
    A("s_barrier")
    c.stamp()
    for q in range(10):
        if q == 5:
            barrier()
            c.stamp()
            for i in range(3):
                A(f"v_add_u32 {gl[i]}, {5 * 64 * 192}, {gl[i]}")
        for i in range(3):
            A(f"ds_write_b128 {gl[i]}, {gu[12 * q + 4 * i:12 * q + 4 * i + 4]} offset:{(q % 5) * 64 * 192}")
    V.release(gu, gl)
    barrier()
    c.stamp()
    if OPT["clean"]:
        skip = lab("noclean")
        A(f"s_lshl_b32 {t0}, {sJ}, 2")
        A(f"s_add_u32 {t0}, {t0}, {sW4}")
        A(f"s_cmp_lg_u32 {t0}, 3")
        A.branch(f"s_cbranch_scc1 {skip}")
        A("buffer_wbl2 sc1")
        A("s_waitcnt vmcnt(0)")
        A.label(skip)
    wd = V.alloc(80, 4)
    A(f"s_and_b32 {t4}, {sW4}, 1")
    A(f"s_lshr_b32 {t5}, {sW4}, 1")
    A(f"s_mul_i32 {t6}, {t4}, 24")
    A(f"s_add_u32 {t6}, {t6}, {t5}")
    A(f"s_mul_i32 {t6}, {t6}, 40960")
    A(f"s_lshl_b32 {t7}, {t4}, 4")
    A(f"s_add_u32 {t7}, {t7}, {t5}")
    A(f"s_mul_i32 {t7}, {t7}, 5120")
    A(f"s_add_u32 {t0}, {t6}, {16 * 40960}")
    for q in range(4):
        for i in range(5):
            A(f"buffer_load_dwordx4 {wd[20 * q + 4 * i:20 * q + 4 * i + 4]}, {c.pat[i]}, {sWD}, {t0} offen")
            A("s_waitcnt vmcnt(1)")
        if q < 3:
            A(f"s_add_u32 {t0}, {t0}, {2 * 40960}")
    wl = V.alloc(1)
    A(f"v_add_u32 {wl}, {t7}, {c.l16}")
    c.stamp()
    A("s_barrier")
    c.stamp()
    dt = []
    for q in range(8):
        dt.append(dma_slab(c, sWD, t6, t7))
        if q < 7:
            A(f"s_add_u32 {t6}, {t6}, {2 * 40960}")
            A(f"s_add_u32 {t7}, {t7}, {2 * 5120}")
    for st in range(4):
        A.wait_vm(dt[2 * st + 1])
        barrier()
        if st in (1, 2):
            for q in (2 * st - 2, 2 * st - 1):
                for i in range(5):
                    A(f"ds_write_b128 {wl}, {wd[20 * q + 4 * i:20 * q + 4 * i + 4]} offset:{L_WD + 2 * q * 5120 + 1024 * i}")
        if st == 0:
            c.stamp()
    if OPT["clean"]:
        skip = lab("noclean")
        A(f"s_lshl_b32 {t0}, {sJ}, 2")
        A(f"s_add_u32 {t0}, {t0}, {sW4}")
        A(f"s_cmp_lg_u32 {t0}, 3")
        A.branch(f"s_cbranch_scc1 {skip}")
        A("buffer_wbl2 sc1")
        A.label(skip)
    barrier()
    A("s_barrier")
    c.stamp()
    skip = lab("noepoch")
    A(f"s_lshl_b32 {t0}, s2, 2")
    A(f"s_add_u32 {t0}, {t0}, {sW4}")
    A(f"s_cmp_lg_u32 {t0}, 0")
    A.branch(f"s_cbranch_scc1 {skip}")
    e = V.alloc(4)
    A(f"v_mul_u32_u24 {t}, 0xa0, {lane}")
    A(f"s_mov_b32 {t1}, {WS_MOD1 + 8}")
    A(f"s_mov_b32 {t2}, {WS_MOD1 + 8 + 10240}")
    A(f"s_mov_b32 {t3}, {WS_MOD1 + 8 + 20480}")
    A(f"s_mov_b32 {t4}, {WS_MOD1 + 8 + 30720}")

    def chk():
        A(f"v_cmp_ne_u32 vcc, {sT[0]}, {e[0]}")
        for i in range(1, 4):
            A(f"v_cmp_ne_u32 {p0}, {sT[0]}, {e[i]}")
            A(f"s_or_b64 vcc, vcc, {p0}")
    poll(c, [f"buffer_load_dword {e[i]}, {t}, {sWS}, {(t1, t2, t3, t4)[i]} offen sc1" for i in range(4)], chk, acquire=False)
    A(f"v_mov_b32 {t}, 0")
    A(f"v_mov_b32 {u}, {sT[0]}")
    A("s_mov_b64 exec, 1")
    A(f"buffer_store_dword {u}, {t}, {sWS}, 0 offen offset:{WS_E} sc1")
    A("s_mov_b64 exec, -1")
    A.label(skip)
    prof_dump(c, 1)
    A("s_endpgm")
    for f_ in c.cold:
        f_()
    return V.high


def main():
    c = prologue()
    h1 = compute_role(c)
    h2 = helper_role(c)
    A.label("L_end")
    A("s_endpgm")
    body = finish(A)
    ref = open(os.path.join(os.path.dirname(os.path.abspath(__file__)), "..", "cdna_kernels", NAME + ".s.ref")).read().split("\n")
    head = [l for l in ref if l.startswith(";") and "@launch" not in l and "Override launch" not in l and "grid=ceil" not in l]
    txt = "\n".join(head) + f"\n; @launch grid=(256,1,1) block=(512,1,1) lds={LDS_BYTES}\n"
    txt += f'.amdgcn_target "amdgcn-amd-amdhsa--gfx950"\n.text\n.globl {NAME}_kernel\n.p2align 8\n.type {NAME}_kernel,@function\n{NAME}_kernel:\n'
    txt += body + "\n"
    txt += f'''.section .rodata,"a"
.p2align 6
.amdhsa_kernel {NAME}_kernel
  .amdhsa_next_free_vgpr 256
  .amdhsa_next_free_sgpr 102
  .amdhsa_accum_offset 256
  .amdhsa_group_segment_fixed_size 0
  .amdhsa_kernarg_size 96
  .amdhsa_user_sgpr_count 2
  .amdhsa_user_sgpr_kernarg_segment_ptr 1
  .amdhsa_system_sgpr_workgroup_id_x 1
.end_amdhsa_kernel
'''
    open(sys.argv[1], "w").write(txt)
    print("vgpr high water: compute %d helper %d; %d lines" % (h1, h2, txt.count("\n")))


main()
```

```python
import re

TRANS = ("v_exp_f32", "v_log_f32", "v_rcp_f32", "v_rsq_f32", "v_sqrt_f32", "v_sin_f32", "v_cos_f32")
RMW = ("v_fmac_f32", "v_dot2c_f32_bf16", "v_pk_fmac_f16")
SPECIAL = {"vcc": ("s", 106, 2), "vcc_lo": ("s", 106, 1), "vcc_hi": ("s", 107, 1), "m0": ("s", 124, 1),
           "exec": ("s", 126, 2), "exec_lo": ("s", 126, 1), "exec_hi": ("s", 127, 1)}
_REG = re.compile(r"^-?\|?(?:abs\()?([vsa])(?:(\d+)|\[(\d+):(\d+)\])\)?\|?$")


def regs_of(tok):
    tok = tok.strip()
    if tok in SPECIAL:
        k, b, n = SPECIAL[tok]
        return [(k, b + i) for i in range(n)]
    m = _REG.match(tok)
    if not m:
        return []
    k = m.group(1)
    if m.group(2) is not None:
        return [(k, int(m.group(2)))]
    return [(k, i) for i in range(int(m.group(3)), int(m.group(4)) + 1)]


class Inst:
    __slots__ = ("text", "op", "defs", "uses", "kind", "ops", "mods", "tag", "passes", "srcc", "srcab", "noflush")

    def __init__(self, text, tag=None):
        self.text = text
        self.tag = tag
        self.noflush = False
        code = text.split(";")[0].strip()
        parts = code.split(None, 1)
        op = parts[0]
        for suf in ("_e32", "_e64"):
            if op.endswith(suf):
                op = op[: -len(suf)]
        self.op = op
        rest = parts[1] if len(parts) > 1 else ""
        toks = [t.strip() for t in re.split(r",(?![^\[]*\])", rest)] if rest else []
        mods = ""
        if toks:
            last = toks[-1].split(None, 1)
            toks[-1] = last[0] if last else ""
            mods = last[1] if len(last) > 1 else ""
        self.ops, self.mods = toks, mods
        self.passes = 0
        self.srcc, self.srcab = [], []
        R = [regs_of(t) for t in toks]
        flat = lambda l: [r for x in l for r in x]
        defs, uses = [], []
        if op.startswith("v_mfma"):
            self.kind = "mfma"
            self.passes = 8 if "32x32" in op else 4
            defs, uses = R[0], flat(R[1:])
            self.srcab, self.srcc = R[1] + R[2], R[3]
        elif op.startswith("buffer_") or op.startswith("global_"):
            self.kind = "vmem"
            if op in ("buffer_wbl2", "buffer_inv"):
                pass
            elif "lds" in mods.split() or "_lds_" in op:
                uses = flat(R) + [("s", 124)]
            elif "_load" in op:
                defs, uses = R[0], flat(R[1:])
            elif "_atomic" in op:
                uses = flat(R)
                if "sc0" in mods.split():
                    defs = R[0]
            else:
                uses = flat(R)
        elif op.startswith("ds_"):
            self.kind = "ds"
            if op.startswith("ds_read") or "permute" in op or "swizzle" in op or "_rtn_" in op:
                defs, uses = R[0], flat(R[1:])
            else:
                uses = flat(R)
        elif op.startswith("s_load") or op in ("s_memtime", "s_memrealtime"):
            self.kind = "smem"
            defs, uses = R[0], flat(R[1:])
        elif op in ("s_waitcnt", "s_nop", "s_barrier", "s_endpgm", "s_sleep", "s_setprio"):
            self.kind = op[2:]
        elif op.startswith("s_cbranch") or op in ("s_branch", "s_setpc_b64"):
            self.kind = "branch"
            uses = flat(R)
            if "vcc" in op:
                uses = regs_of("vcc")
        elif op.startswith("s_cmp") or op.startswith("s_bitcmp"):
            self.kind = "salu"
            uses = flat(R)
        elif op.startswith("s_"):
            self.kind = "salu"
            defs, uses = R[0], flat(R[1:])
            if op in ("s_addk_i32", "s_mulk_i32", "s_cmov_b32", "s_cmov_b64"):
                uses = uses + R[0]
            if "saveexec" in op:
                defs = defs + regs_of("exec")
                uses = uses + regs_of("exec")
        elif op.startswith("v_"):
            self.kind = "valu"
            if "permlane" in op and "swap" in op:
                defs, uses = flat(R), flat(R)
            elif op.startswith("v_swap"):
                defs, uses = flat(R), flat(R)
            elif "_co_" in op:
                defs, uses = R[0] + R[1], flat(R[2:])
            else:
                defs, uses = R[0], flat(R[1:])
                if op in RMW or "dpp" in op or "UNUSED_PRESERVE" in mods or "writelane" in op:
                    uses = uses + R[0]
        else:
            raise ValueError("unknown instruction: " + text)
        self.defs, self.uses = defs, uses

    def is_dpp(self):
        return self.op.endswith("_dpp")

    def is_trans(self):
        return self.op in TRANS

    def is_dot(self):
        return self.op.startswith("v_dot")

    def wide_store(self):
        return self.kind == "vmem" and "_store_dwordx" in self.op and self.op[-1] in "34"

    def store_data(self):
        if self.op.startswith("buffer_store"):
            return regs_of(self.ops[0])
        return regs_of(self.ops[1])


class Label:
    def __init__(self, name):
        self.name = name


class Raw:
    def __init__(self, text):
        self.text = text


class WaitTok:
    def __init__(self, tag, counter):
        self.tag, self.counter = tag, counter


class Reset:
    def __init__(self, vm=True, lgkm=True):
        self.vm, self.lgkm = vm, lgkm


class Snapshot:
    def __init__(self, name, restore):
        self.name, self.restore = name, restore


class Asm:
    def __init__(self):
        self.items = []
        self.ntag = 0

    def __call__(self, text, tag=None):
        out = None
        for line in text.split("\n"):
            line = line.strip()
            if not line or line.startswith(";"):
                continue
            if line.endswith(":"):
                self.items.append(Label(line[:-1]))
            elif line.startswith("."):
                self.items.append(Raw(line))
            else:
                out = Inst(line, tag)
                self.items.append(out)
        return out

    def tagged(self, text):
        self.ntag += 1
        self(text, tag=self.ntag)
        return self.ntag

    def label(self, name):
        self.items.append(Label(name))

    def raw(self, text):
        i = Inst(text)
        i.kind, i.defs, i.uses = "other", [], []
        self.items.append(i)

    def comment(self, text):
        self.items.append(Raw("; " + text))

    def wait_vm(self, tag):
        self.items.append(WaitTok(tag, "vm"))

    def wait_lgkm(self, tag):
        self.items.append(WaitTok(tag, "lgkm"))

    def branch(self, text, noflush=False):
        i = Inst(text)
        i.noflush = noflush
        self.items.append(i)

    def save(self, name):
        self.items.append(Snapshot(name, False))

    def restore(self, name):
        self.items.append(Snapshot(name, True))


def insert_waits(items):
    out = []
    vm, lg = [], []
    snaps = {}

    def emit(vn, ln):
        s = []
        if vn is not None:
            s.append("vmcnt(%d)" % min(vn, 63))
            del vm[: len(vm) - min(vn, 63)]
        if ln is not None:
            s.append("lgkmcnt(%d)" % min(ln, 15))
            del lg[: len(lg) - min(ln, 15)]
        out.append(Inst("s_waitcnt " + " ".join(s)))

    for it in items:
        if isinstance(it, Snapshot):
            if it.restore:
                vm[:], lg[:] = [list(x) for x in snaps[it.name]]
            else:
                snaps[it.name] = (list(vm), list(lg))
            continue
        if isinstance(it, WaitTok):
            q = vm if it.counter == "vm" else lg
            idx = [i for i, e in enumerate(q) if e[0] == it.tag]
            if idx:
                n = len(q) - 1 - idx[-1]
                if it.counter == "vm":
                    emit(n, None)
                else:
                    emit(None, 0 if any(e[2] for e in q) else n)
            continue
        if not isinstance(it, Inst):
            out.append(it)
            continue
        if it.kind == "waitcnt":
            m = re.search(r"vmcnt\((\d+)\)", it.text)
            if m:
                del vm[: max(0, len(vm) - int(m.group(1)))]
            m = re.search(r"lgkmcnt\((\d+)\)", it.text)
            if m:
                n = int(m.group(1))
                if n == 0 or not any(e[2] for e in lg):
                    del lg[: max(0, len(lg) - n)]
            out.append(it)
            continue
        touched = set(it.defs) | set(it.uses)
        vn = ln = None
        for i in range(len(vm) - 1, -1, -1):
            if vm[i][1] & touched:
                vn = len(vm) - 1 - i
                break
        for i in range(len(lg) - 1, -1, -1):
            if lg[i][1] & touched:
                ln = 0 if any(e[2] for e in lg) else len(lg) - 1 - i
                break
        if vn is not None or ln is not None:
            emit(vn, ln)
        out.append(it)
        if it.kind == "vmem":
            vm.append((it.tag, set(it.defs), False))
        elif it.kind == "ds":
            lg.append((it.tag, set(it.defs), False))
        elif it.kind == "smem":
            if it.op in ("s_memtime", "s_memrealtime"):
                pass
            else:
                lg.append((it.tag, set(it.defs), True))
    return out


def _need(p, c):
    n = 0
    pd, cu, cd = set(p.defs), set(c.uses), set(c.defs)
    if p.kind == "mfma":
        P8 = p.passes == 8
        if c.kind == "mfma":
            if pd & set(c.srcab):
                n = max(n, 12 if P8 else 8)
            if pd & set(c.srcc):
                if not (c.srcc == p.defs and c.passes == p.passes):
                    n = max(n, 10 if P8 else 6)
            elif pd & cd:
                n = max(n, 10 if P8 else 6)
        elif c.kind in ("valu", "vmem", "ds"):
            if pd & (cu | cd):
                n = max(n, 12 if P8 else 8)
            if c.kind == "valu" and set(p.srcc) & cd:
                n = max(n, 7 if P8 else 3)
    elif p.kind == "valu":
        vd = {r for r in pd if r[0] != "s"}
        sd = {r for r in pd if r[0] == "s"}
        if c.kind == "mfma" and vd & cu:
            n = max(n, 2)
        if c.kind == "valu":
            if p.is_trans() and not c.is_trans() and vd & cu:
                n = max(n, 1)
            if p.is_dot():
                if c.op == p.op:
                    ab = set(regs_of(c.ops[1]) + regs_of(c.ops[2]))
                    if vd & ab:
                        n = max(n, 3)
                elif vd & (cu | cd):
                    n = max(n, 3)
            if "readfirstlane" in c.op or "readlane" in c.op:
                if vd & cu:
                    n = max(n, 1)
                if sd & cu:
                    n = max(n, 4)
            if (c.is_dpp() or "permlane" in c.op) and vd & cu:
                n = max(n, 2)
            if sd & cu:
                n = max(n, 2)
            if "sdwa" in p.op and vd & (cu | cd):
                n = max(n, 1)
        elif c.kind in ("vmem", "ds"):
            if p.is_dot() and vd & cu:
                n = max(n, 3)
            if p.is_trans() and vd & cu:
                n = max(n, 1)
            if c.kind == "vmem" and sd & cu:
                n = max(n, 5)
        elif c.kind in ("salu", "smem") and sd & cu:
            n = max(n, 1)
    elif p.kind == "salu":
        if ("s", 124) in pd and c.kind == "vmem" and ("s", 124) in cu:
            n = max(n, 1)
    if p.kind == "vmem" and p.wide_store():
        if set(p.store_data()) & cd:
            n = max(n, 2)
    return n


MAXW = 12


def insert_nops(items):
    out = []
    hist = []
    snaps = {}

    def states(i):
        if i.kind == "nop":
            return int(i.ops[0]) + 1
        return 1

    def push(i):
        s = states(i)
        for h in hist:
            h[1] += s
        hist[:] = [h for h in hist if h[1] < MAXW]
        hist.append([i, 0])
        out.append(i)

    def pad(n):
        while n > 0:
            k = min(n, 16)
            push(Inst("s_nop %d" % (k - 1)))
            n -= k

    def worst(p):
        if p.kind == "mfma":
            return 12 if p.passes == 8 else 8
        if p.kind == "valu":
            return 5 if any(r[0] == "s" for r in p.defs) else (3 if p.is_dot() else 2)
        if p.kind == "salu":
            return 1 if ("s", 124) in p.defs else 0
        if p.kind == "vmem" and p.wide_store():
            return 2
        return 0

    for it in items:
        if not isinstance(it, Inst):
            out.append(it)
            continue
        need = 0
        if it.kind == "branch" and not it.noflush:
            for p, d in hist:
                need = max(need, worst(p) - d - 1)
        for p, d in hist:
            need = max(need, _need(p, it) - d)
        if need > 0:
            pad(need)
        push(it)
    return out


def render(items):
    lines = []
    for it in items:
        if isinstance(it, Label):
            lines.append(it.name + ":")
        elif isinstance(it, Raw):
            lines.append(it.text)
        elif isinstance(it, Inst):
            lines.append("  " + it.text)
    return "\n".join(lines)


def finish(asm):
    return render(insert_nops(insert_waits(asm.items)))


class Regs:
    def __init__(self, kind, lo, hi):
        self.kind, self.free, self.hi = kind, set(range(lo, hi)), hi
        self.high = lo

    def alloc(self, n=1, align=None):
        align = align or (1 if n == 1 else (4 if (self.kind == "s" and n >= 4) else 2))
        for b in range(0, self.hi - n + 1, align):
            if all(b + i in self.free for i in range(n)):
                for i in range(n):
                    self.free.discard(b + i)
                self.high = max(self.high, b + n)
                return Reg(self.kind, b, n)
        raise RuntimeError("out of %s registers (want %d, free %d)" % (self.kind, n, len(self.free)))

    def release(self, *rs):
        for r in rs:
            if isinstance(r, (list, tuple)):
                self.release(*r)
                continue
            for i in range(r.n):
                assert r.b + i not in self.free, "double free"
                self.free.add(r.b + i)

    def clone(self):
        c = Regs(self.kind, 0, self.hi)
        c.free, c.high = set(self.free), self.high
        return c


class Reg:
    def __init__(self, kind, b, n):
        self.kind, self.b, self.n = kind, b, n

    def __str__(self):
        return "%s%d" % (self.kind, self.b) if self.n == 1 else "%s[%d:%d]" % (self.kind, self.b, self.b + self.n - 1)

    __repr__ = __str__

    def __getitem__(self, i):
        if isinstance(i, slice):
            a, b, _ = i.indices(self.n)
            return Reg(self.kind, self.b + a, b - a)
        assert 0 <= i < self.n
        return Reg(self.kind, self.b + i, 1)
```

```python
import sys, os, struct
sys.path.insert(0, os.path.dirname(os.path.abspath(__file__)))
from asmlib import *

NAME = "adaLN_cond__sliding_block__glu_gated_glu__prompt"
OPT = dict(prof=0, out_sc1=1, clean=0, force_slow=0, force_fb=0, sp=0, nobulk=0, nt0=1, mim=15, overlay=1, h_sc1=1,
           n1=16, wq_win=0, qinit=3, qd=6, cinit=4, cd=12, dinit=3, dd=8, binit=3,
           pre_wo=50, drot=0, pre_wd=0, nreg=5, wd_win=0, wo_win=0, gu_win=0, gu_q=0, gu_a=6, gu_b=4, gu_c=4, gu_d=4)
ZOOM = ""
for a_ in sys.argv[2:]:
    k_, v_ = a_.split("=")
    if k_ == "zoom":
        ZOOM = v_
    else:
        OPT[k_] = int(v_)

WS_E, WS_MOD, WS_CENSUS = 0, 0x1000, 0x9000
WS_FLAG, WS_XFLAG, WS_STATS, WS_PROF = 0x10000, 0x18000, 0x20000, 0x60000
WS_H1, WS_O, WS_H2, WS_HB, WS_A, WS_B, WS_QKV, WS_RS, WS_END = 0x100000, 0x380000, 0x600000, 0x880000, 0xE80000, 0x1100000, 0x1700000, 0x1F00000, 0x2180000
ACT, HBG, QKVG = 327680, 786432, 983040
L_MOD2F, L_CNT, L_PART, L_MODEF, L_MOD1F = 0, 1280, 1536, 1792, 2048
L_WQ = 12288
KVS = 4160
L_K, L_V = 12288, 12288 + 5 * KVS
L_WO = 58112
L_RED = 12288
L_GU = 40960
L_WD = 2048
L_OUT = L_WD + 24 * 5120
LDS_BYTES = 163840
BIG = 0xF1800000
OOB = 0x7F000000
POLL_MAX = 1 << 17


def f32(x):
    return struct.unpack("<I", struct.pack("<f", x))[0]


LOG2E = 1.4426950408889634
QSCALE = f32(20 ** -0.5 * LOG2E)
S = lambda b, n=1: Reg("s", b, n)
sX, sOUT, sWS, sWO, sWQ, sWG, sWU, sWD, sCC, sWM = [S(4 + 4 * i, 4) for i in range(10)]
sPOLL = S(20, 32)
sT = S(52, 2)
sG, sJ, sW, sW4, sXCC, sMODE = [S(54 + i) for i in range(6)]
t0, t1, t2, t3, t4, t5, t6, t7 = [S(60 + i) for i in range(8)]
p0, p1 = S(68, 2), S(70, 2)
sHI = S(72, 2)
sCNT, sHOOK, sPASS, sI, sN = [S(74 + i) for i in range(5)]
sDUM = S(79)
sRH, sCB = S(46), S(47)
sHB = S(44, 2)
sSTAMP = S(80, 2)
PROF0 = 82

A = Asm()
nlab = [0]
NAMES = []


def lab(p):
    nlab[0] += 1
    return "L_%s_%d" % (p, nlab[0])


class Ctx:
    def __init__(self, V):
        self.V, self.nstamp, self.cold, self.names = V, 0, [], []

    def stamp(self, name="", zoom=""):
        if not OPT["prof"]:
            return
        if zoom and zoom not in ZOOM:
            return
        if not zoom and ZOOM and name[:1] not in ZOOM and name not in ("start", "end", "s_e1", "q_loop", "x_kv", "a_sig", "b_stat", "c_loop"):
            return
        assert self.nstamp < 20, name
        if self.nstamp:
            A(f"s_mov_b32 {S(PROF0 + self.nstamp - 1)}, {sSTAMP[0]}")
        A.raw(f"{'s_memtime' if OPT['prof'] == 2 else 's_memrealtime'} {sSTAMP}")
        self.names = self.names[:self.nstamp] + [name] + self.names[self.nstamp + 1:]
        self.nstamp += 1


def unpack(lo, hi, src):
    A(f"v_lshlrev_b32 {lo}, 16, {src}")
    A(f"v_and_b32 {hi}, 0xffff0000, {src}")


def round_pair(a, b, tmp):
    A(f"v_cvt_pk_bf16_f32 {tmp}, {a}, {b}")
    unpack(a, b, tmp)


def round1(a):
    A(f"v_cvt_pk_bf16_f32 {a}, {a}, {a}")
    A(f"v_and_b32 {a}, 0xffff0000, {a}")


def sum16(x):
    for m in ("quad_perm:[1,0,3,2]", "quad_perm:[2,3,0,1]", "row_half_mirror", "row_mirror"):
        A(f"v_add_f32_dpp {x}, {x}, {x} {m} row_mask:0xf bank_mask:0xf")


def xor16_add(x, tmp):
    A(f"v_mov_b32 {tmp}, {x}")
    A(f"v_permlane16_swap_b32 {tmp}, {x}")
    A(f"v_add_f32 {x}, {x}, {tmp}")


def xor32_op(op, x, tmp):
    A(f"v_mov_b32 {tmp}, {x}")
    A(f"v_permlane32_swap_b32 {tmp}, {x}")
    A(f"{op} {x}, {x}, {tmp}")


def poll(c, loads, check, acquire=True, backoff=0):
    top, done = lab("poll"), lab("pdone")
    A(f"s_mov_b32 {sCNT}, 0")
    A.label(top)
    if backoff:
        A(f"s_sleep {backoff}")
    for l in loads:
        A(l)
    A(f"s_add_u32 {sCNT}, {sCNT}, 1")
    A(f"s_cmp_gt_u32 {sCNT}, {POLL_MAX}")
    A.branch(f"s_cbranch_scc1 {done}", noflush=True)
    A("s_waitcnt vmcnt(0)")
    check()
    A.branch(f"s_cbranch_vccnz {top}")
    A.label(done)
    A("s_waitcnt vmcnt(0)")
    if acquire:
        acquire_if_slow()


def check_tags(regs):
    def f():
        A(f"v_cmp_ne_u64 vcc, {sT}, {regs[0]}")
        for r in regs[1:]:
            A(f"v_cmp_ne_u64 {p0}, {sT}, {r}")
            A(f"s_or_b64 vcc, vcc, {p0}")
    return f


BY_WAVE = {0: False, 1: True, 2: False, 3: True, 4: False}


def scalar_edge(edge):
    return OPT["sp"] >> edge & 1


def signal(c, edge, drain=True):
    V = c.V
    a, d = V.alloc(1), V.alloc(1)
    A(f"s_lshl_b32 {t0}, {sG}, 12")
    A(f"s_lshl_b32 {t1}, {sJ}, {2 if BY_WAVE[edge] else 4}")
    A(f"s_add_u32 {t0}, {t0}, {t1}")
    A(f"s_lshl_b32 {t1}, {sW4}, {7 if BY_WAVE[edge] else 2}")
    A(f"s_add_u32 {t0}, {t0}, {t1}")
    A(f"s_add_u32 {t0}, {t0}, {WS_FLAG + 512 * edge}")
    A(f"v_mov_b32 {a}, 0")
    A(f"v_mov_b32 {d}, {sT[0]}")
    slow, done = lab("sigslow"), lab("sigdone")
    A("s_mov_b64 exec, 1")
    A(f"s_cmp_lg_u32 {sMODE}, 0")
    if drain:
        A("s_waitcnt vmcnt(0)")
    A.branch(f"s_cbranch_scc1 {slow}", noflush=True)
    A(f"buffer_store_dword {d}, {a}, {sWS}, {t0} offen{' sc1' if scalar_edge(edge) else ''}")
    A.label(done)
    A("s_mov_b64 exec, -1")

    def cold():
        A.label(slow)
        if drain:
            A("buffer_wbl2 sc1")
            A("s_waitcnt vmcnt(0)")
        A(f"buffer_store_dword {d}, {a}, {sWS}, {t0} offen sc1")
        A.branch(f"s_branch {done}")
    c.cold.append(cold)
    V.release(a, d)


def acquire_if_slow():
    skip = lab("noacq")
    A(f"s_cmp_eq_u32 {sMODE}, 0")
    A.branch(f"s_cbranch_scc1 {skip}", noflush=True)
    A("buffer_inv sc1")
    A("s_waitcnt vmcnt(0)")
    A.label(skip)


def wait_edge(c, edge, s_off0, s_off1=None):
    V = c.V
    A(f"s_lshl_b32 {t0}, {sG}, 12")
    A(f"s_add_u32 {t0}, {t0}, {WS_FLAG + 512 * edge}")
    if scalar_edge(edge):
        offs = [s_off0] + ([s_off1] if s_off1 is not None else [])
        for o in offs:
            A(f"s_add_u32 {o}, {o}, {t0}")
        top, done = lab("spoll"), lab("spdone")
        A(f"s_mov_b32 {p0[0]}, {sT[0]}")
        A(f"s_mov_b32 {p0[1]}, {sT[0]}")
        A(f"s_mov_b32 {sCNT}, 0")
        A.label(top)
        for k, o in enumerate(offs):
            A(f"s_load_dwordx16 {sPOLL[16 * k:16 * k + 16]}, {sWS[0:2]}, {o} glc")
        A(f"s_add_u32 {sCNT}, {sCNT}, 1")
        A(f"s_cmp_gt_u32 {sCNT}, {POLL_MAX}")
        A.branch(f"s_cbranch_scc1 {done}", noflush=True)
        A("s_waitcnt lgkmcnt(0)")
        n = 8 * len(offs)
        for k in range(n):
            A(f"s_xor_b64 {sPOLL[2 * k:2 * k + 2]}, {sPOLL[2 * k:2 * k + 2]}, {p0}")
        for k in range(1, n):
            A(f"s_or_b64 {sPOLL[0:2]}, {sPOLL[0:2]}, {sPOLL[2 * k:2 * k + 2]}")
        A.branch(f"s_cbranch_scc1 {top}")
        A.label(done)
        A("s_waitcnt lgkmcnt(0)")
        acquire_if_slow()
        return
    a, d = V.alloc(1), V.alloc(1)
    A(f"v_and_b32 {a}, 15, {c.lane}")
    A(f"v_lshl_add_u32 {a}, {a}, 2, {s_off0}")
    if s_off1 is not None:
        A(f"s_sub_u32 {s_off1}, {s_off1}, {s_off0}")
        A(f"v_add_u32 {d}, {s_off1}, {a}")
        A(f"v_cndmask_b32_e64 {a}, {a}, {d}, {sHI}")
    poll(c, [f"buffer_load_dword {d}, {a}, {sWS}, {t0} offen sc1"], lambda: A(f"v_cmp_ne_u32 vcc, {sT[0]}, {d}"))
    V.release(a, d)


def add_base(dst, slow, fast, tmp):
    if not OPT["overlay"]:
        A(f"s_add_u32 {dst}, {dst}, {slow}")
        return
    A(f"s_cmp_eq_u32 {sMODE}, 0")
    A(f"s_cselect_b32 {tmp}, {fast - slow}, 0")
    A(f"s_add_u32 {dst}, {dst}, {tmp}")
    A(f"s_add_u32 {dst}, {dst}, {slow}")


def lds_spin(c, off, want):
    V = c.V
    a, d = V.alloc(1), V.alloc(1)
    top, done = lab("lspin"), lab("lsdone")
    A(f"v_mov_b32 {a}, 0")
    A(f"s_mov_b32 {sCNT}, 0")
    A.label(top)
    A(f"ds_read_b32 {d}, {a} offset:{off}")
    A(f"s_add_u32 {sCNT}, {sCNT}, 1")
    A(f"s_cmp_gt_u32 {sCNT}, {8 * POLL_MAX}")
    A.branch(f"s_cbranch_scc1 {done}", noflush=True)
    A("s_waitcnt lgkmcnt(0)")
    A(f"v_cmp_gt_u32 vcc, {want}, {d}")
    A.branch(f"s_cbranch_vccnz {top}")
    A.label(done)
    A("s_waitcnt lgkmcnt(0)")
    V.release(a, d)


def bump(c, off):
    a, d = c.V.alloc(1), c.V.alloc(1)
    A(f"v_mov_b32 {a}, 0")
    A(f"v_mov_b32 {d}, 1")
    A("s_mov_b64 exec, 1")
    A(f"ds_add_u32 {a}, {d} offset:{off}")
    A("s_mov_b64 exec, -1")
    c.V.release(a, d)


def l2_touch(base, first, n):
    for i in range(first, first + n):
        A.raw(f"s_load_dword {sDUM}, {base}, {64 * i}")


SRD_SIZE = ((sWM, 4915200), (sCC, 1280), (sWS, WS_END), (sX, 2621440), (sWQ, 2457600), (sWO, 819200), (sWG, 1966080),
            (sWU, 1966080), (sWD, 1966080), (sOUT, 2621440))


def srd_words(which):
    for srd, n in SRD_SIZE:
        if any(srd is w for w in which):
            nb = {sWQ.b: 1, sWO.b: 2, sWG.b: 4, sWU.b: 4, sWD.b: 8}.get(srd.b, 0)
            A(f"s_mov_b32 {srd[2]}, {0 if OPT['nobulk'] & nb else n}")
            A(f"s_mov_b32 {srd[3]}, 0x20000")


def prologue():
    V = Regs("v", 0, 256)
    c = Ctx(V)
    v0 = V.alloc(1)
    c.lane = V.alloc(1)
    tmp, u = V.alloc(1), V.alloc(1)
    A("s_cmp_ge_u32 s2, 256")
    A.branch("s_cbranch_scc1 L_end", noflush=True)
    A(f"s_getpc_b64 {p0}")
    A.label("L_pc")
    c.stamp("start")
    for srd, off in ((sWM, 64), (sCC, 56), (sWS, 88), (sX, 0)):
        A(f"s_load_dwordx2 {srd[0:2]}, s[0:1], {off}")
    A(f"v_lshrrev_b32 {tmp}, 6, {v0}")
    A(f"s_lshr_b32 {sJ}, s2, 3")
    A(f"v_readfirstlane_b32 {sW}, {tmp}")
    A(f"v_and_b32 {c.lane}, 63, {v0}")
    A(f"s_and_b32 {sG}, s2, 7")
    A(f"s_and_b32 {sW4}, {sW}, 3")
    A(f"s_cmp_ge_u32 {sW}, 4")
    c.l16 = v0
    A(f"v_lshlrev_b32 {c.l16}, 4, {c.lane}")
    A.branch("s_cbranch_scc0 L_compute", noflush=True)
    A(f"s_lshl_b32 {t0}, {sJ}, 2")
    A(f"s_add_u32 {t0}, {t0}, {sW4}")
    A(f"s_lshl_b32 {t0}, {t0}, 9")
    A(f"v_and_b32 {tmp}, 7, {c.lane}")
    A(f"v_lshl_add_u32 {tmp}, {tmp}, 6, {t0}")
    A(f"v_min_u32 {tmp}, L_end-L_pc, {tmp}")
    A(f"global_load_dword {u}, {tmp}, {p0}")
    A.branch("s_branch L_helper")
    A.label("L_compute")
    V.release(tmp)
    c.dummy = u
    A.save("split")
    return c


def late_setup():
    for srd, off in ((sWQ, 8), (sWO, 16), (sWG, 32), (sWU, 40), (sWD, 48), (sOUT, 72)):
        A(f"s_load_dwordx2 {srd[0:2]}, s[0:1], {off}")
    srd_words((sWQ, sWO, sWG, sWU, sWD, sOUT))
    A(f"s_getreg_b32 {sXCC}, hwreg(HW_REG_XCC_ID, 0, 4)")
    A(f"s_mov_b32 {sHI[0]}, 0")
    A(f"s_mov_b32 {sHI[1]}, -1")
    A(f"s_lshr_b32 {sI}, {sJ}, 3")
    A(f"s_and_b32 {sN}, {sJ}, 7")


def tag_setup():
    A("s_waitcnt lgkmcnt(0)")
    A(f"s_add_u32 {sT[0]}, {sT[0]}, 1")
    A(f"s_not_b32 {sT[1]}, {sT[0]}")


def barrier():
    A("s_waitcnt lgkmcnt(0)")
    A("s_barrier")


def att_masks(c):
    V = c.V
    c.mask = V.alloc(16, 4)
    z, big = V.alloc(1), V.alloc(1)
    A(f"v_lshrrev_b32 {z}, 5, {c.lane}")
    A(f"v_lshlrev_b32 {z}, 2, {z}")
    A(f"v_and_b32 {big}, 31, {c.lane}")
    A(f"v_sub_u32 {z}, {big}, {z}")
    A(f"v_mov_b32 {big}, {hex(BIG)}")
    build_mask(c, z, big)
    V.release(z, big)


def build_mask(c, z, big):
    for r in range(16):
        A(f"v_subrev_u32 {c.mask[r]}, {8 * (r >> 2) + (r & 3)}, {z}")
        A(f"v_ashrrev_i32 {c.mask[r]}, 31, {c.mask[r]}")
        A(f"v_and_b32 {c.mask[r]}, {big}, {c.mask[r]}")


def att_addr(c):
    V = c.V
    c.aK, c.aK4, c.aV = V.alloc(1), V.alloc(1), V.alloc(1)
    t, u = V.alloc(1), V.alloc(1)
    A(f"s_lshl_b32 {t0}, {sW4}, 9")
    A(f"v_and_b32 {t}, 15, {c.lane}")
    A(f"s_add_u32 {t1}, {t0}, {L_K}")
    A(f"v_lshl_add_u32 {t}, {t}, 4, {t1}")
    A(f"v_bfe_u32 {u}, {c.lane}, 4, 1")
    A(f"v_lshl_add_u32 {t}, {u}, 3, {t}")
    A(f"v_add_u32 {c.aK4}, {4 * KVS}, {t}")
    A(f"v_lshrrev_b32 {u}, 5, {c.lane}")
    A(f"v_mul_u32_u24 {c.aK}, {KVS}, {u}")
    A(f"v_add_u32 {c.aK}, {c.aK}, {t}")
    A(f"v_bfe_u32 {t}, {c.lane}, 2, 2")
    A(f"v_lshl_add_u32 {t}, {u}, 2, {t}")
    A(f"s_add_u32 {t1}, {t0}, {L_V}")
    A(f"v_lshl_add_u32 {c.aV}, {t}, 4, {t1}")
    A(f"v_and_b32 {t}, 3, {c.lane}")
    A(f"v_bfe_u32 {u}, {c.lane}, 4, 1")
    A(f"v_lshl_add_u32 {t}, {u}, 2, {t}")
    A(f"v_lshlrev_b32 {t}, 2, {t}")
    A(f"s_mov_b32 {t1}, 0x45543210")
    A(f"v_lshrrev_b32_e64 {t}, {t}, {t1}")
    A(f"v_and_b32 {t}, 7, {t}")
    A(f"v_mul_u32_u24 {t}, {KVS}, {t}")
    A(f"v_add_u32 {c.aV}, {c.aV}, {t}")
    V.release(t, u)


def attention(c):
    V = c.V
    Q0, Q1 = c.Q0, c.Q1
    Sx = [V.alloc(16, 4) for _ in range(3)]
    O, Cm = [V.alloc(16, 4), V.alloc(16, 4)], [V.alloc(16, 4), V.alloc(16, 4)]
    P, Vf = V.alloc(8, 4), V.alloc(8, 4)
    Ka, Kb = V.alloc(4, 4), V.alloc(2)
    m, mg, tmp = V.alloc(2), V.alloc(2), V.alloc(1)
    off = lambda n: (9 - n) * 256

    def readK(n, ka=Ka, kb=Kb):
        A(f"ds_read_b64 {ka[0:2]}, {c.aK} offset:{off(n)}")
        A(f"ds_read_b64 {ka[2:4]}, {c.aK} offset:{off(n) + 2 * KVS}")
        A(f"ds_read_b64 {kb}, {c.aK4} offset:{off(n)}")

    def readV(n):
        for ks in range(2):
            for u in range(2):
                A(f"ds_read_b64_tr_b16 {Vf[4 * ks + 2 * u:4 * ks + 2 * u + 2]}, {c.aV} offset:{off(n) + 8 * ks + 128 * u}")

    def qk(dst, st, cin, ka=Ka, kb=Kb):
        return [f"v_mfma_f32_32x32x16_bf16 {dst}, {ka}, {Q0[st]}, {cin}", f"v_mfma_f32_32x32x8bf16_1k {dst}, {kb}, {Q1[st]}, {dst}"]

    units = [(0, 0)] + [(st, n) for n in range(1, 9) for st in (0, 1)] + [(1, 9)]
    for st in range(2):
        A(f"v_mov_b32 {mg[st]}, {hex(BIG)}")
    A(f"s_mov_b32 {sPASS}, 0")
    A.label("L_att")
    readK(0, Vf[0:4], Vf[4:6])
    readK(1)
    for x in qk(Sx[0], 0, c.mask, Vf[0:4], Vf[4:6]) + qk(Sx[2], 1, c.mask):
        A(x)
    for st, sx in ((0, Sx[0]), (1, Sx[2])):
        A(f"v_max3_f32 {m[st]}, {sx[0]}, {sx[1]}, {mg[st]}")
        for r in range(2, 16, 2):
            A(f"v_max3_f32 {m[st]}, {sx[r]}, {sx[r + 1]}, {m[st]}")
        xor32_op("v_max_f32", m[st], tmp)
        for r in range(16):
            A(f"v_sub_f32 {Cm[st][r]}, 0, {m[st]}")
        for r in range(16):
            A(f"v_sub_f32 {sx[r]}, {sx[r]}, {m[st]}")
    A(f"v_mov_b32 {tmp}, {hex(BIG)}")
    for r in range(16):
        A(f"v_sub_f32 {c.mask[r]}, {tmp}, {c.mask[r]}")
    c.stamp("z_set", "a")
    for k, (st, n) in enumerate(units):
        s = Sx[k % 3]
        if st == 1 and n % 2 == 1 and n < 9:
            A(f"s_cmp_eq_u32 {sHOOK}, {n + 1}")
            A.branch(f"s_cbranch_scc1 L_hook_{n + 1}", noflush=True)
            A.label(f"L_back_{n + 1}")
        if st == 0 or n == 9:
            readV(n)
        nxt = units[k + 1] if k + 1 < len(units) else None
        pre, mm = [], []
        if nxt and k + 1 != 2:
            if nxt == (0, 8) or nxt == (1, 9):
                pre = [f"v_sub_f32 {Cm[nxt[0]][r]}, {c.mask[r]}, {m[nxt[0]]}" for r in range(16)]
            mm = qk(Sx[(k + 1) % 3], nxt[0], Cm[nxt[0]])
        for x in pre:
            A(x)
        order = []
        for r in range(0, 16, 2):
            order += [f"v_exp_f32 {s[r]}, {s[r]}", f"v_exp_f32 {s[r + 1]}, {s[r + 1]}"]
            if r >= 2:
                order.append(f"v_cvt_pk_bf16_f32 {P[r // 2 - 1]}, {s[r - 2]}, {s[r - 1]}")
        first = n == (0 if st == 0 else 1)
        for i, x in enumerate(order):
            A(x)
            if i == 2 and mm:
                A(mm[0])
            if i == 7 and mm:
                A(mm[1])
            if i == 9 and st == 0 and 1 <= n:
                readK(n + 1)
            if i == 15:
                A(f"v_mfma_f32_32x32x16_bf16 {O[st]}, {Vf[0:4]}, {P[0:4]}, {'0' if first else O[st]}")
        A(f"v_cvt_pk_bf16_f32 {P[7]}, {s[14]}, {s[15]}")
        A(f"v_mfma_f32_32x32x16_bf16 {O[st]}, {Vf[4:8]}, {P[4:8]}, {O[st]}")
    A(f"s_mov_b32 {t0}, {hex(f32(2.0 ** 40 if not OPT['force_fb'] else 1.5))}")
    for st in range(2):
        A(f"v_cndmask_b32_e64 {m[st]}, {O[st][12]}, {O[st][8]}, {sHI}")
    A(f"v_cmp_nge_f32 vcc, {t0}, {m[0]}")
    A(f"v_cmp_nge_f32 {p0}, {t0}, {m[1]}")
    A(f"s_or_b64 vcc, vcc, {p0}")
    A(f"s_cmp_eq_u32 {sPASS}, 0")
    A(f"s_cselect_b64 vcc, vcc, 0")
    A.branch("s_cbranch_vccnz L_fb")
    c.op = [Sx[0][0:6], Sx[0][6:12]]
    for st in range(2):
        A(f"v_rcp_f32 {m[st]}, {m[st]}")
    for st in range(2):
        for r in range(12):
            A(f"v_mul_f32 {O[st][r]}, {O[st][r]}, {m[st]}")
        for r in range(6):
            A(f"v_cvt_pk_bf16_f32 {c.op[st][r]}, {O[st][2 * r]}, {O[st][2 * r + 1]}")
        c.store_o(st)

    def cold():
        for n in (2, 4, 6, 8):
            A.label(f"L_hook_{n}")
            A("s_nop 7")
            for r in range(16):
                for x in (Cm[0], Cm[1], c.mask):
                    A(f"v_mov_b32 {x[r]}, {hex(BIG)}")
            A.branch(f"s_branch L_back_{n}")
        A.label("L_fb")
        z, big = P[0], P[1]
        A(f"v_lshrrev_b32 {z}, 5, {c.lane}")
        A(f"v_lshlrev_b32 {z}, 2, {z}")
        A(f"v_and_b32 {big}, 31, {c.lane}")
        A(f"v_sub_u32 {z}, {big}, {z}")
        A(f"v_mov_b32 {big}, {hex(BIG)}")
        build_mask(c, z, big)
        for r in range(16):
            A(f"v_sub_f32 {Cm[0][r]}, {big}, {c.mask[r]}")
        for n in range(1, 10):
            skip = lab("fbskip")
            A(f"s_cmp_le_u32 {sHOOK}, {n}")
            A.branch(f"s_cbranch_scc1 {skip}")
            readK(n)
            for st in range(2):
                if (st, n) in units and (st, n) != (1, 1):
                    for x in qk(Sx[st], st, Cm[0] if n == 8 + st else "0"):
                        A(x)
            for st in range(2):
                if (st, n) in units and (st, n) != (1, 1):
                    for r in range(0, 16, 2):
                        A(f"v_max3_f32 {mg[st]}, {Sx[st][r]}, {Sx[st][r + 1]}, {mg[st]}")
            A.label(skip)
        A(f"s_mov_b32 {sPASS}, 1")
        A.branch("s_branch L_att")
    c.cold.append(cold)
    V.release(Sx, O, Cm, P, Vf, Ka, Kb, m, mg, tmp, c.mask, c.aK, c.aK4, c.aV, Q0, Q1)


def wd_pattern(c):
    V = c.V
    c.pat = V.alloc(5)
    p, r = V.alloc(1), V.alloc(1)
    A(f"s_mul_i32 {t0}, {sN}, 160")
    for i in range(5):
        A(f"v_add_u32 {p}, {64 * i}, {c.lane}")
        A(f"v_mul_u32_u24 {r}, 0x199a, {p}")
        A(f"v_lshrrev_b32 {r}, 16, {r}")
        A(f"v_mul_u32_u24 {c.pat[i]}, 0x460, {r}")
        A(f"v_lshl_add_u32 {c.pat[i]}, {p}, 4, {c.pat[i]}")
        A(f"v_add_u32 {c.pat[i]}, {t0}, {c.pat[i]}")
    V.release(p, r)


def dma_slab(c, srd, s_src, lds, win=0):
    for i in range(5):
        if win:
            A(f"s_waitcnt vmcnt({win - 1})")
        if isinstance(lds, int):
            A(f"s_mov_b32 m0, {lds + 1024 * i}")
        else:
            A(f"s_add_u32 m0, {lds}, {1024 * i}")
        tag = A.tagged(f"buffer_load_dwordx4 {c.pat[i]}, {srd}, {s_src} offen lds")
    return tag


def prof_dump(c, role):
    if not OPT["prof"]:
        return
    V = c.V
    a, d = V.alloc(1), V.alloc(1)
    skip = lab("noprof")
    A("s_waitcnt vmcnt(0)")
    c.stamp("end")
    NAMES.append(c.names)
    A("s_waitcnt lgkmcnt(0)")
    A(f"s_mov_b32 {S(PROF0 + c.nstamp - 1)}, {sSTAMP[0]}")
    A(f"s_cmp_lg_u32 {sW4}, {OPT.get('pw', 0)}")
    A.branch(f"s_cbranch_scc1 {skip}")
    A(f"s_lshl_b32 {t0}, s2, 8")
    A(f"s_add_u32 {t0}, {t0}, {WS_PROF + 128 * role}")
    A(f"v_mov_b32 {a}, 0")
    A("s_mov_b64 exec, 1")
    for i in range(c.nstamp):
        A(f"v_mov_b32 {d}, {S(PROF0 + i)}")
        A(f"buffer_store_dword {d}, {a}, {sWS}, {t0} offen offset:{4 * i}")
    A("s_mov_b64 exec, -1")
    A.label(skip)
    V.release(a, d)


def tile_gemm(c, nks, s_a0, s_a1, init, depth, waddr, barrier_at, step=None, drain=True):
    V = c.V
    ring = [[V.alloc(4, 4), V.alloc(4, 4)] for _ in range(depth)]
    W = [V.alloc(20, 4), V.alloc(20, 4)]
    acc = [V.alloc(20, 4), V.alloc(20, 4)]

    def loadA1(ks, a):
        A(f"buffer_load_dwordx4 {ring[ks % depth][a]}, {c.l16}, {sWS}, {(s_a0, s_a1)[a]} offen offset:{(ks % 4) * 1024} sc1")
        if a == 1 and ks % 4 == 3 and ks + 1 < nks:
            inc = step(ks // 4) if step else 4096
            A(f"s_add_u32 {s_a0}, {s_a0}, {inc}")
            A(f"s_add_u32 {s_a1}, {s_a1}, {inc}")

    def loadA(ks):
        loadA1(ks, 0)
        loadA1(ks, 1)

    def readW(ks, ct, u):
        ad, imm = waddr(ks)
        A(f"ds_read_b64_tr_b16 {W[ks & 1][4 * ct + 2 * u:4 * ct + 2 * u + 2]}, {ad} offset:{imm + 1280 * u + 32 * ct}")

    issued = min(init, nks)
    for ks in range(issued):
        loadA(ks)
    if 0 in barrier_at:
        A("s_barrier")
    for ct in range(5):
        readW(0, ct, 0)
        readW(0, ct, 1)
    for ks in range(nks):
        nxt = ks + 1 < nks
        if nxt and (ks + 1) in barrier_at:
            barrier() if drain else A("s_barrier")
        if nks == 24 and ks % 4 == 0:
            c.stamp("z_k%d" % ks, "d")
        todo = []
        for _ in range(2):
            if issued < min(nks, ks + depth):
                todo += [(issued, 0), (issued, 1)]
                issued += 1
        for ct in range(5):
            for a in range(2):
                A(f"v_mfma_f32_16x16x32_bf16 {acc[a][4 * ct:4 * ct + 4]}, {W[ks & 1][4 * ct:4 * ct + 4]}, {ring[ks % depth][a]}, "
                  f"{'0' if ks == 0 else acc[a][4 * ct:4 * ct + 4]}")
                if nxt:
                    readW(ks + 1, ct, a)
            if todo and ct < 4 and (len(todo) > 2 or ct in (1, 3) or len(todo) + ct >= 4):
                loadA1(*todo.pop(0))
        assert not todo
    V.release(ring, W)
    return acc


def tile_reduce(c, acc, lds):
    V = c.V
    ad = V.alloc(1)
    A(f"s_mul_i32 {t0}, {sW4}, 5120")
    A(f"s_add_u32 {t0}, {t0}, {lds}")
    A(f"v_add_u32 {ad}, {t0}, {c.l16}")
    for ct in range(5):
        A(f"ds_write_b128 {ad}, {acc[1][4 * ct:4 * ct + 4]} offset:{1024 * ct}")
    A(f"s_xor_b32 {t0}, {sW4}, 1")
    A(f"s_mul_i32 {t0}, {t0}, 5120")
    A(f"s_add_u32 {t0}, {t0}, {lds}")
    A(f"v_add_u32 {ad}, {t0}, {c.l16}")
    barrier()
    for ct in range(5):
        A(f"ds_read_b128 {acc[1][4 * ct:4 * ct + 4]}, {ad} offset:{1024 * ct}")
    for r in range(20):
        A(f"v_add_f32 {acc[0][r]}, {acc[0][r]}, {acc[1][r]}")
    V.release(ad, acc[1])
    return acc[0]


def wtile_addr(c, base, half_bytes, ad, t, u):
    A(f"v_lshrrev_b32 {t}, 5, {c.lane}")
    A(f"v_bfe_u32 {u}, {c.lane}, 4, 1")
    A(f"v_lshlrev_b32 {t}, 4, {t}")
    A(f"v_lshl_add_u32 {t}, {u}, 2, {t}")
    A(f"v_bfe_u32 {u}, {c.lane}, 2, 2")
    A(f"v_add_u32 {t}, {t}, {u}")
    A(f"v_mul_u32_u24 {t}, 0xa0, {t}")
    A(f"v_and_b32 {u}, 3, {c.lane}")
    A(f"v_lshl_add_u32 {t}, {u}, 3, {t}")
    A(f"s_and_b32 {t0}, {sW4}, 1")
    A(f"s_mul_i32 {t0}, {t0}, {half_bytes}")
    A(f"s_add_u32 {t0}, {t0}, {base}")
    A(f"v_add_u32 {ad}, {t0}, {t}")


def tile_streams(base, per_group, tile_bytes, half_bytes, d0, d1):
    A(f"s_mul_i32 {t0}, {sG}, {per_group}")
    A(f"s_and_b32 {t1}, {sW4}, 1")
    A(f"s_mul_i32 {t1}, {t1}, {half_bytes}")
    A(f"s_add_u32 {t0}, {t0}, {t1}")
    add_base(t0, base[0], base[1], t1)
    A(f"s_lshl_b32 {t1}, {sI}, 2")
    A(f"s_add_u32 {t2}, {t1}, {sW4}")
    A(f"s_mul_i32 {d0}, {t2}, {tile_bytes}")
    A(f"s_add_u32 {d0}, {d0}, {t0}")
    A(f"s_xor_b32 {t2}, {t2}, 1")
    A(f"s_mul_i32 {d1}, {t2}, {tile_bytes}")
    A(f"s_add_u32 {d1}, {d1}, {t0}")


def d_rot(dst, tmp):
    A(f"s_lshr_b32 {dst}, {sI}, 1")
    A(f"s_mul_i32 {dst}, {dst}, 3")
    if OPT["drot"]:
        A(f"s_add_u32 {dst}, {dst}, {sN}")
        for _ in range(1):
            A(f"s_cmp_ge_u32 {dst}, 6")
            A(f"s_cselect_b32 {tmp}, 6, 0")
            A(f"s_sub_u32 {dst}, {dst}, {tmp}")


def ln_scalars(mean, var, tmp):
    round1(mean)
    round1(var)
    A(f"v_add_f32 {var}, {hex(f32(1e-5))}, {var}")
    round1(var)
    A(f"v_sqrt_f32 {var}, {var}")
    round1(var)
    A(f"v_rcp_f32 {var}, {var}")


def qkv_role():
    A(f"s_cmp_ge_u32 {sJ}, 15")
    A(f"s_cselect_b32 {sRH}, 1, 0")
    A(f"s_cselect_b32 {t0}, 15, 0")
    A(f"s_sub_u32 {sCB}, {sJ}, {t0}")
    A(f"s_min_u32 {sCB}, {sCB}, 14")


def qkv_addr(c):
    V, lane = c.V, c.lane
    c.wq = V.alloc(4)
    tq, tu, tr = V.alloc(1), V.alloc(1), V.alloc(1)
    A(f"v_lshrrev_b32 {tq}, 5, {lane}")
    A(f"v_bfe_u32 {tr}, {lane}, 2, 2")
    A(f"v_lshl_add_u32 {tq}, {tq}, 3, {tr}")
    A(f"v_lshlrev_b32 {tq}, 8, {tq}")
    A(f"v_bfe_u32 {tu}, {lane}, 4, 1")
    A(f"v_lshl_add_u32 {tq}, {tu}, 5, {tq}")
    A(f"v_and_b32 {tu}, 3, {lane}")
    A(f"v_lshl_add_u32 {tq}, {tu}, 3, {tq}")
    A(f"v_add_u32 {tq}, {L_WQ}, {tq}")
    for ct in range(4):
        A(f"v_xor_b32 {tu}, {ct}, {tr}")
        A(f"v_lshl_add_u32 {c.wq[ct]}, {tu}, 6, {tq}")
    c.xs, c.xa, c.xq1 = V.alloc(1), V.alloc(1), V.alloc(1)
    A(f"v_and_b32 {tq}, 15, {lane}")
    A(f"v_lshlrev_b32 {tq}, 4, {tq}")
    A(f"v_bfe_u32 {tr}, {lane}, 4, 1")
    A(f"v_lshrrev_b32 {tu}, 5, {lane}")
    A(f"v_lshl_add_u32 {c.xs}, {tr}, 12, {tq}")
    A(f"v_lshl_add_u32 {c.xs}, {tu}, 11, {c.xs}")
    A(f"v_lshl_add_u32 {tq}, {tr}, 3, {tq}")
    A(f"v_lshl_add_u32 {c.xa}, {tu}, 11, {tq}")
    A(f"v_mov_b32 {tu}, {OOB}")
    A(f"v_cndmask_b32_e64 {c.xq1}, {tq}, {tu}, {sHI}")
    V.release(tq, tu, tr)


def compute_role(c0):
    c = Ctx(c0.V.clone())
    c.__dict__.update({k: v for k, v in c0.__dict__.items() if k not in ("V", "cold")})
    V = c.V
    lane = c.lane
    wm = V.alloc(20, 4)
    cv = V.alloc(5)
    t, co, wo = V.alloc(1), V.alloc(1), V.alloc(1)
    A(f"v_lshrrev_b32 {t}, 1, {lane}")
    A(f"s_lshl_b32 {t0}, {sW4}, 5")
    A(f"v_add_u32 {t}, {t0}, {t}")
    A(f"v_lshlrev_b32 {co}, 1, {t}")
    A(f"v_mul_u32_u24 {wo}, 0x1e00, {t}")
    A(f"v_and_b32 {t}, 1, {lane}")
    A(f"v_lshl_add_u32 {wo}, {t}, 4, {wo}")
    srd_words((sWM, sCC, sWS, sX))
    A(f"s_mul_i32 {t3}, {sG}, 10")
    A(f"s_mul_i32 {t2}, {sG}, 20")
    A(f"s_add_u32 {t2}, {t2}, 70")
    A(f"s_cmp_lt_u32 {sJ}, 10")
    A(f"s_cselect_b32 {t3}, {t3}, {t2}")
    A(f"s_add_u32 {t3}, {t3}, {sJ}")
    A(f"s_lshl_b32 {t2}, {t3}, 5")
    A(f"s_cmp_lt_u32 {sJ}, {10 if OPT.get('exp1') else 30}")
    A(f"s_cselect_b32 {t2}, {t2}, {OOB}")
    xr = V.alloc(12, 4)
    xo, x3, cl, tok = V.alloc(1), V.alloc(1), V.alloc(1), V.alloc(1)
    A(f"v_and_b32 {cl}, 31, {lane}")
    A(f"v_lshrrev_b32 {tok}, 5, {lane}")
    A(f"s_lshl_b32 {t0}, {sJ}, 3")
    A(f"s_lshl_b32 {t1}, {sW4}, 1")
    A(f"s_add_u32 {t0}, {t0}, {t1}")
    A(f"v_add_u32 {tok}, {t0}, {tok}")
    A(f"v_mul_u32_u24 {xo}, 0x500, {tok}")
    A(f"v_lshl_add_u32 {xo}, {cl}, 4, {xo}")
    A(f"s_mul_i32 {t1}, {sG}, {ACT}")
    A(f"v_mov_b32 {x3}, {OOB}")
    A(f"v_cmp_gt_u32 {p1}, 16, {cl}")
    A(f"v_cndmask_b32_e64 {x3}, {x3}, {xo}, {p1}")
    A("s_waitcnt lgkmcnt(0)")
    A(f"s_load_dword {sT[0]}, {sWS[0:2]}, {WS_E}")
    c.stamp("z_karg", "s")
    for p in range(5):
        A(f"buffer_load_ushort {cv[p]}, {co}, {sCC}, 0 offen offset:{256 * p}")
    for p in range(5):
        A(f"buffer_load_dwordx4 {wm[4 * p:4 * p + 4]}, {wo}, {sWM}, {t2} offen{' nt' if OPT['nt0'] else ''}")
        if p < 4:
            A(f"s_add_u32 {t2}, {t2}, {128 * 7680}")
    A(f"buffer_load_dwordx4 {xr[0:4]}, {xo}, {sX}, {t1} offen{' nt' if OPT['nt0'] else ''}")
    A(f"buffer_load_dwordx4 {xr[4:8]}, {xo}, {sX}, {t1} offen offset:512{' nt' if OPT['nt0'] else ''}")
    A(f"buffer_load_dwordx4 {xr[8:12]}, {x3}, {sX}, {t1} offen offset:1024{' nt' if OPT['nt0'] else ''}")
    c.stamp("z_bs", "s")
    V.release(xo, x3, wo, c.dummy)
    late_setup()
    e = V.alloc(5)
    for i in range(5):
        A(f"v_lshlrev_b32 {cv[i]}, 16, {cv[i]}")
    c.stamp("z_c", "s")
    for op in (f"v_mul_f32 {{e}}, {hex(f32(-LOG2E))}, {{s}}", "v_exp_f32 {e}, {e}", "v_add_f32 {e}, 1.0, {e}", "v_rcp_f32 {e}, {e}",
               "v_mul_f32 {s}, {s}, {e}", "v_cvt_pk_bf16_f32 {e}, 0, {s}", "v_cvt_pk_bf16_f32 {s}, {s}, 0"):
        for i in range(5):
            A(op.format(e=e[i], s=cv[i]))
    acc = V.alloc(8)
    for p in range(5):
        for i in range(4):
            for h, m in ((0, cv), (1, e)):
                A(f"v_dot2_f32_bf16 {acc[2 * i + h]}, {wm[4 * p + i]}, {m[p]}, {'0' if p == 0 else acc[2 * i + h]}")
    c.stamp("s_wmod")
    for i in range(4):
        A(f"v_permlane32_swap_b32 {acc[i]}, {acc[i + 4]}")
    for i in range(4):
        A(f"v_add_f32 {acc[i]}, {acc[i]}, {acc[i + 4]}")
    for i in range(2):
        A(f"v_permlane16_swap_b32 {acc[i]}, {acc[i + 2]}")
    r = V.alloc(2)
    for i in range(2):
        A(f"v_add_f32 {r[i]}, {acc[i]}, {acc[i + 2]}")
    for m in ("row_ror:8", "row_ror:4", "row_ror:2"):
        for i in range(2):
            A(f"v_add_f32_dpp {r[i]}, {r[i]}, {r[i]} {m} row_mask:0xf bank_mask:0xf")
    A(f"v_lshlrev_b32 {t}, 5, {t}")
    A(f"v_lshrrev_b32 {co}, 4, {lane}")
    A(f"v_lshl_add_u32 {t}, {co}, 3, {t}")
    A(f"s_lshl_b32 {t0}, {sW4}, 6")
    A(f"v_add_u32 {t}, {t0}, {t}")
    A(f"ds_write_b64 {t}, {r} offset:{L_PART}")
    tag_setup()
    A("s_barrier")
    skip, join = lab("nopub"), lab("pubdone")
    A(f"s_cmp_lg_u32 {sW4}, 0")
    A.branch(f"s_cbranch_scc1 {skip}")
    pr, gr = wm[0:16], wm[16:20]
    A("s_mov_b64 exec, 15")
    for p in range(4):
        A(f"ds_read_b128 {pr[4 * p:4 * p + 4]}, {c.l16} offset:{L_PART + 64 * p}")
    A(f"s_lshl_b32 {t0}, {t3}, 7")
    A(f"s_add_u32 {t0}, {t0}, {WS_MOD}")
    A(f"s_cmp_lt_u32 {sJ}, 30")
    A(f"s_cselect_b32 {t0}, {t0}, {OOB}")
    A(f"v_mov_b32 {gr[2]}, {sT[0]}")
    A(f"v_mov_b32 {gr[3]}, {sT[1]}")
    for p in range(1, 4):
        for i in range(4):
            A(f"v_add_f32 {pr[i]}, {pr[i]}, {pr[4 * p + i]}")
    A(f"v_cvt_pk_bf16_f32 {gr[0]}, {pr[0]}, {pr[1]}")
    A(f"v_cvt_pk_bf16_f32 {gr[1]}, {pr[2]}, {pr[3]}")
    A(f"buffer_store_dwordx4 {gr}, {c.l16}, {sWS}, {t0} offen sc1")
    A("s_mov_b64 exec, -1")
    A("s_waitcnt vmcnt(1)")
    A.branch(f"s_branch {join}")
    A.label(skip)
    A("s_waitcnt vmcnt(0)")
    A.label(join)
    V.release(wm, cv, e, acc, r, t, co)
    c.stamp("s_pub")
    xf = V.alloc(24, 2)
    mean, var, tmp, m3 = V.alloc(1), V.alloc(1), V.alloc(1), V.alloc(1)
    for i in range(12):
        unpack(xf[2 * i], xf[2 * i + 1], xr[i])
    A(f"v_add_f32 {mean}, {xf[0]}, {xf[1]}")
    for i in range(2, 24):
        A(f"v_add_f32 {mean}, {mean}, {xf[i]}")
    sum16(mean)
    xor16_add(mean, tmp)
    A(f"v_mul_f32 {mean}, {hex(f32(1 / 640))}, {mean}")
    A(f"v_cndmask_b32_e64 {m3}, 0, {mean}, {p1}")
    d = xr
    for i in range(24):
        A(f"v_sub_f32 {d[i % 4]}, {xf[i]}, {mean if i < 16 else m3}")
        if i == 0:
            A(f"v_mul_f32 {var}, {d[0]}, {d[0]}")
        else:
            A(f"v_fmac_f32 {var}, {d[i % 4]}, {d[i % 4]}")
    sum16(var)
    xor16_add(var, tmp)
    A(f"v_mul_f32 {var}, {hex(f32(1 / 640))}, {var}")
    ln_scalars(mean, var, tmp)
    for i in range(0, 24, 2):
        A(f"v_sub_f32 {xf[i]}, {xf[i]}, {mean}")
        A(f"v_sub_f32 {xf[i + 1]}, {xf[i + 1]}, {mean}")
        round_pair(xf[i], xf[i + 1], tmp)
        A(f"v_mul_f32 {xf[i]}, {xf[i]}, {var}")
        A(f"v_mul_f32 {xf[i + 1]}, {xf[i + 1]}, {var}")
        round_pair(xf[i], xf[i + 1], tmp)
    V.release(mean, var, m3)
    c.stamp("z_ln", "s")
    qkv_role()
    qkv_addr(c)
    hao, ha3, ma, m3a = V.alloc(1), V.alloc(1), V.alloc(1), V.alloc(1)
    A(f"v_lshrrev_b32 {hao}, 5, {tok}")
    A(f"v_mul_u32_u24 {hao}, 0xa000, {hao}")
    A(f"v_and_b32 {ha3}, 31, {tok}")
    A(f"v_lshl_add_u32 {hao}, {ha3}, 4, {hao}")
    A(f"v_lshl_add_u32 {hao}, {cl}, 9, {hao}")
    A(f"v_mov_b32 {ha3}, {OOB}")
    A(f"v_cndmask_b32_e64 {ha3}, {ha3}, {hao}, {p1}")
    A(f"v_lshlrev_b32 {ma}, 5, {cl}")
    A(f"v_and_b32 {m3a}, 15, {cl}")
    A(f"v_lshlrev_b32 {m3a}, 5, {m3a}")
    V.release(cl, tok)
    ga, gb = V.alloc(4, 4), V.alloc(4, 4)
    a2, a3 = V.alloc(1), V.alloc(1)
    a1 = V.alloc(1)
    A(f"s_mul_i32 {t1}, {sW4}, 1280")
    A(f"s_lshl_b32 {t2}, {t1}, 1")
    A(f"s_add_u32 {t2}, {t2}, {WS_MOD}")
    A(f"s_lshl_b32 {t3}, {sG}, 9")
    A(f"s_lshl_b32 {t4}, {sW4}, 7")
    A(f"s_add_u32 {t3}, {t3}, {t4}")
    A(f"s_add_u32 {t3}, {t3}, {WS_CENSUS}")
    A(f"s_add_u32 {t4}, {t2}, 2048")
    A(f"v_and_b32 {a2}, 3, {lane}")
    A(f"v_lshlrev_b32 {a2}, 4, {a2}")
    A(f"v_lshrrev_b32 {a1}, 2, {lane}")
    A(f"v_lshl_add_u32 {a1}, {a1}, 7, {a2}")
    A(f"v_and_b32 {ga[0]}, 0x1ff, {a1}")
    A(f"v_add_u32 {ga[0]}, {t4}, {ga[0]}")
    A(f"v_and_b32 {a3}, 7, {lane}")
    A(f"v_lshl_add_u32 {a3}, {a3}, 4, {t3}")
    A(f"v_cndmask_b32_e64 {a3}, {ga[0]}, {a3}, {sHI}")
    A(f"v_and_b32 {a2}, 15, {lane}")
    A(f"v_lshlrev_b32 {a2}, 4, {a2}")
    c.stamp("s_pre")

    def chk():
        A(f"v_xor_b32 {ga[3]}, {sT[1]}, {ga[3]}")
        A(f"v_xor_b32 {gb[3]}, {sT[1]}, {gb[3]}")
        A(f"v_cmp_ne_u32 vcc, {sT[0]}, {ga[2]}")
        A(f"v_cmp_ne_u32 {p0}, {sT[0]}, {gb[2]}")
        A(f"v_or_b32 {tmp}, {ga[3]}, {gb[3]}")
        A(f"s_or_b64 vcc, vcc, {p0}")
        A(f"v_cmp_lt_u32 {p0}, 15, {tmp}")
        A(f"s_or_b64 vcc, vcc, {p0}")
    poll(c, [f"buffer_load_dwordx4 {ga}, {a1}, {sWS}, {t2} offen sc1",
             f"buffer_load_dwordx4 {gb}, {a3}, {sWS}, 0 offen sc1"], chk, acquire=False, backoff=OPT.get("gsleep", 0))
    V.release(a1)
    c.stamp("s_gath")
    A(f"v_cmp_ne_u32 vcc, {sXCC}, {gb[3]}")
    A(f"s_cmp_lg_u32 vcc_hi, 0")
    A(f"s_cselect_b32 {t3}, 1, {OPT['force_slow']}")
    A(f"s_cmp_ge_u32 {sW4}, 2")
    A(f"s_cselect_b32 {t4}, 1.0, 0")
    fa, fb = V.alloc(4, 4), V.alloc(4, 4)
    for g_, f_ in ((ga, fa), (gb, fb)):
        unpack(f_[0], f_[1], g_[0])
        unpack(f_[2], f_[3], g_[1])
        for i in range(4):
            A(f"v_add_f32 {f_[i]}, {t4}, {f_[i]}")
        round_pair(f_[0], f_[1], tmp)
        round_pair(f_[2], f_[3], tmp)
    A(f"s_add_u32 {t1}, {t1}, {L_MOD1F}")
    A(f"v_add_u32 {ga[0]}, {t1}, {c.l16}")
    A(f"v_add_u32 {a2}, {t1}, {a2}")
    A(f"s_lshl_b32 {t0}, {sW4}, 2")
    A(f"v_mov_b32 {ga[1]}, {t0}")
    A(f"v_mov_b32 {ga[2]}, {t3}")
    A(f"v_mov_b32 {ga[3]}, 0")
    A(f"v_mov_b32 {a3}, 1")
    A(f"ds_write_b128 {ga[0]}, {fa}")
    A("s_mov_b64 exec, 0xffff")
    A(f"ds_write_b128 {a2}, {fb} offset:1024")
    A("s_mov_b64 exec, 1")
    A(f"ds_write_b32 {ga[1]}, {ga[2]} offset:{L_MODEF}")
    A(f"ds_add_u32 {ga[3]}, {a3} offset:{L_CNT + 4}")
    A("s_mov_b64 exec, -1")
    V.release(gb, fa, fb, a2, a3)
    c.stamp("z_cvt", "s")
    lds_spin(c, L_CNT + 4, 4)
    c.stamp("z_spin", "s")
    A(f"v_mov_b32 {ga[0]}, 0")
    A(f"ds_read_b128 {ga}, {ga[0]} offset:{L_MODEF}")
    sc, sh = V.alloc(24, 4), V.alloc(24, 4)
    for k in range(3):
        ad = ma if k < 2 else m3a
        for h in range(2):
            A(f"ds_read_b128 {sc[8 * k + 4 * h:8 * k + 4 * h + 4]}, {ad} offset:{L_MOD1F + 2560 + 1024 * k + 16 * h}")
            A(f"ds_read_b128 {sh[8 * k + 4 * h:8 * k + 4 * h + 4]}, {ad} offset:{L_MOD1F + 1024 * k + 16 * h}")
    A(f"v_or_b32 {ga[0]}, {ga[0]}, {ga[1]}")
    A(f"v_or3_b32 {ga[0]}, {ga[0]}, {ga[2]}, {ga[3]}")
    A(f"v_readfirstlane_b32 {sMODE}, {ga[0]}")
    hd = V.alloc(12, 4)
    A(f"s_mul_i32 {t5}, {sG}, {ACT}")
    add_base(t5, WS_H1, WS_A, t6)
    A(f"s_add_u32 {t6}, {t5}, 16384")
    A(f"s_add_u32 {t7}, {t5}, 32768")
    for k in range(3):
        for i in range(8 * k, 8 * k + 8, 2):
            if OPT["mim"] & 1:
                A(f"v_pk_mul_f32 {xf[i:i + 2]}, {xf[i:i + 2]}, {sc[i:i + 2]}")
                round_pair(xf[i], xf[i + 1], tmp)
                A(f"v_pk_add_f32 {xf[i:i + 2]}, {xf[i:i + 2]}, {sh[i:i + 2]}")
            else:
                A(f"v_pk_fma_f32 {xf[i:i + 2]}, {xf[i:i + 2]}, {sc[i:i + 2]}, {sh[i:i + 2]}")
            A(f"v_cvt_pk_bf16_f32 {hd[i // 2]}, {xf[i]}, {xf[i + 1]}")
        A(f"buffer_store_dwordx4 {hd[4 * k:4 * k + 4]}, {ha3 if k == 2 else hao}, {sWS}, {(t5, t6, t7)[k]} offen")
    V.release(xf, xr, sc, sh, ma, m3a, hao, ha3, ga)
    c.stamp("z_h1st", "s")
    signal(c, 0)
    V.release(hd)
    c.stamp("s_h1")
    sA = t6
    A(f"s_lshl_b32 {t4}, {sRH}, 2")
    A(f"s_add_u32 {t4}, {t4}, {sW4}")
    A(f"s_mul_i32 {sA}, {t4}, 40960")
    A(f"s_mul_i32 {t0}, {sRH}, 20480")
    A(f"s_add_u32 {sA}, {sA}, {t5}")
    A(f"s_add_u32 {sA}, {sA}, {t0}")
    A(f"s_mul_i32 {t7}, {sRH}, 40960")
    A(f"s_sub_u32 {t7}, 4096, {t7}")
    A(f"s_lshl_b32 {t1}, {t4}, 6")
    wait_edge(c, 0, t1)
    V.release(tmp)
    c.stamp("s_e1")
    D = OPT["qd"]
    ring = [V.alloc(4, 4) for _ in range(D)]
    W = [V.alloc(16, 4), V.alloc(16, 4)]
    acc = [V.alloc(16, 4) for _ in range(4)]

    def loadA(p):
        A(f"buffer_load_dwordx4 {ring[p % D]}, {c.l16}, {sWS}, {sA} offen offset:{(p % 4) * 1024} sc1")
        if p % 4 == 3 and p < 39:
            A(f"s_add_u32 {sA}, {sA}, {t7 if p == 19 else 4096}")

    def readW(p, ct):
        slot = p if p < 37 else p - 37
        if p in (16, 32):
            A(f"v_add_u32 {c.wq[ct]}, {16 * 4096}, {c.wq[ct]}")
        if p == 37:
            A(f"v_subrev_u32 {c.wq[ct]}, {32 * 4096}, {c.wq[ct]}")
        for u in range(2):
            A(f"ds_read_b64_tr_b16 {W[p & 1][4 * ct + 2 * u:4 * ct + 2 * u + 2]}, {c.wq[ct]} offset:{(slot % 16) * 4096 + 1024 * u}")

    issued = OPT["qinit"]
    for p in range(issued):
        loadA(p)
    bump(c, L_CNT + 8)
    A("s_barrier")
    c.stamp("z_q0", "q")
    for ct in range(4):
        readW(0, ct)
    for p in range(40):
        nxt = p + 1 < 40
        if nxt and (p + 1) % 8 == 0:
            if p + 1 == 8:
                A("s_waitcnt lgkmcnt(0)")
            A("s_barrier")
            c.stamp("z_q%d" % ((p + 1) // 8), "q")
        for ct in range(4):
            A(f"v_mfma_f32_32x32x16_bf16 {acc[ct]}, {W[p & 1][4 * ct:4 * ct + 4]}, {ring[p % D]}, {'0' if p == 0 else acc[ct]}")
            if nxt:
                readW(p + 1, ct)
            if ct in (0, 2) and issued < min(40, p + D) and (ct == 0 or p % 2 == 0):
                loadA(issued)
                issued += 1
    V.release(ring, W, c.wq)
    A("s_barrier")
    c.stamp("q_loop")
    noq = lab("noq")
    A(f"s_mul_i32 {t5}, {sG}, {QKVG}")
    A(f"s_add_u32 {t5}, {t5}, {WS_QKV}")
    A(f"s_lshl_b32 {t0}, {sCB}, 16")
    A(f"s_lshl_b32 {t1}, {t4}, 8")
    A(f"s_add_u32 {t0}, {t0}, {t1}")
    A(f"s_add_u32 {t0}, {t0}, {t5}")
    A(f"s_cmp_lt_u32 {sJ}, 30")
    A(f"s_cselect_b32 {t2}, {t0}, {OOB}")
    A(f"s_mov_b32 {p0[0]}, {hex(QSCALE)}")
    A(f"s_mov_b32 {p0[1]}, {hex(QSCALE)}")
    A(f"s_cmp_ge_u32 {sCB}, 5")
    A.branch(f"s_cbranch_scc1 {noq}")
    for ct in range(4):
        for r in range(0, 16, 2):
            A(f"v_pk_mul_f32 {acc[ct][r:r + 2]}, {acc[ct][r:r + 2]}, {p0}")
    A.label(noq)
    pk = V.alloc(32, 4)
    for ct in range(4):
        for ap in range(2):
            d_ = pk[8 * ct + 4 * ap:8 * ct + 4 * ap + 4]
            for i in range(4):
                A(f"v_cvt_pk_bf16_f32 {d_[i]}, {acc[ct][8 * ap + 2 * i]}, {acc[ct][8 * ap + 2 * i + 1]}")
        for ap in range(2):
            d_ = pk[8 * ct + 4 * ap:8 * ct + 4 * ap + 4]
            for i in range(2):
                A(f"v_permlane16_swap_b32 {d_[i]}, {d_[2 + i]}")
            A(f"buffer_store_dwordx4 {d_}, {c.xs}, {sWS}, {t2} offen{'' if OPT.get('xplain') else ' sc1'}")
            if (ct, ap) != (3, 1):
                A(f"s_add_u32 {t2}, {t2}, 8192")
    V.release(c.xs)
    V.release(acc)
    c.stamp("z_st", "x")
    att_masks(c)
    att_addr(c)
    A(f"s_lshl_b32 {t0}, {sW4}, 1")
    A(f"s_add_u32 {t0}, {t0}, 2")
    A(f"s_cmp_eq_u32 {sG}, 0")
    A(f"s_cselect_b32 {sHOOK}, {t0}, 99")
    fa_, fd = V.alloc(1), V.alloc(1)
    nosig = lab("xnosig")
    A(f"s_lshl_b32 {t0}, {sG}, 12")
    A(f"s_add_u32 {t0}, {t0}, {WS_XFLAG}")
    A(f"s_lshl_b32 {t1}, {sJ}, 7")
    A(f"s_add_u32 {t1}, {t1}, {t0}")
    A(f"v_mov_b32 {fa_}, 0")
    A(f"v_mov_b32 {fd}, 1")
    A("s_mov_b64 exec, 1")
    A("s_waitcnt vmcnt(0)")
    A(f"ds_add_rtn_u32 {fd}, {fa_}, {fd} offset:{L_CNT}")
    A(f"v_readfirstlane_b32 {t2}, {fd}")
    A(f"v_mov_b32 {fd}, {sT[0]}")
    A(f"s_cmp_lg_u32 {t2}, 3")
    A.branch(f"s_cbranch_scc1 {nosig}", noflush=True)
    A(f"buffer_store_dword {fd}, {fa_}, {sWS}, {t1} offen sc1")
    A.label(nosig)
    A("s_mov_b64 exec, -1")
    V.release(pk)
    c.stamp("x_sig")
    A(f"s_cmp_lt_u32 {sW4}, 2")
    A(f"s_cselect_b32 {t3}, 1, 0")
    A(f"s_min_u32 {t2}, {t3}, {sG}")
    A(f"s_lshl_b32 {t1}, {t2}, 12")
    A(f"s_sub_u32 {t1}, {t0}, {t1}")
    A(f"s_mul_i32 {t2}, {t2}, {QKVG}")
    A(f"s_sub_u32 {t6}, {t5}, {t2}")
    A(f"s_cmp_gt_u32 {t3}, {sG}")
    A(f"s_cselect_b32 {t6}, {OOB}, {t6}")
    x_, y_ = V.alloc(1), V.alloc(1)
    A(f"v_min_u32 {x_}, 5, {lane}")
    A(f"v_lshrrev_b32 {y_}, 1, {x_}")
    A(f"v_mul_u32_u24 {fa_}, 0xa0, {y_}")
    A(f"v_and_b32 {x_}, 1, {x_}")
    A(f"v_lshl_add_u32 {fa_}, {x_}, 2, {fa_}")
    A(f"s_mul_i32 {t2}, {sJ}, 5")
    A(f"v_add_u32 {fa_}, {t2}, {fa_}")
    A(f"v_lshrrev_b32 {fa_}, 5, {fa_}")
    A(f"v_lshlrev_b32 {fa_}, 7, {fa_}")
    A(f"s_lshr_b32 {t2}, {sW4}, 1")
    A(f"s_mul_i32 {t2}, {t2}, {15 * 128}")
    A(f"s_add_u32 {t0}, {t0}, {t2}")
    A(f"s_and_b32 {t2}, {sW4}, 1")
    A(f"s_mul_i32 {t3}, {t2}, {15 * 128}")
    A(f"s_add_u32 {t1}, {t1}, {t3}")
    A(f"v_mov_b32 {x_}, {t1}")
    A(f"v_mov_b32 {fd}, {t0}")
    A(f"v_cmp_eq_u32 vcc, 0, {y_}")
    A(f"v_cndmask_b32 {x_}, {x_}, {fd}, vcc")
    A(f"v_add_u32 {fa_}, {fa_}, {x_}")
    V.release(x_, y_)
    A(f"s_lshl_b32 {t2}, {t2}, 10")
    A(f"s_add_u32 {t6}, {t6}, {t2}")
    A(f"s_mul_i32 {t2}, {sJ}, {5 * 2048}")
    A(f"s_add_u32 {t5}, {t5}, {t2}")
    A(f"s_add_u32 {t6}, {t6}, {t2}")
    A(f"s_add_u32 {t6}, {t6}, {160 * 2048}")
    A(f"s_lshl_b32 {t7}, {sW4}, 10")
    A(f"s_lshl_b32 {t2}, {sW4}, 9")
    A(f"s_add_u32 {t5}, {t5}, {t2}")
    poll(c, [f"buffer_load_dword {fd}, {fa_}, {sWS}, 0 offen sc1"], lambda: A(f"v_cmp_ne_u32 vcc, {sT[0]}, {fd}"), backoff=OPT.get("xsleep", 0))
    V.release(fa_, fd)
    c.stamp("x_flag")
    for arr in range(10):
        A(f"s_add_u32 m0, {t7}, {L_K + KVS * arr}")
        kv_tag = A.tagged(f"buffer_load_dwordx4 {c.l16}, {sWS}, {t6} offen sc1 lds")
        if arr < 9:
            A(f"s_add_u32 {t6}, {t6}, {2048 if arr != 4 else 156 * 2048}")
    c.Q0, c.Q1 = [V.alloc(4, 4), V.alloc(4, 4)], [V.alloc(2), V.alloc(2)]
    A(f"s_add_u32 {t1}, {t5}, 4096")
    A(f"s_add_u32 {t2}, {t5}, 8192")
    for st in range(2):
        of = 256 * (1 - st)
        A(f"buffer_load_dwordx2 {c.Q0[st][0:2]}, {c.xa}, {sWS}, {t5} offen offset:{of} sc1")
        A(f"buffer_load_dwordx2 {c.Q0[st][2:4]}, {c.xa}, {sWS}, {t1} offen offset:{of} sc1")
        q_tag = A.tagged(f"buffer_load_dwordx2 {c.Q1[st]}, {c.xq1}, {sWS}, {t2} offen offset:{of} sc1")
    V.release(c.xa, c.xq1)
    oa = [V.alloc(1) for _ in range(3)]
    xt = V.alloc(10, 2)
    tokb, gq, wa = V.alloc(1), V.alloc(1), V.alloc(1)
    dd, t, u = V.alloc(4, 4), V.alloc(1), V.alloc(1)
    mo = V.alloc(1)
    A(f"s_mul_i32 {t2}, {sW4}, 40")
    A(f"s_mul_i32 {t3}, {sN}, 5")
    A(f"s_add_u32 {t2}, {t2}, {t3}")
    A(f"s_lshl_b32 {t2}, {t2}, 7")
    A(f"s_add_u32 {t4}, {t2}, {WS_MOD + 80 * 128}")
    A(f"v_min_u32 {t}, 19, {lane}")
    A(f"v_and_b32 {u}, 3, {t}")
    A(f"v_lshrrev_b32 {mo}, 2, {t}")
    A(f"v_lshlrev_b32 {mo}, 7, {mo}")
    A(f"v_lshl_add_u32 {mo}, {u}, 4, {mo}")
    A(f"buffer_load_dwordx4 {dd}, {mo}, {sWS}, {t4} offen sc1")
    A(f"v_and_b32 {t}, 15, {lane}")
    A(f"s_lshl_b32 {t0}, {sI}, 6")
    A(f"s_lshl_b32 {t1}, {sW4}, 4")
    A(f"s_add_u32 {t0}, {t0}, {t1}")
    A(f"v_add_u32 {tokb}, {t0}, {t}")
    A(f"v_mul_u32_u24 {u}, 0x500, {tokb}")
    A(f"v_lshrrev_b32 {gq}, 4, {lane}")
    A(f"s_mul_i32 {t1}, {sN}, 160")
    A(f"v_lshl_add_u32 {t}, {gq}, 3, {t1}")
    A(f"v_add_u32 {u}, {u}, {t}")
    A(f"s_mul_i32 {t1}, {sG}, {ACT}")
    for ct in range(5):
        A(f"buffer_load_dwordx2 {xt[2 * ct:2 * ct + 2]}, {u}, {sX}, {t1} offen offset:{32 * ct}")
    hi, x_ = V.alloc(1), V.alloc(1)
    A(f"v_lshrrev_b32 {hi}, 5, {lane}")
    A(f"s_mul_i32 {t0}, {sJ}, 5")
    A(f"v_bfe_u32 {t}, {lane}, 4, 1")
    A(f"v_mul_u32_u24 {t}, 0x5000, {t}")
    A(f"v_and_b32 {u}, 15, {lane}")
    A(f"v_lshl_add_u32 {t}, {u}, 4, {t}")
    for k in range(3):
        A(f"s_add_u32 {t1}, {t0}, {2 * k}")
        A(f"v_add_u32 {u}, {t1}, {hi}")
        A(f"v_lshrrev_b32 {oa[k]}, 2, {u}")
        A(f"v_lshl_add_u32 {oa[k]}, {oa[k]}, 9, {t}")
        A(f"v_and_b32 {x_}, 1, {u}")
        A(f"v_lshl_add_u32 {oa[k]}, {x_}, 8, {oa[k]}")
        A(f"v_bfe_u32 {x_}, {u}, 1, 1")
        A(f"v_lshl_add_u32 {oa[k]}, {x_}, 3, {oa[k]}")
    A(f"v_mov_b32 {u}, {OOB}")
    A(f"v_cndmask_b32_e64 {oa[2]}, {oa[2]}, {u}, {sHI}")
    wtile_addr(c, L_WO, 10 * 5120, wa, t, u)
    V.release(hi, x_, u)
    A(f"s_mul_i32 {t5}, {sG}, {ACT}")
    add_base(t5, WS_O, WS_A, t1)
    A(f"s_mul_i32 {t1}, {sW4}, 81920")
    A(f"s_add_u32 {t6}, {t1}, {t5}")
    A(f"s_add_u32 {t7}, {t6}, 40960")
    A.wait_vm(q_tag)
    A("s_barrier")
    c.stamp("x_kv")

    def store_o(st):
        for k in range(3):
            A(f"buffer_store_dwordx2 {c.op[st][2 * k:2 * k + 2]}, {oa[k]}, {sWS}, {(t7, t6)[st]} offen")
    c.store_o = store_o
    attention(c)
    c.stamp("a_end")
    signal(c, 1)
    V.release(oa)
    u = gq
    c.stamp("a_sig")
    again, have = lab("modagain"), lab("modhave")
    check_tags([dd[2:4]])()
    A.branch(f"s_cbranch_vccnz {again}")
    A.label(have)

    def cold_mod(dd=dd, mo=mo):
        A.label(again)
        poll(c, [f"buffer_load_dwordx4 {dd}, {mo}, {sWS}, {t4} offen sc1"], check_tags([dd[2:4]]), acquire=False)
        A.branch(f"s_branch {have}")
    c.cold.append(cold_mod)
    tm = V.alloc(1)
    A(f"s_cmp_eq_u32 {sW4}, 2")
    A(f"s_cselect_b32 {t3}, 1.0, 0")
    unpack(dd[2], dd[3], dd[1])
    A(f"v_and_b32 {dd[1]}, 0xffff0000, {dd[0]}")
    A(f"v_lshlrev_b32 {dd[0]}, 16, {dd[0]}")
    for i in range(4):
        A(f"v_add_f32 {dd[i]}, {t3}, {dd[i]}")
    round_pair(dd[0], dd[1], tm)
    round_pair(dd[2], dd[3], tm)
    A(f"s_mul_i32 {t2}, {sW4}, 320")
    A(f"v_min_u32 {mo}, 19, {lane}")
    A(f"v_lshl_add_u32 {mo}, {mo}, 4, {t2}")
    A(f"ds_write_b128 {mo}, {dd} offset:{L_MOD2F}")
    tile_streams((WS_O, WS_A), ACT, 20480, 10240, t6, t7)
    A(f"s_lshl_b32 {t1}, {sI}, 7")
    A(f"s_add_u32 {t2}, {t1}, 64")
    wait_edge(c, 1, t1, t2)
    A("s_waitcnt lgkmcnt(0)")
    V.release(dd, mo, tm)
    c.stamp("b_e2")
    acc = tile_gemm(c, 10, t6, t7, OPT["binit"], 10, lambda ks: (wa, ks * 5120), {0})
    c.stamp("b_loop")
    V.release(wa)
    mv = V.alloc(20, 4)
    ma = V.alloc(1)
    A(f"v_lshlrev_b32 {ma}, 4, {u}")
    for ct in range(5):
        A(f"ds_read_b128 {mv[4 * ct:4 * ct + 4]}, {ma} offset:{L_MOD2F + 64 * ct}")
    a = tile_reduce(c, acc, L_RED)
    c.stamp("z_red", "b")
    x1 = V.alloc(20, 2)
    c.x1p = V.alloc(10)
    tmp = V.alloc(1)
    for i in range(0, 20, 2):
        round_pair(a[i], a[i + 1], tmp)
        A(f"v_pk_mul_f32 {a[i:i + 2]}, {a[i:i + 2]}, {mv[i:i + 2]}")
        round_pair(a[i], a[i + 1], tmp)
        unpack(x1[i], x1[i + 1], xt[i // 2])
        A(f"v_pk_add_f32 {x1[i:i + 2]}, {x1[i:i + 2]}, {a[i:i + 2]}")
        A(f"v_cvt_pk_bf16_f32 {c.x1p[i // 2]}, {x1[i]}, {x1[i + 1]}")
        unpack(x1[i], x1[i + 1], c.x1p[i // 2])
    V.release(xt)
    c.stamp("z_x1", "b")
    gr = V.alloc(4, 4)
    A(f"v_add_f32 {gr[0]}, {x1[0]}, {x1[1]}")
    for i in range(2, 20):
        A(f"v_add_f32 {gr[0]}, {gr[0]}, {x1[i]}")
    xor16_add(gr[0], tmp)
    xor32_op("v_add_f32", gr[0], tmp)
    A(f"v_mul_f32 {gr[0]}, {hex(f32(1 / 80))}, {gr[0]}")
    for i in range(20):
        A(f"v_sub_f32 {a[i % 4]}, {x1[i]}, {gr[0]}")
        if i == 0:
            A(f"v_mul_f32 {gr[1]}, {a[0]}, {a[0]}")
        else:
            A(f"v_fmac_f32 {gr[1]}, {a[i % 4]}, {a[i % 4]}")
    xor16_add(gr[1], tmp)
    xor32_op("v_add_f32", gr[1], tmp)
    A(f"v_mov_b32 {gr[2]}, {sT[0]}")
    A(f"v_mov_b32 {gr[3]}, {sT[1]}")
    A(f"v_lshlrev_b32 {t}, 7, {tokb}")
    A(f"s_lshl_b32 {t0}, {sG}, 15")
    A(f"s_add_u32 {t0}, {t0}, {WS_STATS}")
    A(f"s_lshl_b32 {t1}, {sN}, 4")
    A(f"s_add_u32 {t1}, {t1}, {t0}")
    slow, done = lab("stslow"), lab("stdone")
    A("s_mov_b64 exec, 0xffff")
    A(f"s_cmp_lg_u32 {sMODE}, 0")
    A.branch(f"s_cbranch_scc1 {slow}", noflush=True)
    A(f"buffer_store_dwordx4 {gr}, {t}, {sWS}, {t1} offen")
    A.label(done)
    A("s_mov_b64 exec, -1")

    def cold_st(gr=gr, t=t, slow=slow, done=done):
        A.label(slow)
        A(f"buffer_store_dwordx4 {gr}, {t}, {sWS}, {t1} offen sc1")
        A.branch(f"s_branch {done}")
    c.cold.append(cold_st)
    c.stamp("z_st", "b")
    c.gbp = V.alloc(10)
    for ct in range(5):
        A(f"ds_read_b128 {mv[4 * ct:4 * ct + 4]}, {ma} offset:{L_MOD2F + 960 + 64 * ct}")
    for i in range(10):
        A(f"v_cvt_pk_bf16_f32 {c.gbp[i]}, {mv[2 * i]}, {mv[2 * i + 1]}")
    sh = a
    for ct in range(5):
        A(f"ds_read_b128 {mv[4 * ct:4 * ct + 4]}, {ma} offset:{L_MOD2F + 640 + 64 * ct}")
        A(f"ds_read_b128 {sh[4 * ct:4 * ct + 4]}, {ma} offset:{L_MOD2F + 320 + 64 * ct}")
    g0, g1 = V.alloc(4, 4), V.alloc(4, 4)
    sa_ = V.alloc(1)
    A(f"v_lshl_add_u32 {sa_}, {u}, 5, {t}")
    poll(c, [f"buffer_load_dwordx4 {g0}, {sa_}, {sWS}, {t0} offen sc1",
             f"buffer_load_dwordx4 {g1}, {sa_}, {sWS}, {t0} offen offset:16 sc1"], check_tags([g0[2:4], g1[2:4]]), acquire=False)
    bump(c, L_CNT + 12)
    c.stamp("b_stat")
    mean, var = gr[0], gr[1]
    A(f"v_add_f32 {mean}, {g0[0]}, {g1[0]}")
    xor16_add(mean, tmp)
    xor32_op("v_add_f32", mean, tmp)
    A(f"v_mul_f32 {mean}, 0x3e000000, {mean}")
    A(f"v_sub_f32 {g0[0]}, {g0[0]}, {mean}")
    A(f"v_sub_f32 {g1[0]}, {g1[0]}, {mean}")
    A(f"v_mul_f32 {g0[0]}, {g0[0]}, {g0[0]}")
    A(f"v_fmac_f32 {g0[0]}, {g1[0]}, {g1[0]}")
    A(f"v_add_f32 {var}, {g0[1]}, {g1[1]}")
    A(f"v_fmac_f32 {var}, {hex(f32(80.0))}, {g0[0]}")
    xor16_add(var, tmp)
    xor32_op("v_add_f32", var, tmp)
    A(f"v_mul_f32 {var}, {hex(f32(1 / 640))}, {var}")
    ln_scalars(mean, var, tmp)
    A(f"v_lshrrev_b32 {t}, 5, {tokb}")
    A(f"v_mul_u32_u24 {t}, 0xa000, {t}")
    A(f"v_and_b32 {sa_}, 31, {tokb}")
    A(f"v_lshl_add_u32 {t}, {sa_}, 4, {t}")
    A(f"v_lshrrev_b32 {sa_}, 1, {u}")
    A(f"v_lshl_add_u32 {t}, {sa_}, 9, {t}")
    A(f"v_and_b32 {sa_}, 1, {u}")
    A(f"v_lshl_add_u32 {t}, {sa_}, 3, {t}")
    A(f"s_mul_i32 {t5}, {sG}, {ACT}")
    add_base(t5, WS_H2, WS_A, t1)
    A(f"s_mul_i32 {t1}, {sN}, 5120")
    A(f"s_add_u32 {t1}, {t1}, {t5}")
    A(f"s_add_u32 {t2}, {t1}, 4096")
    c.stamp("z_sc", "b")
    hp = V.alloc(10, 2)
    for i in range(0, 20, 2):
        A(f"v_sub_f32 {x1[i]}, {x1[i]}, {mean}")
        A(f"v_sub_f32 {x1[i + 1]}, {x1[i + 1]}, {mean}")
        round_pair(x1[i], x1[i + 1], tmp)
        A(f"v_mul_f32 {x1[i]}, {x1[i]}, {var}")
        A(f"v_mul_f32 {x1[i + 1]}, {x1[i + 1]}, {var}")
        round_pair(x1[i], x1[i + 1], tmp)
        A(f"v_pk_mul_f32 {x1[i:i + 2]}, {x1[i:i + 2]}, {mv[i:i + 2]}")
        round_pair(x1[i], x1[i + 1], tmp)
        A(f"v_pk_add_f32 {x1[i:i + 2]}, {x1[i:i + 2]}, {sh[i:i + 2]}")
        A(f"v_cvt_pk_bf16_f32 {hp[i // 2]}, {x1[i]}, {x1[i + 1]}")
        if i % 4 == 2:
            ct = i // 4
            A(f"buffer_store_dwordx2 {hp[2 * ct:2 * ct + 2]}, {t}, {sWS}, {t1 if ct < 4 else t2} offen offset:{1024 * (ct % 4)}")
    c.stamp("z_h2", "b")
    signal(c, 2)
    c.stamp("z_sig", "b")
    V.release(x1, a, mv, ma, gr, g0, g1, sa_, hp, tokb, tmp)
    g0a, g1a = V.alloc(1), V.alloc(1)
    A(f"v_lshrrev_b32 {t}, 5, {lane}")
    A(f"v_bfe_u32 {u}, {lane}, 2, 2")
    A(f"v_lshl_add_u32 {t}, {t}, 3, {u}")
    A(f"v_mul_u32_u24 {t}, 0xc0, {t}")
    A(f"v_bfe_u32 {u}, {lane}, 4, 1")
    A(f"v_mul_u32_u24 {u}, 0x60, {u}")
    A(f"v_add_u32 {t}, {t}, {u}")
    A(f"v_and_b32 {u}, 3, {lane}")
    A(f"v_lshl_add_u32 {g0a}, {u}, 3, {t}")
    A(f"v_add_u32 {g0a}, {L_GU}, {g0a}")
    A(f"v_add_u32 {g1a}, {20 * 3072}, {g0a}")
    ha = V.alloc(1)
    A(f"v_bfe_u32 {t}, {lane}, 4, 1")
    A(f"v_mul_u32_u24 {t}, 0xc000, {t}")
    A(f"v_and_b32 {u}, 15, {lane}")
    A(f"v_lshl_add_u32 {t}, {u}, 4, {t}")
    A(f"v_lshrrev_b32 {u}, 5, {lane}")
    A(f"v_lshl_add_u32 {ha}, {u}, 8, {t}")
    sAc, sH = t6, t7
    A(f"s_mul_i32 {sAc}, {sW4}, 81920")
    A(f"s_add_u32 {sAc}, {sAc}, {t5}")
    A(f"s_mul_i32 {sH}, {sG}, {HBG}")
    A(f"s_mul_i32 {t0}, {sW4}, {4 * 49152}")
    A(f"s_add_u32 {sH}, {sH}, {t0}")
    A(f"s_mul_i32 {t0}, {sJ}, 1536")
    A(f"s_add_u32 {sH}, {sH}, {t0}")
    add_base(sH, WS_HB, WS_B, t0)
    A(f"s_lshl_b32 {t1}, {sW4}, 7")
    A(f"s_add_u32 {t2}, {t1}, 64")
    wait_edge(c, 2, t1, t2)
    V.release(t, u)
    c.stamp("c_e3")
    D = OPT["cd"]
    ring = [V.alloc(4, 4) for _ in range(D)]
    W = [V.alloc(12, 4), V.alloc(12, 4)]
    acc = [[V.alloc(16, 4) for _ in range(3)] for _ in range(2)]
    et = V.alloc(8)
    hq = [V.alloc(4, 4), V.alloc(4, 4)]

    def loadA(n):
        A(f"buffer_load_dwordx4 {ring[n % D]}, {c.l16}, {sWS}, {sAc} offen offset:{(n % 4) * 1024} sc1")
        if n % 4 == 3:
            A(f"s_add_u32 {sAc}, {sAc}, 4096")

    def readW(n, ct):
        s = n % 40
        for u_ in range(2):
            A(f"ds_read_b64_tr_b16 {W[n & 1][4 * ct + 2 * u_:4 * ct + 2 * u_ + 2]}, {g0a if s < 20 else g1a} "
              f"offset:{(s % 20) * 3072 + 768 * u_ + 32 * ct}")

    def glu(p):
        out = []
        for ct in range(3):
            g_, h_ = acc[p][ct], hq[ct & 1]
            for st in range(6):
                for r in range(8):
                    e = et[r]
                    if st == 0:
                        out.append(f"v_mul_f32 {e}, {hex(f32(-LOG2E))}, {g_[r]}")
                    elif st == 1:
                        out.append(f"v_exp_f32 {e}, {e}")
                    elif st == 2:
                        out.append(f"v_add_f32 {e}, 1.0, {e}")
                    elif st == 3:
                        out.append(f"v_rcp_f32 {e}, {e}")
                    elif st == 4:
                        out.append(f"v_mul_f32 {e}, {e}, {g_[8 + r]}")
                    elif r % 2 == 0:
                        out.append(f"v_cvt_pk_bf16_f32 {h_[r // 2]}, {et[r]}, {et[r + 1]}")
            out.append(f"buffer_store_dwordx4 {h_}, {ha}, {sWS}, {sH} offen offset:{512 * ct}{' sc1' if OPT['h_sc1'] else ''}")
        if p == 0:
            out.append(f"s_add_u32 {sH}, {sH}, {2 * 49152}")
        return out

    issued = OPT["cinit"]
    for n in range(issued):
        loadA(n)
    A("s_barrier")
    c.stamp("z_b10", "c")
    for ct in range(3):
        readW(0, ct)
    pend = []
    for n in range(80):
        p, s = divmod(n, 40)
        nxt = n + 1 < 80
        if n + 1 in (8, 16, 24, 32):
            A("s_barrier")
        if n == 41:
            pend = glu(0)
        if n in (10, 20, 30, 40, 50, 60, 70):
            c.stamp("z_n%d" % n, "c")
        for ct in range(3):
            A(f"v_mfma_f32_32x32x16_bf16 {acc[p][ct]}, {W[n & 1][4 * ct:4 * ct + 4]}, {ring[n % D]}, {'0' if s == 0 else acc[p][ct]}")
            if nxt:
                readW(n + 1, ct)
            for _ in range(2 if ct < 2 else 1):
                if pend:
                    A(pend.pop(0))
        for _ in range(2 if n % 3 == 0 else 1):
            if issued < min(80, n + 1 + D):
                loadA(issued)
                issued += 1
    assert not pend
    c.stamp("z_n80", "c")
    barrier()
    c.stamp("c_loop")
    for x in glu(1):
        A(x)
    c.stamp("z_glu", "d")
    signal(c, 3)
    c.stamp("z_sig", "d")
    V.release(ring, W, acc, et, hq, g0a, g1a, ha)
    wa, wb, t = V.alloc(1), V.alloc(1), V.alloc(1)
    wtile_addr(c, L_WD, 0, wa, wb, t)
    A(f"v_add_u32 {wb}, {12 * 5120}, {wa}")
    A(f"s_mul_i32 {t0}, {sG}, {HBG}")
    add_base(t0, WS_HB, WS_B, t1)
    A(f"s_and_b32 {t1}, {sI}, 1")
    A(f"s_mul_i32 {t1}, {t1}, 24576")
    A(f"s_add_u32 {t0}, {t0}, {t1}")
    d_rot(t5, t1)
    A(f"s_lshl_b32 {t1}, {t5}, 12")
    A(f"s_add_u32 {t0}, {t0}, {t1}")
    A(f"s_sub_u32 {t5}, 5, {t5}")
    A(f"s_lshl_b32 {t1}, {sI}, 2")
    A(f"s_add_u32 {t2}, {t1}, {sW4}")
    A(f"s_mul_i32 {t6}, {t2}, 49152")
    A(f"s_add_u32 {t6}, {t6}, {t0}")
    A(f"s_xor_b32 {t2}, {t2}, 4")
    A(f"s_mul_i32 {t7}, {t2}, 49152")
    A(f"s_add_u32 {t7}, {t7}, {t0}")
    fd = V.alloc(1)
    A(f"s_and_b32 {t1}, {sI}, 2")
    A(f"s_lshl_b32 {t1}, {t1}, 7")
    A(f"s_lshl_b32 {t0}, {sG}, 12")
    A(f"s_add_u32 {t0}, {t0}, {t1}")
    A(f"s_add_u32 {t0}, {t0}, {WS_FLAG + 512 * 3}")
    A(f"v_lshlrev_b32 {t}, 2, {lane}")
    poll(c, [f"buffer_load_dword {fd}, {t}, {sWS}, {t0} offen sc1"], lambda: A(f"v_cmp_ne_u32 vcc, {sT[0]}, {fd}"))
    V.release(t, fd)
    c.stamp("d_e4")

    def d_step(st):
        A(f"s_cmp_eq_u32 {t5}, {st}")
        A(f"s_cselect_b32 {t0}, -5, 1")
        A(f"s_lshl_b32 {t0}, {t0}, 12")
        return t0
    acc = tile_gemm(c, 24, t6, t7, OPT["dinit"], OPT["dd"], lambda ks: (wa if ks < 12 else wb, (ks % 12) * 5120), {0, 8, 16},
                    d_step, drain=False)
    V.release(wa, wb)
    c.stamp("z_k24", "d")
    pp, pa = V.alloc(12, 4), V.alloc(1)
    A(f"s_mul_i32 {t4}, {sG}, {ACT}")
    add_base(t4, WS_RS, WS_A, t1)
    A(f"s_and_b32 {t1}, {sI}, 2")
    A(f"s_mul_i32 {t1}, {t1}, 81920")
    A(f"s_add_u32 {t4}, {t4}, {t1}")
    A(f"s_mul_i32 {t1}, {sW4}, 2560")
    A(f"s_add_u32 {t4}, {t4}, {t1}")
    A(f"s_and_b32 {t1}, {sJ}, 15")
    A(f"s_xor_b32 {t2}, {t1}, 8")
    A(f"s_mul_i32 {t1}, {t1}, 10240")
    A(f"s_mul_i32 {t2}, {t2}, 10240")
    A(f"s_add_u32 {t3}, {t4}, {t1}")
    A(f"s_add_u32 {t4}, {t4}, {t2}")
    A(f"v_lshlrev_b32 {pa}, 3, {lane}")
    for i in range(10):
        A(f"v_cvt_pk_bf16_f32 {pp[i]}, {acc[1][2 * i]}, {acc[1][2 * i + 1]}")
        if i in (3, 7):
            A(f"buffer_store_dwordx4 {pp[i - 3:i + 1]}, {c.l16}, {sWS}, {t3} offen offset:{256 * (i - 3)}")
    A(f"buffer_store_dwordx2 {pp[8:10]}, {pa}, {sWS}, {t3} offen offset:2048")
    signal(c, 4)
    f, tmp = V.alloc(2), V.alloc(1)
    od = V.alloc(12, 4)
    lw, lr, go = V.alloc(1), V.alloc(1), V.alloc(3)
    A(f"s_mul_i32 {t2}, {sW4}, 2560")
    A(f"s_add_u32 {t2}, {t2}, {L_OUT}")
    A(f"v_and_b32 {f[0]}, 15, {lane}")
    A(f"v_mul_u32_u24 {f[0]}, 0xa0, {f[0]}")
    A(f"v_lshrrev_b32 {f[1]}, 4, {lane}")
    A(f"v_lshl_add_u32 {f[0]}, {f[1]}, 3, {f[0]}")
    A(f"v_add_u32 {lw}, {t2}, {f[0]}")
    A(f"v_add_u32 {lr}, {t2}, {c.l16}")
    A(f"s_lshl_b32 {t0}, {sI}, 6")
    A(f"s_lshl_b32 {t1}, {sW4}, 4")
    A(f"s_add_u32 {t0}, {t0}, {t1}")
    A(f"s_mul_i32 {t0}, {t0}, 1280")
    A(f"s_mul_i32 {t1}, {sN}, 160")
    A(f"s_add_u32 {t0}, {t0}, {t1}")
    A(f"s_mul_i32 {t1}, {sG}, {ACT}")
    A(f"s_add_u32 {t1}, {t1}, {t0}")
    for k in range(3):
        A(f"v_add_u32 {f[0]}, {64 * k}, {lane}")
        A(f"v_mul_u32_u24 {f[1]}, 0x199a, {f[0]}")
        A(f"v_lshrrev_b32 {f[1]}, 16, {f[1]}")
        A(f"v_mul_u32_u24 {f[1]}, 0x460, {f[1]}")
        A(f"v_lshl_add_u32 {go[k]}, {f[0]}, 4, {f[1]}")
    A(f"s_xor_b32 {t2}, {sJ}, 8")
    A(f"s_lshl_b32 {t2}, {t2}, 4")
    A(f"s_lshl_b32 {t3}, {sW4}, 2")
    A(f"s_add_u32 {t2}, {t2}, {t3}")
    A(f"s_lshl_b32 {t3}, {sG}, 12")
    A(f"s_add_u32 {t2}, {t2}, {t3}")
    A(f"s_add_u32 {t2}, {t2}, {WS_FLAG + 512 * 4}")
    A(f"v_mov_b32 {f[0]}, 0")
    poll(c, [f"buffer_load_dword {f[1]}, {f[0]}, {sWS}, {t2} offen sc1"], lambda: A(f"v_cmp_ne_u32 vcc, {sT[0]}, {f[1]}"))
    qq = acc[1]
    A(f"buffer_load_dwordx4 {qq[0:4]}, {c.l16}, {sWS}, {t4} offen sc1")
    A(f"buffer_load_dwordx4 {qq[4:8]}, {c.l16}, {sWS}, {t4} offen offset:1024 sc1")
    A(f"buffer_load_dwordx2 {qq[8:10]}, {pa}, {sWS}, {t4} offen offset:2048 sc1")
    a = acc[0]
    c.stamp("z_red", "d")
    for i in range(0, 20, 2):
        unpack(f[0], f[1], qq[i // 2])
        A(f"v_pk_add_f32 {a[i:i + 2]}, {a[i:i + 2]}, {f}")
        round_pair(a[i], a[i + 1], tmp)
        unpack(f[0], f[1], c.gbp[i // 2])
        A(f"v_pk_mul_f32 {a[i:i + 2]}, {a[i:i + 2]}, {f}")
        round_pair(a[i], a[i + 1], tmp)
        unpack(f[0], f[1], c.x1p[i // 2])
        A(f"v_pk_add_f32 {a[i:i + 2]}, {a[i:i + 2]}, {f}")
        A(f"v_cvt_pk_bf16_f32 {od[i // 2]}, {a[i]}, {a[i + 1]}")
        if i % 4 == 2:
            ct = i // 4
            A(f"ds_write_b64 {lw}, {od[2 * ct:2 * ct + 2]} offset:{32 * ct}")
    for k in range(3):
        A(f"ds_read_b128 {a[4 * k:4 * k + 4]}, {lr} offset:{1024 * k}")
    for k in range(3):
        if k == 2:
            A("s_mov_b32 exec_hi, 0")
        A(f"buffer_store_dwordx4 {a[4 * k:4 * k + 4]}, {go[k]}, {sOUT}, {t1} offen{' sc1' if OPT['out_sc1'] else ''}")
    A("s_mov_b32 exec_hi, -1")
    c.stamp("z_out", "d")
    prof_dump(c, 0)
    A("s_endpgm")
    for f_ in c.cold:
        f_()
    return V.high


def helper_role(c0):
    c = Ctx(c0.V.clone())
    c.__dict__.update({k: v for k, v in c0.__dict__.items() if k not in ("V", "cold")})
    V = c.V
    lane = c.lane
    A.label("L_helper")
    A.restore("split")
    t, u = V.alloc(1), c.dummy
    z = V.alloc(4, 4)
    for i in range(4):
        A(f"v_mov_b32 {z[i]}, 0")
    A(f"ds_write_b128 {z[0]}, {z} offset:{L_CNT}")
    A("s_waitcnt lgkmcnt(0)")
    A(f"s_load_dword {sT[0]}, {sWS[0:2]}, {WS_E}")
    srd_words((sWS,))
    late_setup()
    tag_setup()
    skip = lab("nocensus")
    A(f"s_cmp_lg_u32 {sW4}, 0")
    A.branch(f"s_cbranch_scc1 {skip}")
    A(f"s_lshl_b32 {t1}, {sG}, 5")
    A(f"s_add_u32 {t1}, {t1}, {sJ}")
    A(f"s_lshl_b32 {t1}, {t1}, 4")
    A(f"s_add_u32 {t1}, {t1}, {WS_CENSUS}")
    A(f"s_xor_b32 {t2}, {sT[1]}, {sXCC}")
    A(f"v_mov_b32 {z[2]}, {sT[0]}")
    A(f"v_mov_b32 {z[3]}, {t2}")
    A("s_mov_b64 exec, 1")
    A(f"buffer_store_dwordx4 {z}, {z[0]}, {sWS}, {t1} offen sc1")
    A("s_mov_b64 exec, -1")
    A("s_nop 1")
    A.label(skip)
    V.release(z)
    A(f"s_lshl_b32 {t3}, {sJ}, 2")
    A(f"s_add_u32 {t3}, {t3}, {sW4}")

    def share(dst, per_group, per_wave, base, idx=t3):
        A(f"s_mul_i32 {t1}, {sG}, {per_group}")
        A(f"s_mul_i32 {t2}, {idx}, {per_wave}")
        A(f"s_add_u32 {t1}, {t1}, {t2}")
        A(f"s_add_u32 {t1}, {t1}, {base}")
        A(f"s_add_u32 {dst[0]}, {sWS[0]}, {t1}")
        A(f"s_addc_u32 {dst[1]}, {sWS[1]}, 0")
    qkv_role()
    wq, x_ = V.alloc(1), V.alloc(1)
    A(f"v_lshrrev_b32 {t}, 4, {lane}")
    A(f"v_lshlrev_b32 {x_}, 2, {t}")
    A(f"v_and_b32 {wq}, 15, {lane}")
    A(f"v_xor_b32 {wq}, {wq}, {x_}")
    A(f"v_lshlrev_b32 {wq}, 4, {wq}")
    A(f"v_mul_u32_u24 {t}, 0xf00, {t}")
    A(f"s_lshl_b32 {t0}, {sCB}, 8")
    A(f"s_mul_i32 {t1}, {sW4}, {4 * 3840}")
    A(f"s_add_u32 {t0}, {t0}, {t1}")
    A(f"v_add3_u32 {wq}, {wq}, {t}, {t0}")
    A(f"s_mul_i32 {t6}, {sRH}, {20 * 61440}")
    A(f"s_mul_i32 {t5}, {sRH}, {40 * 61440}")
    A(f"s_sub_u32 {t5}, 61440, {t5}")
    A(f"s_lshl_b32 {t7}, {sW4}, 10")
    wd_pattern(c)
    gs, gl = V.alloc(3), V.alloc(3)
    A(f"s_mul_i32 {t0}, {sJ}, 96")
    A(f"s_lshr_b32 {t1}, {sW4}, 1")
    A(f"s_mul_i32 {t2}, {t1}, {32 * 3072}")
    A(f"s_add_u32 {t0}, {t0}, {t2}")
    A(f"s_mul_i32 {t1}, {t1}, {32 * 192}")
    A(f"s_and_b32 {t2}, {sW4}, 1")
    A(f"s_mul_i32 {t2}, {t2}, 96")
    A(f"s_add_u32 {t1}, {t1}, {t2}")
    A(f"s_add_u32 {t1}, {t1}, {L_GU}")
    for i in range(3):
        A(f"v_add_u32 {t}, {64 * i}, {lane}")
        A(f"v_mul_u32_u24 {x_}, 0x2aab, {t}")
        A(f"v_lshrrev_b32 {x_}, 16, {x_}")
        A(f"v_lshlrev_b32 {t}, 4, {t}")
        A(f"v_mul_u32_u24 {gs[i]}, 0xba0, {x_}")
        A(f"v_add3_u32 {gs[i]}, {gs[i]}, {t}, {t0}")
        A(f"v_mul_u32_u24 {gl[i]}, 0x60, {x_}")
        A(f"v_add3_u32 {gl[i]}, {gl[i]}, {t}, {t1}")
    V.release(x_)
    A(f"s_bitcmp1_b32 {sW4}, 0")
    A(f"s_cselect_b32 {sWG[0]}, {sWU[0]}, {sWG[0]}")
    A(f"s_cselect_b32 {sWG[1]}, {sWU[1]}, {sWG[1]}")
    A(f"s_mul_i32 {t0}, {t3}, 6400")
    A(f"s_add_u32 {p0[0]}, {sWO[0]}, {t0}")
    A(f"s_addc_u32 {p0[1]}, {sWO[1]}, 0")
    c.stamp("s_set")
    A("s_barrier")
    wtags = []

    def pace(win):
        if win:
            A(f"s_waitcnt vmcnt({win - 1})")

    def wq_dma(hi, win):
        while len(wtags) < hi:
            p = len(wtags)
            pace(win)
            A(f"s_add_u32 m0, {t7}, {L_WQ + 4096 * (p if p < 37 else p - 37)}")
            wtags.append(A.tagged(f"buffer_load_dwordx4 {wq}, {sWQ}, {t6} offen lds"))
            if p < 39:
                A(f"s_add_u32 {t6}, {t6}, {t5 if p == 19 else 61440}")
    wq_dma(OPT["n1"], 0)
    c.stamp("s_p1")
    if OPT["overlay"]:
        share(p1, ACT, 2560, WS_A)
        l2_touch(p1, 0, 40)
        share(p1, 32768, 256, WS_STATS)
        l2_touch(p1, 0, 4)
        A(f"s_and_b32 {t4}, {t3}, 63")
        share(p1, 4096, 64, WS_FLAG, t4)
        l2_touch(p1, 0, 1)
        share(sHB, HBG, 6144, WS_B)

    lds_spin(c, L_CNT + 8, 4)
    c.stamp("s_spin")
    gu = V.alloc(120, 4)
    ngu = [0]
    sGU = S(48)
    A(f"s_mov_b32 {sGU}, 0")

    def gu_load(n, win):
        for _ in range(n):
            if ngu[0] < 30:
                k = ngu[0]
                pace(win)
                A(f"buffer_load_dwordx4 {gu[4 * k:4 * k + 4]}, {gs[k % 3]}, {sWG}, {sGU} offen")
                if k % 3 == 2 and k < 29:
                    A(f"s_add_u32 {sGU}, {sGU}, {64 * 3072}")
                ngu[0] += 1
    for k in range(5):
        wq_dma(8 * k + 8, OPT["wq_win"])
        A.wait_vm(wtags[8 * k + 7])
        A("s_barrier")
        c.stamp("z_q%d" % k, "q")
        if k < 4:
            wq_dma(min(8 * k + 16, 37 if k == 0 else 40), OPT["wq_win"])
    V.release(wq)
    c.stamp("q_w")
    gu_load(OPT["gu_q"], OPT["gu_win"])
    one = V.alloc(4, 4)
    A(f"v_mov_b32 {one[0]}, 0x3f80")
    A(f"v_mov_b32 {one[1]}, 0")
    A(f"v_mov_b32 {one[2]}, 0x3f80")
    A(f"v_mov_b32 {one[3]}, 0")
    A(f"v_add_u32 {t}, {t7}, {c.l16}")
    A("s_barrier")
    c.stamp("q_bq")
    A(f"ds_write_b128 {t}, {one} offset:{L_K + 10 * KVS}")
    A("s_waitcnt lgkmcnt(0)")
    V.release(one)
    gu_load(OPT.get("gu_x", 0), OPT["gu_win"])
    l2_touch(p0, 0, OPT["pre_wo"])
    c.stamp("x_touch")
    A("s_barrier")
    c.stamp("x_kv")
    for q in range(5):
        A(f"s_add_u32 {t2}, {sI}, {q}")
        A(f"s_cmp_ge_u32 {t2}, 5")
        A(f"s_cselect_b32 {t3}, 5, 0")
        A(f"s_sub_u32 {t2}, {t2}, {t3}")
        A(f"s_lshl_b32 {t2}, {t2}, 2")
        A(f"s_add_u32 {t2}, {t2}, {sW4}")
        A(f"s_mul_i32 {t3}, {t2}, 40960")
        A(f"s_mul_i32 {t2}, {t2}, 5120")
        A(f"s_add_u32 {t2}, {t2}, {L_WO}")
        wo_tag = dma_slab(c, sWO, t3, t2, OPT["wo_win"])
    c.stamp("a_wo")
    gu_load(OPT["gu_a"], OPT["gu_win"])
    A.wait_vm(wo_tag)
    c.stamp("a_gu")
    A("s_barrier")
    c.stamp("b_b8")
    gu_load(OPT["gu_b"], OPT["gu_win"])
    if OPT["overlay"] and not OPT["h_sc1"]:
        l2_touch(sHB, 0, OPT.get("nb1", 40))
    A("s_barrier")
    c.stamp("b_b9")
    gu_load(OPT["gu_c"], OPT["gu_win"])
    written = [0]

    def gu_write(hi):
        while written[0] < hi:
            k = written[0]
            q, i = divmod(k, 3)
            if q == 5:
                A(f"v_add_u32 {gl[i]}, {5 * 64 * 192}, {gl[i]}")
            A(f"ds_write_b128 {gl[i]}, {gu[4 * k:4 * k + 4]} offset:{(q % 5) * 64 * 192}")
            written[0] += 1
    gu_write(max(0, ngu[0] - OPT["gu_c"]))
    lds_spin(c, L_CNT + 12, 4)
    gu_load(OPT["gu_d"], OPT["gu_win"])
    for k in range(5):
        gu_load(6 * k + 6 - ngu[0], OPT["gu_win"])
        gu_write(6 * k + 6)
        barrier()
        if k in (0, 4):
            c.stamp("c_g%d" % k)
        gu_load(6 * k + 12 - ngu[0], OPT["gu_win"])
    V.release(gs, gu, gl)
    if OPT["overlay"] and not OPT["h_sc1"]:
        l2_touch(sHB, OPT.get("nb1", 40), 96 - OPT.get("nb1", 40))
    nreg = OPT["nreg"]
    wd = V.alloc(20 * nreg, 4) if nreg else None
    wl = V.alloc(1)
    A(f"s_and_b32 {t4}, {sI}, 1")
    d_rot(t5, t1)
    A(f"s_mul_i32 {t6}, {t4}, 24")
    A(f"s_lshl_b32 {t1}, {t5}, 2")
    A(f"s_add_u32 {t6}, {t6}, {t1}")
    A(f"s_add_u32 {t6}, {t6}, {sW4}")
    A(f"s_mul_i32 {t6}, {t6}, 40960")
    A(f"s_sub_u32 {t5}, 5, {t5}")
    A(f"s_mul_i32 {t7}, {sW4}, 5120")
    A(f"s_add_u32 {t7}, {t7}, {L_WD}")
    A(f"v_add_u32 {wl}, {t7}, {c.l16}")
    dt = {}
    if OPT["pre_wd"]:
        A(f"s_lshl_b32 {t3}, {sJ}, 2")
        A(f"s_add_u32 {t3}, {t3}, {sW4}")
        A(f"s_mul_i32 {t3}, {t3}, 15360")
        A(f"s_add_u32 {p0[0]}, {sWD[0]}, {t3}")
        A(f"s_addc_u32 {p0[1]}, {sWD[1]}, 0")
        l2_touch(p0, 0, OPT["pre_wd"])
        c.stamp("z_touch", "c")

    def wd_next(q):
        if q < 5:
            A(f"s_cmp_eq_u32 {t5}, {q}")
            A(f"s_cselect_b32 {t2}, -5, 1")
            A(f"s_mul_i32 {t2}, {t2}, {4 * 40960}")
            A(f"s_add_u32 {t6}, {t6}, {t2}")
    dt[0] = dma_slab(c, sWD, t6, t7, OPT["wd_win"])
    wd_next(0)
    for q in range(1, nreg + 1):
        for i in range(5):
            pace(OPT["wd_win"])
            A(f"buffer_load_dwordx4 {wd[20 * q - 20 + 4 * i:20 * q - 16 + 4 * i]}, {c.pat[i]}, {sWD}, {t6} offen")
        wd_next(q)
    c.stamp("c_wd")
    A("s_barrier")
    c.stamp("c_b12")
    for q in range(nreg + 1, 6):
        A(f"s_add_u32 {t1}, {t7}, {4 * 5120 * q}")
        dt[q] = dma_slab(c, sWD, t6, t1, OPT["wd_win"])
        wd_next(q)
    c.stamp("z_dma", "d")
    for st in range(3):
        for q in (2 * st, 2 * st + 1):
            if q in dt:
                A.wait_vm(dt[q])
            else:
                if q == 3:
                    pass
                for i in range(5):
                    of = 4 * 5120 * q + 1024 * i
                    if of >= 65536 and not getattr(c, "wl_hi", False):
                        A(f"v_add_u32 {wl}, 61440, {wl}")
                        c.wl_hi = True
                    A(f"ds_write_b128 {wl}, {wd[20 * q - 20 + 4 * i:20 * q - 16 + 4 * i]} offset:{of - (61440 if getattr(c, 'wl_hi', False) else 0)}")
        barrier()
        if st == 0:
            c.stamp("d_d0")
    if OPT["clean"] & 2:
        skip = lab("noclean")
        A(f"s_lshl_b32 {t0}, {sJ}, 2")
        A(f"s_add_u32 {t0}, {t0}, {sW4}")
        A(f"s_cmp_lg_u32 {t0}, 3")
        A.branch(f"s_cbranch_scc1 {skip}")
        A("buffer_wbl2 sc1")
        A.label(skip)
    skip = lab("noepoch")
    A(f"s_lshl_b32 {t0}, s2, 2")
    A(f"s_add_u32 {t0}, {t0}, {sW4}")
    A(f"s_cmp_lg_u32 {t0}, 0")
    A.branch(f"s_cbranch_scc1 {skip}")
    e = V.alloc(4)
    A(f"s_mov_b32 {t1}, {WS_CENSUS + 8}")

    def chk():
        A(f"v_cmp_ne_u32 vcc, {sT[0]}, {e[0]}")
        for i in range(1, 4):
            A(f"v_cmp_ne_u32 {p0}, {sT[0]}, {e[i]}")
            A(f"s_or_b64 vcc, vcc, {p0}")
    poll(c, [f"buffer_load_dword {e[i]}, {c.l16}, {sWS}, {t1} offen offset:{1024 * i} sc1" for i in range(4)], chk, acquire=False)
    A(f"v_mov_b32 {t}, 0")
    A(f"v_mov_b32 {u}, {sT[0]}")
    A("s_mov_b64 exec, 1")
    A(f"buffer_store_dword {u}, {t}, {sWS}, 0 offen offset:{WS_E} sc1")
    A("s_mov_b64 exec, -1")
    A.label(skip)
    prof_dump(c, 1)
    A("s_endpgm")
    for f_ in c.cold:
        f_()
    return V.high


def main():
    c = prologue()
    h1 = compute_role(c)
    h2 = helper_role(c)
    A.label("L_end")
    A("s_endpgm")
    body = finish(A)
    ref = open(os.path.join(os.path.dirname(os.path.abspath(__file__)), "..", "cdna_kernels", NAME + ".s.ref")).read().split("\n")
    head = [l for l in ref if l.startswith(";") and "@launch" not in l and "Override launch" not in l and "grid=ceil" not in l]
    head += ["; stamps " + " ".join(n) for n in NAMES]
    txt = "\n".join(head) + f"\n; @launch grid=(256,1,1) block=(512,1,1) lds={LDS_BYTES}\n"
    txt += f'.amdgcn_target "amdgcn-amd-amdhsa--gfx950"\n.text\n.globl {NAME}_kernel\n.p2align 8\n.type {NAME}_kernel,@function\n{NAME}_kernel:\n'
    txt += body + "\n"
    txt += f'''.section .rodata,"a"
.p2align 6
.amdhsa_kernel {NAME}_kernel
  .amdhsa_next_free_vgpr 256
  .amdhsa_next_free_sgpr 102
  .amdhsa_accum_offset 256
  .amdhsa_group_segment_fixed_size 0
  .amdhsa_kernarg_size 96
  .amdhsa_user_sgpr_count 2
  .amdhsa_user_sgpr_kernarg_segment_ptr 1
  .amdhsa_system_sgpr_workgroup_id_x 1
.end_amdhsa_kernel
'''
    open(sys.argv[1], "w").write(txt)
    print("vgpr high water: compute %d helper %d; %d lines" % (h1, h2, txt.count("\n")))


main()
```

```python
import sys, os, struct
sys.path.insert(0, os.path.dirname(os.path.abspath(__file__)))
from asmlib import *

NAME = "adaLN_cond__sliding_block__glu_gated_glu__prompt"
OPT = dict(prof=0, out_sc1=0, clean=0, force_slow=0, force_fb=0, sp=0, nobulk=0, nt0=0, mim=15, overlay=1, h_sc1=1,
           n1=16, wq_win=0, qinit=3, qd=6, cinit=4, cd=12, dinit=3, dd=8, binit=3,
           pre_wo=50, drot=0, pre_wd=0, nreg=3, wd_win=0, wo_win=0, gu_win=0, gu_q=0, gu_a=12, gu_b=6, gu_c=6, gu_d=6)
ZOOM = ""
for a_ in sys.argv[2:]:
    k_, v_ = a_.split("=")
    if k_ == "zoom":
        ZOOM = v_
    else:
        OPT[k_] = int(v_)

WS_E, WS_MOD, WS_CENSUS = 0, 0x1000, 0x9000
WS_FLAG, WS_XFLAG, WS_STATS, WS_PROF = 0x10000, 0x18000, 0x20000, 0x60000
WS_H1, WS_O, WS_H2, WS_HB, WS_A, WS_B, WS_QKV, WS_RS, WS_END = 0x100000, 0x380000, 0x600000, 0x880000, 0xE80000, 0x1100000, 0x1700000, 0x1F00000, 0x2180000
ACT, HBG, QKVG = 327680, 786432, 983040
L_MOD2F, L_CNT, L_PART, L_MODEF, L_MOD1F = 0, 1280, 1536, 1792, 2048
L_WQ = 12288
KVS = 4160
L_K, L_V = 12288, 12288 + 5 * KVS
L_WO = 58112
L_RED = 12288
L_GU = 40960
L_WD = 2048
L_OUT = L_WD + 24 * 5120
LDS_BYTES = 163840
BIG = 0xF1800000
OOB = 0x7F000000
POLL_MAX = 1 << 17


def f32(x):
    return struct.unpack("<I", struct.pack("<f", x))[0]


LOG2E = 1.4426950408889634
QSCALE = f32(20 ** -0.5 * LOG2E)
S = lambda b, n=1: Reg("s", b, n)
sX, sOUT, sWS, sWO, sWQ, sWG, sWU, sWD, sCC, sWM = [S(4 + 4 * i, 4) for i in range(10)]
sPOLL = S(20, 32)
sT = S(52, 2)
sG, sJ, sW, sW4, sXCC, sMODE = [S(54 + i) for i in range(6)]
t0, t1, t2, t3, t4, t5, t6, t7 = [S(60 + i) for i in range(8)]
p0, p1 = S(68, 2), S(70, 2)
sHI = S(72, 2)
sCNT, sHOOK, sPASS, sI, sN = [S(74 + i) for i in range(5)]
sDUM = S(79)
sRH, sCB = S(46), S(47)
sHB = S(44, 2)
sSTAMP = S(80, 2)
PROF0 = 82

A = Asm()
nlab = [0]
NAMES = []


def lab(p):
    nlab[0] += 1
    return "L_%s_%d" % (p, nlab[0])


class Ctx:
    def __init__(self, V):
        self.V, self.nstamp, self.cold, self.names = V, 0, [], []

    def stamp(self, name="", zoom=""):
        if not OPT["prof"]:
            return
        if zoom and zoom not in ZOOM:
            return
        if not zoom and ZOOM and name[:1] not in ZOOM and name not in ("start", "end", "s_e1", "q_loop", "x_kv", "a_sig", "b_stat", "c_loop"):
            return
        assert self.nstamp < 20, name
        if self.nstamp:
            A(f"s_mov_b32 {S(PROF0 + self.nstamp - 1)}, {sSTAMP[0]}")
        A.raw(f"{'s_memtime' if OPT['prof'] == 2 else 's_memrealtime'} {sSTAMP}")
        self.names = self.names[:self.nstamp] + [name] + self.names[self.nstamp + 1:]
        self.nstamp += 1


def unpack(lo, hi, src):
    A(f"v_lshlrev_b32 {lo}, 16, {src}")
    A(f"v_and_b32 {hi}, 0xffff0000, {src}")


def round_pair(a, b, tmp):
    A(f"v_cvt_pk_bf16_f32 {tmp}, {a}, {b}")
    unpack(a, b, tmp)


def round1(a):
    A(f"v_cvt_pk_bf16_f32 {a}, {a}, {a}")
    A(f"v_and_b32 {a}, 0xffff0000, {a}")


def sum16(x):
    for m in ("quad_perm:[1,0,3,2]", "quad_perm:[2,3,0,1]", "row_half_mirror", "row_mirror"):
        A(f"v_add_f32_dpp {x}, {x}, {x} {m} row_mask:0xf bank_mask:0xf")


def xor16_add(x, tmp):
    A(f"v_mov_b32 {tmp}, {x}")
    A(f"v_permlane16_swap_b32 {tmp}, {x}")
    A(f"v_add_f32 {x}, {x}, {tmp}")


def xor32_op(op, x, tmp):
    A(f"v_mov_b32 {tmp}, {x}")
    A(f"v_permlane32_swap_b32 {tmp}, {x}")
    A(f"{op} {x}, {x}, {tmp}")


def poll(c, loads, check, acquire=True, backoff=0):
    top, done = lab("poll"), lab("pdone")
    A(f"s_mov_b32 {sCNT}, 0")
    A.label(top)
    if backoff:
        A(f"s_sleep {backoff}")
    for l in loads:
        A(l)
    A(f"s_add_u32 {sCNT}, {sCNT}, 1")
    A(f"s_cmp_gt_u32 {sCNT}, {POLL_MAX}")
    A.branch(f"s_cbranch_scc1 {done}", noflush=True)
    A("s_waitcnt vmcnt(0)")
    check()
    A.branch(f"s_cbranch_vccnz {top}")
    A.label(done)
    A("s_waitcnt vmcnt(0)")
    if acquire:
        acquire_if_slow()


def check_tags(regs):
    def f():
        A(f"v_cmp_ne_u64 vcc, {sT}, {regs[0]}")
        for r in regs[1:]:
            A(f"v_cmp_ne_u64 {p0}, {sT}, {r}")
            A(f"s_or_b64 vcc, vcc, {p0}")
    return f


BY_WAVE = {0: False, 1: True, 2: False, 3: True, 4: False}


def scalar_edge(edge):
    return OPT["sp"] >> edge & 1


def signal(c, edge, drain=True):
    V = c.V
    a, d = V.alloc(1), V.alloc(1)
    A(f"s_lshl_b32 {t0}, {sG}, 12")
    A(f"s_lshl_b32 {t1}, {sJ}, {2 if BY_WAVE[edge] else 4}")
    A(f"s_add_u32 {t0}, {t0}, {t1}")
    A(f"s_lshl_b32 {t1}, {sW4}, {7 if BY_WAVE[edge] else 2}")
    A(f"s_add_u32 {t0}, {t0}, {t1}")
    A(f"s_add_u32 {t0}, {t0}, {WS_FLAG + 512 * edge}")
    A(f"v_mov_b32 {a}, 0")
    A(f"v_mov_b32 {d}, {sT[0]}")
    slow, done = lab("sigslow"), lab("sigdone")
    A("s_mov_b64 exec, 1")
    A(f"s_cmp_lg_u32 {sMODE}, 0")
    if drain:
        A("s_waitcnt vmcnt(0)")
    A.branch(f"s_cbranch_scc1 {slow}", noflush=True)
    A(f"buffer_store_dword {d}, {a}, {sWS}, {t0} offen{' sc1' if scalar_edge(edge) else ''}")
    A.label(done)
    A("s_mov_b64 exec, -1")

    def cold():
        A.label(slow)
        if drain:
            A("buffer_wbl2 sc1")
            A("s_waitcnt vmcnt(0)")
        A(f"buffer_store_dword {d}, {a}, {sWS}, {t0} offen sc1")
        A.branch(f"s_branch {done}")
    c.cold.append(cold)
    V.release(a, d)


def acquire_if_slow():
    skip = lab("noacq")
    A(f"s_cmp_eq_u32 {sMODE}, 0")
    A.branch(f"s_cbranch_scc1 {skip}", noflush=True)
    A("buffer_inv sc1")
    A("s_waitcnt vmcnt(0)")
    A.label(skip)


def wait_edge(c, edge, s_off0, s_off1=None):
    V = c.V
    A(f"s_lshl_b32 {t0}, {sG}, 12")
    A(f"s_add_u32 {t0}, {t0}, {WS_FLAG + 512 * edge}")
    if scalar_edge(edge):
        offs = [s_off0] + ([s_off1] if s_off1 is not None else [])
        for o in offs:
            A(f"s_add_u32 {o}, {o}, {t0}")
        top, done = lab("spoll"), lab("spdone")
        A(f"s_mov_b32 {p0[0]}, {sT[0]}")
        A(f"s_mov_b32 {p0[1]}, {sT[0]}")
        A(f"s_mov_b32 {sCNT}, 0")
        A.label(top)
        for k, o in enumerate(offs):
            A(f"s_load_dwordx16 {sPOLL[16 * k:16 * k + 16]}, {sWS[0:2]}, {o} glc")
        A(f"s_add_u32 {sCNT}, {sCNT}, 1")
        A(f"s_cmp_gt_u32 {sCNT}, {POLL_MAX}")
        A.branch(f"s_cbranch_scc1 {done}", noflush=True)
        A("s_waitcnt lgkmcnt(0)")
        n = 8 * len(offs)
        for k in range(n):
            A(f"s_xor_b64 {sPOLL[2 * k:2 * k + 2]}, {sPOLL[2 * k:2 * k + 2]}, {p0}")
        for k in range(1, n):
            A(f"s_or_b64 {sPOLL[0:2]}, {sPOLL[0:2]}, {sPOLL[2 * k:2 * k + 2]}")
        A.branch(f"s_cbranch_scc1 {top}")
        A.label(done)
        A("s_waitcnt lgkmcnt(0)")
        acquire_if_slow()
        return
    a, d = V.alloc(1), V.alloc(1)
    A(f"v_and_b32 {a}, 15, {c.lane}")
    A(f"v_lshl_add_u32 {a}, {a}, 2, {s_off0}")
    if s_off1 is not None:
        A(f"s_sub_u32 {s_off1}, {s_off1}, {s_off0}")
        A(f"v_add_u32 {d}, {s_off1}, {a}")
        A(f"v_cndmask_b32_e64 {a}, {a}, {d}, {sHI}")
    poll(c, [f"buffer_load_dword {d}, {a}, {sWS}, {t0} offen sc1"], lambda: A(f"v_cmp_ne_u32 vcc, {sT[0]}, {d}"))
    V.release(a, d)


def add_base(dst, slow, fast, tmp):
    if not OPT["overlay"]:
        A(f"s_add_u32 {dst}, {dst}, {slow}")
        return
    A(f"s_cmp_eq_u32 {sMODE}, 0")
    A(f"s_cselect_b32 {tmp}, {fast - slow}, 0")
    A(f"s_add_u32 {dst}, {dst}, {tmp}")
    A(f"s_add_u32 {dst}, {dst}, {slow}")


def lds_spin(c, off, want):
    V = c.V
    a, d = V.alloc(1), V.alloc(1)
    top, done = lab("lspin"), lab("lsdone")
    A(f"v_mov_b32 {a}, 0")
    A(f"s_mov_b32 {sCNT}, 0")
    A.label(top)
    A(f"ds_read_b32 {d}, {a} offset:{off}")
    A(f"s_add_u32 {sCNT}, {sCNT}, 1")
    A(f"s_cmp_gt_u32 {sCNT}, {8 * POLL_MAX}")
    A.branch(f"s_cbranch_scc1 {done}", noflush=True)
    A("s_waitcnt lgkmcnt(0)")
    A(f"v_cmp_gt_u32 vcc, {want}, {d}")
    A.branch(f"s_cbranch_vccnz {top}")
    A.label(done)
    A("s_waitcnt lgkmcnt(0)")
    V.release(a, d)


def bump(c, off):
    a, d = c.V.alloc(1), c.V.alloc(1)
    A(f"v_mov_b32 {a}, 0")
    A(f"v_mov_b32 {d}, 1")
    A("s_mov_b64 exec, 1")
    A(f"ds_add_u32 {a}, {d} offset:{off}")
    A("s_mov_b64 exec, -1")
    c.V.release(a, d)


def l2_touch(base, first, n):
    for i in range(first, first + n):
        A.raw(f"s_load_dword {sDUM}, {base}, {64 * i}")


SRD_SIZE = ((sWM, 4915200), (sCC, 1280), (sWS, WS_END), (sX, 2621440), (sWQ, 2457600), (sWO, 819200), (sWG, 1966080),
            (sWU, 1966080), (sWD, 1966080), (sOUT, 2621440))


def srd_words(which):
    for srd, n in SRD_SIZE:
        if any(srd is w for w in which):
            nb = {sWQ.b: 1, sWO.b: 2, sWG.b: 4, sWU.b: 4, sWD.b: 8}.get(srd.b, 0)
            A(f"s_mov_b32 {srd[2]}, {0 if OPT['nobulk'] & nb else n}")
            A(f"s_mov_b32 {srd[3]}, 0x20000")


def prologue():
    V = Regs("v", 0, 256)
    c = Ctx(V)
    v0 = V.alloc(1)
    c.lane = V.alloc(1)
    tmp, u = V.alloc(1), V.alloc(1)
    A("s_cmp_ge_u32 s2, 256")
    A.branch("s_cbranch_scc1 L_end", noflush=True)
    A(f"s_getpc_b64 {p0}")
    A.label("L_pc")
    c.stamp("start")
    for srd, off in ((sWM, 64), (sCC, 56), (sWS, 88), (sX, 0)):
        A(f"s_load_dwordx2 {srd[0:2]}, s[0:1], {off}")
    A(f"v_lshrrev_b32 {tmp}, 6, {v0}")
    A(f"s_lshr_b32 {sJ}, s2, 3")
    A(f"v_readfirstlane_b32 {sW}, {tmp}")
    A(f"v_and_b32 {c.lane}, 63, {v0}")
    A(f"s_and_b32 {sG}, s2, 7")
    A(f"s_and_b32 {sW4}, {sW}, 3")
    A(f"s_cmp_ge_u32 {sW}, 4")
    c.l16 = v0
    A(f"v_lshlrev_b32 {c.l16}, 4, {c.lane}")
    A.branch("s_cbranch_scc0 L_compute", noflush=True)
    A(f"s_lshl_b32 {t0}, {sJ}, 2")
    A(f"s_add_u32 {t0}, {t0}, {sW4}")
    A(f"s_lshl_b32 {t0}, {t0}, 9")
    A(f"v_and_b32 {tmp}, 7, {c.lane}")
    A(f"v_lshl_add_u32 {tmp}, {tmp}, 6, {t0}")
    A(f"v_min_u32 {tmp}, L_end-L_pc, {tmp}")
    A(f"global_load_dword {u}, {tmp}, {p0}")
    A.branch("s_branch L_helper")
    A.label("L_compute")
    V.release(tmp)
    c.dummy = u
    A.save("split")
    return c


def late_setup():
    for srd, off in ((sWQ, 8), (sWO, 16), (sWG, 32), (sWU, 40), (sWD, 48), (sOUT, 72)):
        A(f"s_load_dwordx2 {srd[0:2]}, s[0:1], {off}")
    srd_words((sWQ, sWO, sWG, sWU, sWD, sOUT))
    A(f"s_getreg_b32 {sXCC}, hwreg(HW_REG_XCC_ID, 0, 4)")
    A(f"s_mov_b32 {sHI[0]}, 0")
    A(f"s_mov_b32 {sHI[1]}, -1")
    A(f"s_lshr_b32 {sI}, {sJ}, 3")
    A(f"s_and_b32 {sN}, {sJ}, 7")


def tag_setup():
    A("s_waitcnt lgkmcnt(0)")
    A(f"s_add_u32 {sT[0]}, {sT[0]}, 1")
    A(f"s_not_b32 {sT[1]}, {sT[0]}")


def barrier():
    A("s_waitcnt lgkmcnt(0)")
    A("s_barrier")


def att_masks(c):
    V = c.V
    c.mask = V.alloc(16, 4)
    z, big = V.alloc(1), V.alloc(1)
    A(f"v_lshrrev_b32 {z}, 5, {c.lane}")
    A(f"v_lshlrev_b32 {z}, 2, {z}")
    A(f"v_and_b32 {big}, 31, {c.lane}")
    A(f"v_sub_u32 {z}, {big}, {z}")
    A(f"v_mov_b32 {big}, {hex(BIG)}")
    build_mask(c, z, big)
    V.release(z, big)


def build_mask(c, z, big):
    for r in range(16):
        A(f"v_subrev_u32 {c.mask[r]}, {8 * (r >> 2) + (r & 3)}, {z}")
        A(f"v_ashrrev_i32 {c.mask[r]}, 31, {c.mask[r]}")
        A(f"v_and_b32 {c.mask[r]}, {big}, {c.mask[r]}")


def att_addr(c):
    V = c.V
    c.aK, c.aK4, c.aV = V.alloc(1), V.alloc(1), V.alloc(1)
    t, u = V.alloc(1), V.alloc(1)
    A(f"s_lshl_b32 {t0}, {sW4}, 9")
    A(f"v_and_b32 {t}, 15, {c.lane}")
    A(f"s_add_u32 {t1}, {t0}, {L_K}")
    A(f"v_lshl_add_u32 {t}, {t}, 4, {t1}")
    A(f"v_bfe_u32 {u}, {c.lane}, 4, 1")
    A(f"v_lshl_add_u32 {t}, {u}, 3, {t}")
    A(f"v_add_u32 {c.aK4}, {4 * KVS}, {t}")
    A(f"v_lshrrev_b32 {u}, 5, {c.lane}")
    A(f"v_mul_u32_u24 {c.aK}, {KVS}, {u}")
    A(f"v_add_u32 {c.aK}, {c.aK}, {t}")
    A(f"v_bfe_u32 {t}, {c.lane}, 2, 2")
    A(f"v_lshl_add_u32 {t}, {u}, 2, {t}")
    A(f"s_add_u32 {t1}, {t0}, {L_V}")
    A(f"v_lshl_add_u32 {c.aV}, {t}, 4, {t1}")
    A(f"v_and_b32 {t}, 3, {c.lane}")
    A(f"v_bfe_u32 {u}, {c.lane}, 4, 1")
    A(f"v_lshl_add_u32 {t}, {u}, 2, {t}")
    A(f"v_lshlrev_b32 {t}, 2, {t}")
    A(f"s_mov_b32 {t1}, 0x45543210")
    A(f"v_lshrrev_b32_e64 {t}, {t}, {t1}")
    A(f"v_and_b32 {t}, 7, {t}")
    A(f"v_mul_u32_u24 {t}, {KVS}, {t}")
    A(f"v_add_u32 {c.aV}, {c.aV}, {t}")
    V.release(t, u)


def attention(c):
    V = c.V
    Q0, Q1 = c.Q0, c.Q1
    Sx = [V.alloc(16, 4) for _ in range(3)]
    O, Cm = [V.alloc(16, 4), V.alloc(16, 4)], [V.alloc(16, 4), V.alloc(16, 4)]
    P, Vf = V.alloc(8, 4), V.alloc(8, 4)
    Ka, Kb = V.alloc(4, 4), V.alloc(2)
    m, mg, tmp = V.alloc(2), V.alloc(2), V.alloc(1)
    off = lambda n: (9 - n) * 256

    def readK(n, ka=Ka, kb=Kb):
        A(f"ds_read_b64 {ka[0:2]}, {c.aK} offset:{off(n)}")
        A(f"ds_read_b64 {ka[2:4]}, {c.aK} offset:{off(n) + 2 * KVS}")
        A(f"ds_read_b64 {kb}, {c.aK4} offset:{off(n)}")

    def readV(n):
        for ks in range(2):
            for u in range(2):
                A(f"ds_read_b64_tr_b16 {Vf[4 * ks + 2 * u:4 * ks + 2 * u + 2]}, {c.aV} offset:{off(n) + 8 * ks + 128 * u}")

    def qk(dst, st, cin, ka=Ka, kb=Kb):
        return [f"v_mfma_f32_32x32x16_bf16 {dst}, {ka}, {Q0[st]}, {cin}", f"v_mfma_f32_32x32x8bf16_1k {dst}, {kb}, {Q1[st]}, {dst}"]

    units = [(0, 0)] + [(st, n) for n in range(1, 9) for st in (0, 1)] + [(1, 9)]
    for st in range(2):
        A(f"v_mov_b32 {mg[st]}, {hex(BIG)}")
    A(f"s_mov_b32 {sPASS}, 0")
    A.label("L_att")
    readK(0, Vf[0:4], Vf[4:6])
    readK(1)
    for x in qk(Sx[0], 0, c.mask, Vf[0:4], Vf[4:6]) + qk(Sx[2], 1, c.mask):
        A(x)
    for st, sx in ((0, Sx[0]), (1, Sx[2])):
        A(f"v_max3_f32 {m[st]}, {sx[0]}, {sx[1]}, {mg[st]}")
        for r in range(2, 16, 2):
            A(f"v_max3_f32 {m[st]}, {sx[r]}, {sx[r + 1]}, {m[st]}")
        xor32_op("v_max_f32", m[st], tmp)
        for r in range(16):
            A(f"v_sub_f32 {Cm[st][r]}, 0, {m[st]}")
        for r in range(16):
            A(f"v_sub_f32 {sx[r]}, {sx[r]}, {m[st]}")
    A(f"v_mov_b32 {tmp}, {hex(BIG)}")
    for r in range(16):
        A(f"v_sub_f32 {c.mask[r]}, {tmp}, {c.mask[r]}")
    c.stamp("z_set", "a")
    for k, (st, n) in enumerate(units):
        s = Sx[k % 3]
        if st == 1 and n % 2 == 1 and n < 9:
            A(f"s_cmp_eq_u32 {sHOOK}, {n + 1}")
            A.branch(f"s_cbranch_scc1 L_hook_{n + 1}", noflush=True)
            A.label(f"L_back_{n + 1}")
        if st == 0 or n == 9:
            readV(n)
        nxt = units[k + 1] if k + 1 < len(units) else None
        pre, mm = [], []
        if nxt and k + 1 != 2:
            if nxt == (0, 8) or nxt == (1, 9):
                pre = [f"v_sub_f32 {Cm[nxt[0]][r]}, {c.mask[r]}, {m[nxt[0]]}" for r in range(16)]
            mm = qk(Sx[(k + 1) % 3], nxt[0], Cm[nxt[0]])
        for x in pre:
            A(x)
        order = []
        for r in range(0, 16, 2):
            order += [f"v_exp_f32 {s[r]}, {s[r]}", f"v_exp_f32 {s[r + 1]}, {s[r + 1]}"]
            if r >= 2:
                order.append(f"v_cvt_pk_bf16_f32 {P[r // 2 - 1]}, {s[r - 2]}, {s[r - 1]}")
        first = n == (0 if st == 0 else 1)
        for i, x in enumerate(order):
            A(x)
            if i == 2 and mm:
                A(mm[0])
            if i == 7 and mm:
                A(mm[1])
            if i == 9 and st == 0 and 1 <= n:
                readK(n + 1)
            if i == 15:
                A(f"v_mfma_f32_32x32x16_bf16 {O[st]}, {Vf[0:4]}, {P[0:4]}, {'0' if first else O[st]}")
        A(f"v_cvt_pk_bf16_f32 {P[7]}, {s[14]}, {s[15]}")
        A(f"v_mfma_f32_32x32x16_bf16 {O[st]}, {Vf[4:8]}, {P[4:8]}, {O[st]}")
    A(f"s_mov_b32 {t0}, {hex(f32(2.0 ** 40 if not OPT['force_fb'] else 1.5))}")
    for st in range(2):
        A(f"v_cndmask_b32_e64 {m[st]}, {O[st][12]}, {O[st][8]}, {sHI}")
    A(f"v_cmp_nge_f32 vcc, {t0}, {m[0]}")
    A(f"v_cmp_nge_f32 {p0}, {t0}, {m[1]}")
    A(f"s_or_b64 vcc, vcc, {p0}")
    A(f"s_cmp_eq_u32 {sPASS}, 0")
    A(f"s_cselect_b64 vcc, vcc, 0")
    A.branch("s_cbranch_vccnz L_fb")
    c.op = [Sx[0][0:6], Sx[0][6:12]]
    for st in range(2):
        A(f"v_rcp_f32 {m[st]}, {m[st]}")
    for st in range(2):
        for r in range(12):
            A(f"v_mul_f32 {O[st][r]}, {O[st][r]}, {m[st]}")
        for r in range(6):
            A(f"v_cvt_pk_bf16_f32 {c.op[st][r]}, {O[st][2 * r]}, {O[st][2 * r + 1]}")
        c.store_o(st)

    def cold():
        for n in (2, 4, 6, 8):
            A.label(f"L_hook_{n}")
            A("s_nop 7")
            for r in range(16):
                for x in (Cm[0], Cm[1], c.mask):
                    A(f"v_mov_b32 {x[r]}, {hex(BIG)}")
            A.branch(f"s_branch L_back_{n}")
        A.label("L_fb")
        z, big = P[0], P[1]
        A(f"v_lshrrev_b32 {z}, 5, {c.lane}")
        A(f"v_lshlrev_b32 {z}, 2, {z}")
        A(f"v_and_b32 {big}, 31, {c.lane}")
        A(f"v_sub_u32 {z}, {big}, {z}")
        A(f"v_mov_b32 {big}, {hex(BIG)}")
        build_mask(c, z, big)
        for r in range(16):
            A(f"v_sub_f32 {Cm[0][r]}, {big}, {c.mask[r]}")
        for n in range(1, 10):
            skip = lab("fbskip")
            A(f"s_cmp_le_u32 {sHOOK}, {n}")
            A.branch(f"s_cbranch_scc1 {skip}")
            readK(n)
            for st in range(2):
                if (st, n) in units and (st, n) != (1, 1):
                    for x in qk(Sx[st], st, Cm[0] if n == 8 + st else "0"):
                        A(x)
            for st in range(2):
                if (st, n) in units and (st, n) != (1, 1):
                    for r in range(0, 16, 2):
                        A(f"v_max3_f32 {mg[st]}, {Sx[st][r]}, {Sx[st][r + 1]}, {mg[st]}")
            A.label(skip)
        A(f"s_mov_b32 {sPASS}, 1")
        A.branch("s_branch L_att")
    c.cold.append(cold)
    V.release(Sx, O, Cm, P, Vf, Ka, Kb, m, mg, tmp, c.mask, c.aK, c.aK4, c.aV, Q0, Q1)


def wd_pattern(c):
    V = c.V
    c.pat = V.alloc(5)
    p, r = V.alloc(1), V.alloc(1)
    A(f"s_mul_i32 {t0}, {sN}, 160")
    for i in range(5):
        A(f"v_add_u32 {p}, {64 * i}, {c.lane}")
        A(f"v_mul_u32_u24 {r}, 0x199a, {p}")
        A(f"v_lshrrev_b32 {r}, 16, {r}")
        A(f"v_mul_u32_u24 {c.pat[i]}, 0x460, {r}")
        A(f"v_lshl_add_u32 {c.pat[i]}, {p}, 4, {c.pat[i]}")
        A(f"v_add_u32 {c.pat[i]}, {t0}, {c.pat[i]}")
    V.release(p, r)


def dma_slab(c, srd, s_src, lds, win=0):
    for i in range(5):
        if win:
            A(f"s_waitcnt vmcnt({win - 1})")
        if isinstance(lds, int):
            A(f"s_mov_b32 m0, {lds + 1024 * i}")
        else:
            A(f"s_add_u32 m0, {lds}, {1024 * i}")
        tag = A.tagged(f"buffer_load_dwordx4 {c.pat[i]}, {srd}, {s_src} offen lds")
    return tag


def prof_dump(c, role):
    if not OPT["prof"]:
        return
    V = c.V
    a, d = V.alloc(1), V.alloc(1)
    skip = lab("noprof")
    A("s_waitcnt vmcnt(0)")
    c.stamp("end")
    NAMES.append(c.names)
    A("s_waitcnt lgkmcnt(0)")
    A(f"s_mov_b32 {S(PROF0 + c.nstamp - 1)}, {sSTAMP[0]}")
    A(f"s_cmp_lg_u32 {sW4}, {OPT.get('pw', 0)}")
    A.branch(f"s_cbranch_scc1 {skip}")
    A(f"s_lshl_b32 {t0}, s2, 8")
    A(f"s_add_u32 {t0}, {t0}, {WS_PROF + 128 * role}")
    A(f"v_mov_b32 {a}, 0")
    A("s_mov_b64 exec, 1")
    for i in range(c.nstamp):
        A(f"v_mov_b32 {d}, {S(PROF0 + i)}")
        A(f"buffer_store_dword {d}, {a}, {sWS}, {t0} offen offset:{4 * i}")
    if role == 0 and "dbgwg" in OPT:
        nod = lab("nodbg")
        A(f"s_cmp_lg_u32 s2, {OPT['dbgwg']}")
        A.branch(f"s_cbranch_scc1 {nod}")
        A(f"s_load_dwordx2 {p0}, s[0:1], 80")
        A("s_waitcnt lgkmcnt(0)")
        keep = [i for i in range(1, c.nstamp) if c.names[i] not in ("s_pre", "x_sig", "a_end")][:16]
        for k, i in enumerate(keep):
            A(f"s_sub_u32 {t1}, {S(PROF0 + i)}, {S(PROF0)}")
            A(f"v_mov_b32 {d}, {t1}")
            A(f"global_store_dword {a}, {d}, {p0} offset:{4 * k}")
        print("debug words:", [c.names[i] for i in keep])
        A.label(nod)
    A("s_mov_b64 exec, -1")
    A.label(skip)
    V.release(a, d)


def tile_gemm(c, nks, s_a0, s_a1, init, depth, waddr, barrier_at, step=None, drain=True):
    V = c.V
    ring = [[V.alloc(4, 4), V.alloc(4, 4)] for _ in range(depth)]
    W = [V.alloc(20, 4), V.alloc(20, 4)]
    acc = [V.alloc(20, 4), V.alloc(20, 4)]

    def loadA1(ks, a):
        A(f"buffer_load_dwordx4 {ring[ks % depth][a]}, {c.l16}, {sWS}, {(s_a0, s_a1)[a]} offen offset:{(ks % 4) * 1024} sc1")
        if a == 1 and ks % 4 == 3 and ks + 1 < nks:
            inc = step(ks // 4) if step else 4096
            A(f"s_add_u32 {s_a0}, {s_a0}, {inc}")
            A(f"s_add_u32 {s_a1}, {s_a1}, {inc}")

    def loadA(ks):
        loadA1(ks, 0)
        loadA1(ks, 1)

    def readW(ks, ct, u):
        ad, imm = waddr(ks)
        A(f"ds_read_b64_tr_b16 {W[ks & 1][4 * ct + 2 * u:4 * ct + 2 * u + 2]}, {ad} offset:{imm + 1280 * u + 32 * ct}")

    issued = min(init, nks)
    for ks in range(issued):
        loadA(ks)
    if 0 in barrier_at:
        A("s_barrier")
    for ct in range(5):
        readW(0, ct, 0)
        readW(0, ct, 1)
    for ks in range(nks):
        nxt = ks + 1 < nks
        if nxt and (ks + 1) in barrier_at:
            barrier() if drain else A("s_barrier")
        if nks == 24 and ks % 4 == 0:
            c.stamp("z_k%d" % ks, "d")
        todo = []
        for _ in range(2):
            if issued < min(nks, ks + depth):
                todo += [(issued, 0), (issued, 1)]
                issued += 1
        for ct in range(5):
            for a in range(2):
                A(f"v_mfma_f32_16x16x32_bf16 {acc[a][4 * ct:4 * ct + 4]}, {W[ks & 1][4 * ct:4 * ct + 4]}, {ring[ks % depth][a]}, "
                  f"{'0' if ks == 0 else acc[a][4 * ct:4 * ct + 4]}")
                if nxt:
                    readW(ks + 1, ct, a)
            if todo and ct < 4 and (len(todo) > 2 or ct in (1, 3) or len(todo) + ct >= 4):
                loadA1(*todo.pop(0))
        assert not todo
    V.release(ring, W)
    return acc


def tile_reduce(c, acc, lds):
    V = c.V
    ad = V.alloc(1)
    A(f"s_mul_i32 {t0}, {sW4}, 5120")
    A(f"s_add_u32 {t0}, {t0}, {lds}")
    A(f"v_add_u32 {ad}, {t0}, {c.l16}")
    for ct in range(5):
        A(f"ds_write_b128 {ad}, {acc[1][4 * ct:4 * ct + 4]} offset:{1024 * ct}")
    A(f"s_xor_b32 {t0}, {sW4}, 1")
    A(f"s_mul_i32 {t0}, {t0}, 5120")
    A(f"s_add_u32 {t0}, {t0}, {lds}")
    A(f"v_add_u32 {ad}, {t0}, {c.l16}")
    barrier()
    for ct in range(5):
        A(f"ds_read_b128 {acc[1][4 * ct:4 * ct + 4]}, {ad} offset:{1024 * ct}")
    for r in range(20):
        A(f"v_add_f32 {acc[0][r]}, {acc[0][r]}, {acc[1][r]}")
    V.release(ad, acc[1])
    return acc[0]


def wtile_addr(c, base, half_bytes, ad, t, u):
    A(f"v_lshrrev_b32 {t}, 5, {c.lane}")
    A(f"v_bfe_u32 {u}, {c.lane}, 4, 1")
    A(f"v_lshlrev_b32 {t}, 4, {t}")
    A(f"v_lshl_add_u32 {t}, {u}, 2, {t}")
    A(f"v_bfe_u32 {u}, {c.lane}, 2, 2")
    A(f"v_add_u32 {t}, {t}, {u}")
    A(f"v_mul_u32_u24 {t}, 0xa0, {t}")
    A(f"v_and_b32 {u}, 3, {c.lane}")
    A(f"v_lshl_add_u32 {t}, {u}, 3, {t}")
    A(f"s_and_b32 {t0}, {sW4}, 1")
    A(f"s_mul_i32 {t0}, {t0}, {half_bytes}")
    A(f"s_add_u32 {t0}, {t0}, {base}")
    A(f"v_add_u32 {ad}, {t0}, {t}")


def tile_streams(base, per_group, tile_bytes, half_bytes, d0, d1):
    A(f"s_mul_i32 {t0}, {sG}, {per_group}")
    A(f"s_and_b32 {t1}, {sW4}, 1")
    A(f"s_mul_i32 {t1}, {t1}, {half_bytes}")
    A(f"s_add_u32 {t0}, {t0}, {t1}")
    add_base(t0, base[0], base[1], t1)
    A(f"s_lshl_b32 {t1}, {sI}, 2")
    A(f"s_add_u32 {t2}, {t1}, {sW4}")
    A(f"s_mul_i32 {d0}, {t2}, {tile_bytes}")
    A(f"s_add_u32 {d0}, {d0}, {t0}")
    A(f"s_xor_b32 {t2}, {t2}, 1")
    A(f"s_mul_i32 {d1}, {t2}, {tile_bytes}")
    A(f"s_add_u32 {d1}, {d1}, {t0}")


def d_rot(dst, tmp):
    A(f"s_lshr_b32 {dst}, {sI}, 1")
    A(f"s_mul_i32 {dst}, {dst}, 3")
    if OPT["drot"]:
        A(f"s_add_u32 {dst}, {dst}, {sN}")
        for _ in range(1):
            A(f"s_cmp_ge_u32 {dst}, 6")
            A(f"s_cselect_b32 {tmp}, 6, 0")
            A(f"s_sub_u32 {dst}, {dst}, {tmp}")


def ln_scalars(mean, var, tmp):
    round1(mean)
    round1(var)
    A(f"v_add_f32 {var}, {hex(f32(1e-5))}, {var}")
    round1(var)
    A(f"v_sqrt_f32 {var}, {var}")
    round1(var)
    A(f"v_rcp_f32 {var}, {var}")


def qkv_role():
    A(f"s_cmp_ge_u32 {sJ}, 15")
    A(f"s_cselect_b32 {sRH}, 1, 0")
    A(f"s_cselect_b32 {t0}, 15, 0")
    A(f"s_sub_u32 {sCB}, {sJ}, {t0}")
    A(f"s_min_u32 {sCB}, {sCB}, 14")


def qkv_addr(c):
    V, lane = c.V, c.lane
    c.wq = V.alloc(4)
    tq, tu, tr = V.alloc(1), V.alloc(1), V.alloc(1)
    A(f"v_lshrrev_b32 {tq}, 5, {lane}")
    A(f"v_bfe_u32 {tr}, {lane}, 2, 2")
    A(f"v_lshl_add_u32 {tq}, {tq}, 3, {tr}")
    A(f"v_lshlrev_b32 {tq}, 8, {tq}")
    A(f"v_bfe_u32 {tu}, {lane}, 4, 1")
    A(f"v_lshl_add_u32 {tq}, {tu}, 5, {tq}")
    A(f"v_and_b32 {tu}, 3, {lane}")
    A(f"v_lshl_add_u32 {tq}, {tu}, 3, {tq}")
    A(f"v_add_u32 {tq}, {L_WQ}, {tq}")
    for ct in range(4):
        A(f"v_xor_b32 {tu}, {ct}, {tr}")
        A(f"v_lshl_add_u32 {c.wq[ct]}, {tu}, 6, {tq}")
    c.xs, c.xa, c.xq1 = V.alloc(1), V.alloc(1), V.alloc(1)
    A(f"v_and_b32 {tq}, 15, {lane}")
    A(f"v_lshlrev_b32 {tq}, 4, {tq}")
    A(f"v_bfe_u32 {tr}, {lane}, 4, 1")
    A(f"v_lshrrev_b32 {tu}, 5, {lane}")
    A(f"v_lshl_add_u32 {c.xs}, {tr}, 12, {tq}")
    A(f"v_lshl_add_u32 {c.xs}, {tu}, 11, {c.xs}")
    A(f"v_lshl_add_u32 {tq}, {tr}, 3, {tq}")
    A(f"v_lshl_add_u32 {c.xa}, {tu}, 11, {tq}")
    A(f"v_mov_b32 {tu}, {OOB}")
    A(f"v_cndmask_b32_e64 {c.xq1}, {tq}, {tu}, {sHI}")
    V.release(tq, tu, tr)


def compute_role(c0):
    c = Ctx(c0.V.clone())
    c.__dict__.update({k: v for k, v in c0.__dict__.items() if k not in ("V", "cold")})
    V = c.V
    lane = c.lane
    wm = V.alloc(20, 4)
    cv = V.alloc(5)
    t, co, wo = V.alloc(1), V.alloc(1), V.alloc(1)
    A(f"v_lshrrev_b32 {t}, 1, {lane}")
    A(f"s_lshl_b32 {t0}, {sW4}, 5")
    A(f"v_add_u32 {t}, {t0}, {t}")
    A(f"v_lshlrev_b32 {co}, 1, {t}")
    A(f"v_mul_u32_u24 {wo}, 0x1e00, {t}")
    A(f"v_and_b32 {t}, 1, {lane}")
    A(f"v_lshl_add_u32 {wo}, {t}, 4, {wo}")
    srd_words((sWM, sCC, sWS, sX))
    A(f"s_mul_i32 {t3}, {sG}, 10")
    A(f"s_mul_i32 {t2}, {sG}, 20")
    A(f"s_add_u32 {t2}, {t2}, 70")
    A(f"s_cmp_lt_u32 {sJ}, 10")
    A(f"s_cselect_b32 {t3}, {t3}, {t2}")
    A(f"s_add_u32 {t3}, {t3}, {sJ}")
    A(f"s_lshl_b32 {t2}, {t3}, 5")
    A(f"s_cmp_lt_u32 {sJ}, {10 if OPT.get('exp1') else 30}")
    A(f"s_cselect_b32 {t2}, {t2}, {OOB}")
    xr = V.alloc(12, 4)
    xo, x3, cl, tok = V.alloc(1), V.alloc(1), V.alloc(1), V.alloc(1)
    A(f"v_and_b32 {cl}, 31, {lane}")
    A(f"v_lshrrev_b32 {tok}, 5, {lane}")
    A(f"s_lshl_b32 {t0}, {sJ}, 3")
    A(f"s_lshl_b32 {t1}, {sW4}, 1")
    A(f"s_add_u32 {t0}, {t0}, {t1}")
    A(f"v_add_u32 {tok}, {t0}, {tok}")
    A(f"v_mul_u32_u24 {xo}, 0x500, {tok}")
    A(f"v_lshl_add_u32 {xo}, {cl}, 4, {xo}")
    A(f"s_mul_i32 {t1}, {sG}, {ACT}")
    A(f"v_mov_b32 {x3}, {OOB}")
    A(f"v_cmp_gt_u32 {p1}, 16, {cl}")
    A(f"v_cndmask_b32_e64 {x3}, {x3}, {xo}, {p1}")
    A("s_waitcnt lgkmcnt(0)")
    A(f"s_load_dword {sT[0]}, {sWS[0:2]}, {WS_E}")
    c.stamp("z_karg", "s")
    for p in range(5):
        A(f"buffer_load_ushort {cv[p]}, {co}, {sCC}, 0 offen offset:{256 * p}")
    for p in range(5):
        A(f"buffer_load_dwordx4 {wm[4 * p:4 * p + 4]}, {wo}, {sWM}, {t2} offen{' nt' if OPT['nt0'] else ''}")
        if p < 4:
            A(f"s_add_u32 {t2}, {t2}, {128 * 7680}")
    A(f"buffer_load_dwordx4 {xr[0:4]}, {xo}, {sX}, {t1} offen{' nt' if OPT['nt0'] else ''}")
    A(f"buffer_load_dwordx4 {xr[4:8]}, {xo}, {sX}, {t1} offen offset:512{' nt' if OPT['nt0'] else ''}")
    A(f"buffer_load_dwordx4 {xr[8:12]}, {x3}, {sX}, {t1} offen offset:1024{' nt' if OPT['nt0'] else ''}")
    c.stamp("z_bs", "s")
    V.release(xo, x3, wo, c.dummy)
    late_setup()
    e = V.alloc(5)
    for i in range(5):
        A(f"v_lshlrev_b32 {cv[i]}, 16, {cv[i]}")
    c.stamp("z_c", "s")
    for op in (f"v_mul_f32 {{e}}, {hex(f32(-LOG2E))}, {{s}}", "v_exp_f32 {e}, {e}", "v_add_f32 {e}, 1.0, {e}", "v_rcp_f32 {e}, {e}",
               "v_mul_f32 {s}, {s}, {e}", "v_cvt_pk_bf16_f32 {e}, 0, {s}", "v_cvt_pk_bf16_f32 {s}, {s}, 0"):
        for i in range(5):
            A(op.format(e=e[i], s=cv[i]))
    acc = V.alloc(8)
    for p in range(5):
        for i in range(4):
            for h, m in ((0, cv), (1, e)):
                A(f"v_dot2_f32_bf16 {acc[2 * i + h]}, {wm[4 * p + i]}, {m[p]}, {'0' if p == 0 else acc[2 * i + h]}")
    c.stamp("s_wmod")
    for i in range(4):
        A(f"v_permlane32_swap_b32 {acc[i]}, {acc[i + 4]}")
    for i in range(4):
        A(f"v_add_f32 {acc[i]}, {acc[i]}, {acc[i + 4]}")
    for i in range(2):
        A(f"v_permlane16_swap_b32 {acc[i]}, {acc[i + 2]}")
    r = V.alloc(2)
    for i in range(2):
        A(f"v_add_f32 {r[i]}, {acc[i]}, {acc[i + 2]}")
    for m in ("row_ror:8", "row_ror:4", "row_ror:2"):
        for i in range(2):
            A(f"v_add_f32_dpp {r[i]}, {r[i]}, {r[i]} {m} row_mask:0xf bank_mask:0xf")
    A(f"v_lshlrev_b32 {t}, 5, {t}")
    A(f"v_lshrrev_b32 {co}, 4, {lane}")
    A(f"v_lshl_add_u32 {t}, {co}, 3, {t}")
    A(f"s_lshl_b32 {t0}, {sW4}, 6")
    A(f"v_add_u32 {t}, {t0}, {t}")
    A(f"ds_write_b64 {t}, {r} offset:{L_PART}")
    tag_setup()
    A("s_barrier")
    skip, join = lab("nopub"), lab("pubdone")
    A(f"s_cmp_lg_u32 {sW4}, 0")
    A.branch(f"s_cbranch_scc1 {skip}")
    pr, gr = wm[0:16], wm[16:20]
    A("s_mov_b64 exec, 15")
    for p in range(4):
        A(f"ds_read_b128 {pr[4 * p:4 * p + 4]}, {c.l16} offset:{L_PART + 64 * p}")
    A(f"s_lshl_b32 {t0}, {t3}, 7")
    A(f"s_add_u32 {t0}, {t0}, {WS_MOD}")
    A(f"s_cmp_lt_u32 {sJ}, 30")
    A(f"s_cselect_b32 {t0}, {t0}, {OOB}")
    A(f"v_mov_b32 {gr[2]}, {sT[0]}")
    A(f"v_mov_b32 {gr[3]}, {sT[1]}")
    for p in range(1, 4):
        for i in range(4):
            A(f"v_add_f32 {pr[i]}, {pr[i]}, {pr[4 * p + i]}")
    A(f"v_cvt_pk_bf16_f32 {gr[0]}, {pr[0]}, {pr[1]}")
    A(f"v_cvt_pk_bf16_f32 {gr[1]}, {pr[2]}, {pr[3]}")
    A(f"buffer_store_dwordx4 {gr}, {c.l16}, {sWS}, {t0} offen sc1")
    A("s_mov_b64 exec, -1")
    A("s_waitcnt vmcnt(1)")
    A.branch(f"s_branch {join}")
    A.label(skip)
    A("s_waitcnt vmcnt(0)")
    A.label(join)
    V.release(wm, cv, e, acc, r, t, co)
    c.stamp("s_pub")
    xf = V.alloc(24, 2)
    mean, var, tmp, m3 = V.alloc(1), V.alloc(1), V.alloc(1), V.alloc(1)
    for i in range(12):
        unpack(xf[2 * i], xf[2 * i + 1], xr[i])
    A(f"v_add_f32 {mean}, {xf[0]}, {xf[1]}")
    for i in range(2, 24):
        A(f"v_add_f32 {mean}, {mean}, {xf[i]}")
    sum16(mean)
    xor16_add(mean, tmp)
    A(f"v_mul_f32 {mean}, {hex(f32(1 / 640))}, {mean}")
    A(f"v_cndmask_b32_e64 {m3}, 0, {mean}, {p1}")
    d = xr
    for i in range(24):
        A(f"v_sub_f32 {d[i % 4]}, {xf[i]}, {mean if i < 16 else m3}")
        if i == 0:
            A(f"v_mul_f32 {var}, {d[0]}, {d[0]}")
        else:
            A(f"v_fmac_f32 {var}, {d[i % 4]}, {d[i % 4]}")
    sum16(var)
    xor16_add(var, tmp)
    A(f"v_mul_f32 {var}, {hex(f32(1 / 640))}, {var}")
    ln_scalars(mean, var, tmp)
    for i in range(0, 24, 2):
        A(f"v_sub_f32 {xf[i]}, {xf[i]}, {mean}")
        A(f"v_sub_f32 {xf[i + 1]}, {xf[i + 1]}, {mean}")
        round_pair(xf[i], xf[i + 1], tmp)
        A(f"v_mul_f32 {xf[i]}, {xf[i]}, {var}")
        A(f"v_mul_f32 {xf[i + 1]}, {xf[i + 1]}, {var}")
        round_pair(xf[i], xf[i + 1], tmp)
    V.release(mean, var, m3)
    c.stamp("z_ln", "s")
    qkv_role()
    qkv_addr(c)
    hao, ha3, ma, m3a = V.alloc(1), V.alloc(1), V.alloc(1), V.alloc(1)
    A(f"v_lshrrev_b32 {hao}, 5, {tok}")
    A(f"v_mul_u32_u24 {hao}, 0xa000, {hao}")
    A(f"v_and_b32 {ha3}, 31, {tok}")
    A(f"v_lshl_add_u32 {hao}, {ha3}, 4, {hao}")
    A(f"v_lshl_add_u32 {hao}, {cl}, 9, {hao}")
    A(f"v_mov_b32 {ha3}, {OOB}")
    A(f"v_cndmask_b32_e64 {ha3}, {ha3}, {hao}, {p1}")
    A(f"v_lshlrev_b32 {ma}, 5, {cl}")
    A(f"v_and_b32 {m3a}, 15, {cl}")
    A(f"v_lshlrev_b32 {m3a}, 5, {m3a}")
    V.release(cl, tok)
    ga, gb = V.alloc(4, 4), V.alloc(4, 4)
    a2, a3 = V.alloc(1), V.alloc(1)
    a1 = V.alloc(1)
    A(f"s_mul_i32 {t1}, {sW4}, 1280")
    A(f"s_lshl_b32 {t2}, {t1}, 1")
    A(f"s_add_u32 {t2}, {t2}, {WS_MOD}")
    A(f"s_lshl_b32 {t3}, {sG}, 9")
    A(f"s_lshl_b32 {t4}, {sW4}, 7")
    A(f"s_add_u32 {t3}, {t3}, {t4}")
    A(f"s_add_u32 {t3}, {t3}, {WS_CENSUS}")
    A(f"s_add_u32 {t4}, {t2}, 2048")
    A(f"v_and_b32 {a2}, 3, {lane}")
    A(f"v_lshlrev_b32 {a2}, 4, {a2}")
    A(f"v_lshrrev_b32 {a1}, 2, {lane}")
    A(f"v_lshl_add_u32 {a1}, {a1}, 7, {a2}")
    A(f"v_and_b32 {ga[0]}, 0x1ff, {a1}")
    A(f"v_add_u32 {ga[0]}, {t4}, {ga[0]}")
    A(f"v_and_b32 {a3}, 7, {lane}")
    A(f"v_lshl_add_u32 {a3}, {a3}, 4, {t3}")
    A(f"v_cndmask_b32_e64 {a3}, {ga[0]}, {a3}, {sHI}")
    A(f"v_and_b32 {a2}, 15, {lane}")
    A(f"v_lshlrev_b32 {a2}, 4, {a2}")
    c.stamp("s_pre")

    def chk():
        A(f"v_xor_b32 {ga[3]}, {sT[1]}, {ga[3]}")
        A(f"v_xor_b32 {gb[3]}, {sT[1]}, {gb[3]}")
        A(f"v_cmp_ne_u32 vcc, {sT[0]}, {ga[2]}")
        A(f"v_cmp_ne_u32 {p0}, {sT[0]}, {gb[2]}")
        A(f"v_or_b32 {tmp}, {ga[3]}, {gb[3]}")
        A(f"s_or_b64 vcc, vcc, {p0}")
        A(f"v_cmp_lt_u32 {p0}, 15, {tmp}")
        A(f"s_or_b64 vcc, vcc, {p0}")
    poll(c, [f"buffer_load_dwordx4 {ga}, {a1}, {sWS}, {t2} offen sc1",
             f"buffer_load_dwordx4 {gb}, {a3}, {sWS}, 0 offen sc1"], chk, acquire=False, backoff=OPT.get("gsleep", 0))
    V.release(a1)
    c.stamp("s_gath")
    A(f"v_cmp_ne_u32 vcc, {sXCC}, {gb[3]}")
    A(f"s_cmp_lg_u32 vcc_hi, 0")
    A(f"s_cselect_b32 {t3}, 1, {OPT['force_slow']}")
    A(f"s_cmp_ge_u32 {sW4}, 2")
    A(f"s_cselect_b32 {t4}, 1.0, 0")
    fa, fb = V.alloc(4, 4), V.alloc(4, 4)
    for g_, f_ in ((ga, fa), (gb, fb)):
        unpack(f_[0], f_[1], g_[0])
        unpack(f_[2], f_[3], g_[1])
        for i in range(4):
            A(f"v_add_f32 {f_[i]}, {t4}, {f_[i]}")
        round_pair(f_[0], f_[1], tmp)
        round_pair(f_[2], f_[3], tmp)
    A(f"s_add_u32 {t1}, {t1}, {L_MOD1F}")
    A(f"v_add_u32 {ga[0]}, {t1}, {c.l16}")
    A(f"v_add_u32 {a2}, {t1}, {a2}")
    A(f"s_lshl_b32 {t0}, {sW4}, 2")
    A(f"v_mov_b32 {ga[1]}, {t0}")
    A(f"v_mov_b32 {ga[2]}, {t3}")
    A(f"v_mov_b32 {ga[3]}, 0")
    A(f"v_mov_b32 {a3}, 1")
    A(f"ds_write_b128 {ga[0]}, {fa}")
    A("s_mov_b64 exec, 0xffff")
    A(f"ds_write_b128 {a2}, {fb} offset:1024")
    A("s_mov_b64 exec, 1")
    A(f"ds_write_b32 {ga[1]}, {ga[2]} offset:{L_MODEF}")
    A(f"ds_add_u32 {ga[3]}, {a3} offset:{L_CNT + 4}")
    A("s_mov_b64 exec, -1")
    V.release(gb, fa, fb, a2, a3)
    c.stamp("z_cvt", "s")
    lds_spin(c, L_CNT + 4, 4)
    c.stamp("z_spin", "s")
    A(f"v_mov_b32 {ga[0]}, 0")
    A(f"ds_read_b128 {ga}, {ga[0]} offset:{L_MODEF}")
    sc, sh = V.alloc(24, 4), V.alloc(24, 4)
    for k in range(3):
        ad = ma if k < 2 else m3a
        for h in range(2):
            A(f"ds_read_b128 {sc[8 * k + 4 * h:8 * k + 4 * h + 4]}, {ad} offset:{L_MOD1F + 2560 + 1024 * k + 16 * h}")
            A(f"ds_read_b128 {sh[8 * k + 4 * h:8 * k + 4 * h + 4]}, {ad} offset:{L_MOD1F + 1024 * k + 16 * h}")
    A(f"v_or_b32 {ga[0]}, {ga[0]}, {ga[1]}")
    A(f"v_or3_b32 {ga[0]}, {ga[0]}, {ga[2]}, {ga[3]}")
    A(f"v_readfirstlane_b32 {sMODE}, {ga[0]}")
    hd = V.alloc(12, 4)
    A(f"s_mul_i32 {t5}, {sG}, {ACT}")
    add_base(t5, WS_H1, WS_A, t6)
    A(f"s_add_u32 {t6}, {t5}, 16384")
    A(f"s_add_u32 {t7}, {t5}, 32768")
    for k in range(3):
        for i in range(8 * k, 8 * k + 8, 2):
            if OPT["mim"] & 1:
                A(f"v_pk_mul_f32 {xf[i:i + 2]}, {xf[i:i + 2]}, {sc[i:i + 2]}")
                round_pair(xf[i], xf[i + 1], tmp)
                A(f"v_pk_add_f32 {xf[i:i + 2]}, {xf[i:i + 2]}, {sh[i:i + 2]}")
            else:
                A(f"v_pk_fma_f32 {xf[i:i + 2]}, {xf[i:i + 2]}, {sc[i:i + 2]}, {sh[i:i + 2]}")
            A(f"v_cvt_pk_bf16_f32 {hd[i // 2]}, {xf[i]}, {xf[i + 1]}")
        A(f"buffer_store_dwordx4 {hd[4 * k:4 * k + 4]}, {ha3 if k == 2 else hao}, {sWS}, {(t5, t6, t7)[k]} offen")
    V.release(xf, xr, sc, sh, ma, m3a, hao, ha3, ga)
    c.stamp("z_h1st", "s")
    signal(c, 0)
    V.release(hd)
    c.stamp("s_h1")
    sA = t6
    A(f"s_lshl_b32 {t4}, {sRH}, 2")
    A(f"s_add_u32 {t4}, {t4}, {sW4}")
    A(f"s_mul_i32 {sA}, {t4}, 40960")
    A(f"s_mul_i32 {t0}, {sRH}, 20480")
    A(f"s_add_u32 {sA}, {sA}, {t5}")
    A(f"s_add_u32 {sA}, {sA}, {t0}")
    A(f"s_mul_i32 {t7}, {sRH}, 40960")
    A(f"s_sub_u32 {t7}, 4096, {t7}")
    A(f"s_lshl_b32 {t1}, {t4}, 6")
    wait_edge(c, 0, t1)
    V.release(tmp)
    c.stamp("s_e1")
    D = OPT["qd"]
    ring = [V.alloc(4, 4) for _ in range(D)]
    W = [V.alloc(16, 4), V.alloc(16, 4)]
    acc = [V.alloc(16, 4) for _ in range(4)]

    def loadA(p):
        A(f"buffer_load_dwordx4 {ring[p % D]}, {c.l16}, {sWS}, {sA} offen offset:{(p % 4) * 1024} sc1")
        if p % 4 == 3 and p < 39:
            A(f"s_add_u32 {sA}, {sA}, {t7 if p == 19 else 4096}")

    def readW(p, ct):
        slot = p if p < 37 else p - 37
        if p in (16, 32):
            A(f"v_add_u32 {c.wq[ct]}, {16 * 4096}, {c.wq[ct]}")
        if p == 37:
            A(f"v_subrev_u32 {c.wq[ct]}, {32 * 4096}, {c.wq[ct]}")
        for u in range(2):
            A(f"ds_read_b64_tr_b16 {W[p & 1][4 * ct + 2 * u:4 * ct + 2 * u + 2]}, {c.wq[ct]} offset:{(slot % 16) * 4096 + 1024 * u}")

    issued = OPT["qinit"]
    for p in range(issued):
        loadA(p)
    bump(c, L_CNT + 8)
    A("s_barrier")
    c.stamp("z_q0", "q")
    for ct in range(4):
        readW(0, ct)
    for p in range(40):
        nxt = p + 1 < 40
        if nxt and (p + 1) % 8 == 0:
            if p + 1 == 8:
                A("s_waitcnt lgkmcnt(0)")
            A("s_barrier")
            c.stamp("z_q%d" % ((p + 1) // 8), "q")
        for ct in range(4):
            A(f"v_mfma_f32_32x32x16_bf16 {acc[ct]}, {W[p & 1][4 * ct:4 * ct + 4]}, {ring[p % D]}, {'0' if p == 0 else acc[ct]}")
            if nxt:
                readW(p + 1, ct)
            if ct in (0, 2) and issued < min(40, p + D) and (ct == 0 or p % 2 == 0):
                loadA(issued)
                issued += 1
    V.release(ring, W, c.wq)
    A("s_barrier")
    c.stamp("q_loop")
    noq = lab("noq")
    A(f"s_mul_i32 {t5}, {sG}, {QKVG}")
    A(f"s_add_u32 {t5}, {t5}, {WS_QKV}")
    A(f"s_lshl_b32 {t0}, {sCB}, 16")
    A(f"s_lshl_b32 {t1}, {t4}, 8")
    A(f"s_add_u32 {t0}, {t0}, {t1}")
    A(f"s_add_u32 {t0}, {t0}, {t5}")
    A(f"s_cmp_lt_u32 {sJ}, 30")
    A(f"s_cselect_b32 {t2}, {t0}, {OOB}")
    A(f"s_mov_b32 {p0[0]}, {hex(QSCALE)}")
    A(f"s_mov_b32 {p0[1]}, {hex(QSCALE)}")
    A(f"s_cmp_ge_u32 {sCB}, 5")
    A.branch(f"s_cbranch_scc1 {noq}")
    for ct in range(4):
        for r in range(0, 16, 2):
            A(f"v_pk_mul_f32 {acc[ct][r:r + 2]}, {acc[ct][r:r + 2]}, {p0}")
    A.label(noq)
    pk = V.alloc(32, 4)
    for ct in range(4):
        for ap in range(2):
            d_ = pk[8 * ct + 4 * ap:8 * ct + 4 * ap + 4]
            for i in range(4):
                A(f"v_cvt_pk_bf16_f32 {d_[i]}, {acc[ct][8 * ap + 2 * i]}, {acc[ct][8 * ap + 2 * i + 1]}")
        for ap in range(2):
            d_ = pk[8 * ct + 4 * ap:8 * ct + 4 * ap + 4]
            for i in range(2):
                A(f"v_permlane16_swap_b32 {d_[i]}, {d_[2 + i]}")
            A(f"buffer_store_dwordx4 {d_}, {c.xs}, {sWS}, {t2} offen{'' if OPT.get('xplain') else ' sc1'}")
            if (ct, ap) != (3, 1):
                A(f"s_add_u32 {t2}, {t2}, 8192")
    V.release(c.xs)
    V.release(acc)
    c.stamp("z_st", "x")
    att_masks(c)
    att_addr(c)
    A(f"s_lshl_b32 {t0}, {sW4}, 1")
    A(f"s_add_u32 {t0}, {t0}, 2")
    A(f"s_cmp_eq_u32 {sG}, 0")
    A(f"s_cselect_b32 {sHOOK}, {t0}, 99")
    fa_, fd = V.alloc(1), V.alloc(1)
    nosig = lab("xnosig")
    A(f"s_lshl_b32 {t0}, {sG}, 12")
    A(f"s_add_u32 {t0}, {t0}, {WS_XFLAG}")
    A(f"s_lshl_b32 {t1}, {sJ}, 7")
    A(f"s_add_u32 {t1}, {t1}, {t0}")
    A(f"v_mov_b32 {fa_}, 0")
    A(f"v_mov_b32 {fd}, 1")
    A("s_mov_b64 exec, 1")
    A("s_waitcnt vmcnt(0)")
    A(f"ds_add_rtn_u32 {fd}, {fa_}, {fd} offset:{L_CNT}")
    A(f"v_readfirstlane_b32 {t2}, {fd}")
    A(f"v_mov_b32 {fd}, {sT[0]}")
    A(f"s_cmp_lg_u32 {t2}, 3")
    A.branch(f"s_cbranch_scc1 {nosig}", noflush=True)
    A(f"buffer_store_dword {fd}, {fa_}, {sWS}, {t1} offen sc1")
    A.label(nosig)
    A("s_mov_b64 exec, -1")
    V.release(pk)
    c.stamp("x_sig")
    A(f"s_cmp_lt_u32 {sW4}, 2")
    A(f"s_cselect_b32 {t3}, 1, 0")
    A(f"s_min_u32 {t2}, {t3}, {sG}")
    A(f"s_lshl_b32 {t1}, {t2}, 12")
    A(f"s_sub_u32 {t1}, {t0}, {t1}")
    A(f"s_mul_i32 {t2}, {t2}, {QKVG}")
    A(f"s_sub_u32 {t6}, {t5}, {t2}")
    A(f"s_cmp_gt_u32 {t3}, {sG}")
    A(f"s_cselect_b32 {t6}, {OOB}, {t6}")
    x_, y_ = V.alloc(1), V.alloc(1)
    A(f"v_min_u32 {x_}, 5, {lane}")
    A(f"v_lshrrev_b32 {y_}, 1, {x_}")
    A(f"v_mul_u32_u24 {fa_}, 0xa0, {y_}")
    A(f"v_and_b32 {x_}, 1, {x_}")
    A(f"v_lshl_add_u32 {fa_}, {x_}, 2, {fa_}")
    A(f"s_mul_i32 {t2}, {sJ}, 5")
    A(f"v_add_u32 {fa_}, {t2}, {fa_}")
    A(f"v_lshrrev_b32 {fa_}, 5, {fa_}")
    A(f"v_lshlrev_b32 {fa_}, 7, {fa_}")
    A(f"s_lshr_b32 {t2}, {sW4}, 1")
    A(f"s_mul_i32 {t2}, {t2}, {15 * 128}")
    A(f"s_add_u32 {t0}, {t0}, {t2}")
    A(f"s_and_b32 {t2}, {sW4}, 1")
    A(f"s_mul_i32 {t3}, {t2}, {15 * 128}")
    A(f"s_add_u32 {t1}, {t1}, {t3}")
    A(f"v_mov_b32 {x_}, {t1}")
    A(f"v_mov_b32 {fd}, {t0}")
    A(f"v_cmp_eq_u32 vcc, 0, {y_}")
    A(f"v_cndmask_b32 {x_}, {x_}, {fd}, vcc")
    A(f"v_add_u32 {fa_}, {fa_}, {x_}")
    V.release(x_, y_)
    A(f"s_lshl_b32 {t2}, {t2}, 10")
    A(f"s_add_u32 {t6}, {t6}, {t2}")
    A(f"s_mul_i32 {t2}, {sJ}, {5 * 2048}")
    A(f"s_add_u32 {t5}, {t5}, {t2}")
    A(f"s_add_u32 {t6}, {t6}, {t2}")
    A(f"s_add_u32 {t6}, {t6}, {160 * 2048}")
    A(f"s_lshl_b32 {t7}, {sW4}, 10")
    A(f"s_lshl_b32 {t2}, {sW4}, 9")
    A(f"s_add_u32 {t5}, {t5}, {t2}")
    poll(c, [f"buffer_load_dword {fd}, {fa_}, {sWS}, 0 offen sc1"], lambda: A(f"v_cmp_ne_u32 vcc, {sT[0]}, {fd}"), backoff=OPT.get("xsleep", 0))
    V.release(fa_, fd)
    c.stamp("x_flag")
    for arr in range(10):
        A(f"s_add_u32 m0, {t7}, {L_K + KVS * arr}")
        kv_tag = A.tagged(f"buffer_load_dwordx4 {c.l16}, {sWS}, {t6} offen sc1 lds")
        if arr < 9:
            A(f"s_add_u32 {t6}, {t6}, {2048 if arr != 4 else 156 * 2048}")
    c.Q0, c.Q1 = [V.alloc(4, 4), V.alloc(4, 4)], [V.alloc(2), V.alloc(2)]
    A(f"s_add_u32 {t1}, {t5}, 4096")
    A(f"s_add_u32 {t2}, {t5}, 8192")
    for st in range(2):
        of = 256 * (1 - st)
        A(f"buffer_load_dwordx2 {c.Q0[st][0:2]}, {c.xa}, {sWS}, {t5} offen offset:{of} sc1")
        A(f"buffer_load_dwordx2 {c.Q0[st][2:4]}, {c.xa}, {sWS}, {t1} offen offset:{of} sc1")
        q_tag = A.tagged(f"buffer_load_dwordx2 {c.Q1[st]}, {c.xq1}, {sWS}, {t2} offen offset:{of} sc1")
    V.release(c.xa, c.xq1)
    oa = [V.alloc(1) for _ in range(3)]
    xt = V.alloc(10, 2)
    tokb, gq, wa = V.alloc(1), V.alloc(1), V.alloc(1)
    dd, t, u = V.alloc(4, 4), V.alloc(1), V.alloc(1)
    mo = V.alloc(1)
    A(f"s_mul_i32 {t2}, {sW4}, 40")
    A(f"s_mul_i32 {t3}, {sN}, 5")
    A(f"s_add_u32 {t2}, {t2}, {t3}")
    A(f"s_lshl_b32 {t2}, {t2}, 7")
    A(f"s_add_u32 {t4}, {t2}, {WS_MOD + 80 * 128}")
    A(f"v_min_u32 {t}, 19, {lane}")
    A(f"v_and_b32 {u}, 3, {t}")
    A(f"v_lshrrev_b32 {mo}, 2, {t}")
    A(f"v_lshlrev_b32 {mo}, 7, {mo}")
    A(f"v_lshl_add_u32 {mo}, {u}, 4, {mo}")
    A(f"buffer_load_dwordx4 {dd}, {mo}, {sWS}, {t4} offen sc1")
    A(f"v_and_b32 {t}, 15, {lane}")
    A(f"s_lshl_b32 {t0}, {sI}, 6")
    A(f"s_lshl_b32 {t1}, {sW4}, 4")
    A(f"s_add_u32 {t0}, {t0}, {t1}")
    A(f"v_add_u32 {tokb}, {t0}, {t}")
    A(f"v_mul_u32_u24 {u}, 0x500, {tokb}")
    A(f"v_lshrrev_b32 {gq}, 4, {lane}")
    A(f"s_mul_i32 {t1}, {sN}, 160")
    A(f"v_lshl_add_u32 {t}, {gq}, 3, {t1}")
    A(f"v_add_u32 {u}, {u}, {t}")
    A(f"s_mul_i32 {t1}, {sG}, {ACT}")
    for ct in range(5):
        A(f"buffer_load_dwordx2 {xt[2 * ct:2 * ct + 2]}, {u}, {sX}, {t1} offen offset:{32 * ct}")
    hi, x_ = V.alloc(1), V.alloc(1)
    A(f"v_lshrrev_b32 {hi}, 5, {lane}")
    A(f"s_mul_i32 {t0}, {sJ}, 5")
    A(f"v_bfe_u32 {t}, {lane}, 4, 1")
    A(f"v_mul_u32_u24 {t}, 0x5000, {t}")
    A(f"v_and_b32 {u}, 15, {lane}")
    A(f"v_lshl_add_u32 {t}, {u}, 4, {t}")
    for k in range(3):
        A(f"s_add_u32 {t1}, {t0}, {2 * k}")
        A(f"v_add_u32 {u}, {t1}, {hi}")
        A(f"v_lshrrev_b32 {oa[k]}, 2, {u}")
        A(f"v_lshl_add_u32 {oa[k]}, {oa[k]}, 9, {t}")
        A(f"v_and_b32 {x_}, 1, {u}")
        A(f"v_lshl_add_u32 {oa[k]}, {x_}, 8, {oa[k]}")
        A(f"v_bfe_u32 {x_}, {u}, 1, 1")
        A(f"v_lshl_add_u32 {oa[k]}, {x_}, 3, {oa[k]}")
    A(f"v_mov_b32 {u}, {OOB}")
    A(f"v_cndmask_b32_e64 {oa[2]}, {oa[2]}, {u}, {sHI}")
    wtile_addr(c, L_WO, 10 * 5120, wa, t, u)
    V.release(hi, x_, u)
    A(f"s_mul_i32 {t5}, {sG}, {ACT}")
    add_base(t5, WS_O, WS_A, t1)
    A(f"s_mul_i32 {t1}, {sW4}, 81920")
    A(f"s_add_u32 {t6}, {t1}, {t5}")
    A(f"s_add_u32 {t7}, {t6}, 40960")
    A.wait_vm(q_tag)
    A("s_barrier")
    c.stamp("x_kv")

    def store_o(st):
        for k in range(3):
            A(f"buffer_store_dwordx2 {c.op[st][2 * k:2 * k + 2]}, {oa[k]}, {sWS}, {(t7, t6)[st]} offen")
    c.store_o = store_o
    attention(c)
    c.stamp("a_end")
    signal(c, 1)
    V.release(oa)
    u = gq
    c.stamp("a_sig")
    again, have = lab("modagain"), lab("modhave")
    check_tags([dd[2:4]])()
    A.branch(f"s_cbranch_vccnz {again}")
    A.label(have)

    def cold_mod(dd=dd, mo=mo):
        A.label(again)
        poll(c, [f"buffer_load_dwordx4 {dd}, {mo}, {sWS}, {t4} offen sc1"], check_tags([dd[2:4]]), acquire=False)
        A.branch(f"s_branch {have}")
    c.cold.append(cold_mod)
    tm = V.alloc(1)
    A(f"s_cmp_eq_u32 {sW4}, 2")
    A(f"s_cselect_b32 {t3}, 1.0, 0")
    unpack(dd[2], dd[3], dd[1])
    A(f"v_and_b32 {dd[1]}, 0xffff0000, {dd[0]}")
    A(f"v_lshlrev_b32 {dd[0]}, 16, {dd[0]}")
    for i in range(4):
        A(f"v_add_f32 {dd[i]}, {t3}, {dd[i]}")
    round_pair(dd[0], dd[1], tm)
    round_pair(dd[2], dd[3], tm)
    A(f"s_mul_i32 {t2}, {sW4}, 320")
    A(f"v_min_u32 {mo}, 19, {lane}")
    A(f"v_lshl_add_u32 {mo}, {mo}, 4, {t2}")
    A(f"ds_write_b128 {mo}, {dd} offset:{L_MOD2F}")
    tile_streams((WS_O, WS_A), ACT, 20480, 10240, t6, t7)
    A(f"s_lshl_b32 {t1}, {sI}, 7")
    A(f"s_add_u32 {t2}, {t1}, 64")
    wait_edge(c, 1, t1, t2)
    A("s_waitcnt lgkmcnt(0)")
    V.release(dd, mo, tm)
    c.stamp("b_e2")
    acc = tile_gemm(c, 10, t6, t7, OPT["binit"], 10, lambda ks: (wa, ks * 5120), {0})
    c.stamp("b_loop")
    V.release(wa)
    mv = V.alloc(20, 4)
    ma = V.alloc(1)
    A(f"v_lshlrev_b32 {ma}, 4, {u}")
    for ct in range(5):
        A(f"ds_read_b128 {mv[4 * ct:4 * ct + 4]}, {ma} offset:{L_MOD2F + 64 * ct}")
    a = tile_reduce(c, acc, L_RED)
    c.stamp("z_red", "b")
    x1 = V.alloc(20, 2)
    c.x1p = V.alloc(10)
    tmp = V.alloc(1)
    for i in range(0, 20, 2):
        round_pair(a[i], a[i + 1], tmp)
        A(f"v_pk_mul_f32 {a[i:i + 2]}, {a[i:i + 2]}, {mv[i:i + 2]}")
        round_pair(a[i], a[i + 1], tmp)
        unpack(x1[i], x1[i + 1], xt[i // 2])
        A(f"v_pk_add_f32 {x1[i:i + 2]}, {x1[i:i + 2]}, {a[i:i + 2]}")
        A(f"v_cvt_pk_bf16_f32 {c.x1p[i // 2]}, {x1[i]}, {x1[i + 1]}")
        unpack(x1[i], x1[i + 1], c.x1p[i // 2])
    V.release(xt)
    c.stamp("z_x1", "b")
    gr = V.alloc(4, 4)
    A(f"v_add_f32 {gr[0]}, {x1[0]}, {x1[1]}")
    for i in range(2, 20):
        A(f"v_add_f32 {gr[0]}, {gr[0]}, {x1[i]}")
    xor16_add(gr[0], tmp)
    xor32_op("v_add_f32", gr[0], tmp)
    A(f"v_mul_f32 {gr[0]}, {hex(f32(1 / 80))}, {gr[0]}")
    for i in range(20):
        A(f"v_sub_f32 {a[i % 4]}, {x1[i]}, {gr[0]}")
        if i == 0:
            A(f"v_mul_f32 {gr[1]}, {a[0]}, {a[0]}")
        else:
            A(f"v_fmac_f32 {gr[1]}, {a[i % 4]}, {a[i % 4]}")
    xor16_add(gr[1], tmp)
    xor32_op("v_add_f32", gr[1], tmp)
    A(f"v_mov_b32 {gr[2]}, {sT[0]}")
    A(f"v_mov_b32 {gr[3]}, {sT[1]}")
    A(f"v_lshlrev_b32 {t}, 7, {tokb}")
    A(f"s_lshl_b32 {t0}, {sG}, 15")
    A(f"s_add_u32 {t0}, {t0}, {WS_STATS}")
    A(f"s_lshl_b32 {t1}, {sN}, 4")
    A(f"s_add_u32 {t1}, {t1}, {t0}")
    slow, done = lab("stslow"), lab("stdone")
    A("s_mov_b64 exec, 0xffff")
    A(f"s_cmp_lg_u32 {sMODE}, 0")
    A.branch(f"s_cbranch_scc1 {slow}", noflush=True)
    A(f"buffer_store_dwordx4 {gr}, {t}, {sWS}, {t1} offen")
    A.label(done)
    A("s_mov_b64 exec, -1")

    def cold_st(gr=gr, t=t, slow=slow, done=done):
        A.label(slow)
        A(f"buffer_store_dwordx4 {gr}, {t}, {sWS}, {t1} offen sc1")
        A.branch(f"s_branch {done}")
    c.cold.append(cold_st)
    c.stamp("z_st", "b")
    c.gbp = V.alloc(10)
    for ct in range(5):
        A(f"ds_read_b128 {mv[4 * ct:4 * ct + 4]}, {ma} offset:{L_MOD2F + 960 + 64 * ct}")
    for i in range(10):
        A(f"v_cvt_pk_bf16_f32 {c.gbp[i]}, {mv[2 * i]}, {mv[2 * i + 1]}")
    sh = a
    for ct in range(5):
        A(f"ds_read_b128 {mv[4 * ct:4 * ct + 4]}, {ma} offset:{L_MOD2F + 640 + 64 * ct}")
        A(f"ds_read_b128 {sh[4 * ct:4 * ct + 4]}, {ma} offset:{L_MOD2F + 320 + 64 * ct}")
    g0, g1 = V.alloc(4, 4), V.alloc(4, 4)
    sa_ = V.alloc(1)
    A(f"v_lshl_add_u32 {sa_}, {u}, 5, {t}")
    poll(c, [f"buffer_load_dwordx4 {g0}, {sa_}, {sWS}, {t0} offen sc1",
             f"buffer_load_dwordx4 {g1}, {sa_}, {sWS}, {t0} offen offset:16 sc1"], check_tags([g0[2:4], g1[2:4]]), acquire=False)
    bump(c, L_CNT + 12)
    c.stamp("b_stat")
    mean, var = gr[0], gr[1]
    A(f"v_add_f32 {mean}, {g0[0]}, {g1[0]}")
    xor16_add(mean, tmp)
    xor32_op("v_add_f32", mean, tmp)
    A(f"v_mul_f32 {mean}, 0x3e000000, {mean}")
    A(f"v_sub_f32 {g0[0]}, {g0[0]}, {mean}")
    A(f"v_sub_f32 {g1[0]}, {g1[0]}, {mean}")
    A(f"v_mul_f32 {g0[0]}, {g0[0]}, {g0[0]}")
    A(f"v_fmac_f32 {g0[0]}, {g1[0]}, {g1[0]}")
    A(f"v_add_f32 {var}, {g0[1]}, {g1[1]}")
    A(f"v_fmac_f32 {var}, {hex(f32(80.0))}, {g0[0]}")
    xor16_add(var, tmp)
    xor32_op("v_add_f32", var, tmp)
    A(f"v_mul_f32 {var}, {hex(f32(1 / 640))}, {var}")
    ln_scalars(mean, var, tmp)
    A(f"v_lshrrev_b32 {t}, 5, {tokb}")
    A(f"v_mul_u32_u24 {t}, 0xa000, {t}")
    A(f"v_and_b32 {sa_}, 31, {tokb}")
    A(f"v_lshl_add_u32 {t}, {sa_}, 4, {t}")
    A(f"v_lshrrev_b32 {sa_}, 1, {u}")
    A(f"v_lshl_add_u32 {t}, {sa_}, 9, {t}")
    A(f"v_and_b32 {sa_}, 1, {u}")
    A(f"v_lshl_add_u32 {t}, {sa_}, 3, {t}")
    A(f"s_mul_i32 {t5}, {sG}, {ACT}")
    add_base(t5, WS_H2, WS_A, t1)
    A(f"s_mul_i32 {t1}, {sN}, 5120")
    A(f"s_add_u32 {t1}, {t1}, {t5}")
    A(f"s_add_u32 {t2}, {t1}, 4096")
    c.stamp("z_sc", "b")
    hp = V.alloc(10, 2)
    for i in range(0, 20, 2):
        A(f"v_sub_f32 {x1[i]}, {x1[i]}, {mean}")
        A(f"v_sub_f32 {x1[i + 1]}, {x1[i + 1]}, {mean}")
        round_pair(x1[i], x1[i + 1], tmp)
        A(f"v_mul_f32 {x1[i]}, {x1[i]}, {var}")
        A(f"v_mul_f32 {x1[i + 1]}, {x1[i + 1]}, {var}")
        round_pair(x1[i], x1[i + 1], tmp)
        A(f"v_pk_mul_f32 {x1[i:i + 2]}, {x1[i:i + 2]}, {mv[i:i + 2]}")
        round_pair(x1[i], x1[i + 1], tmp)
        A(f"v_pk_add_f32 {x1[i:i + 2]}, {x1[i:i + 2]}, {sh[i:i + 2]}")
        A(f"v_cvt_pk_bf16_f32 {hp[i // 2]}, {x1[i]}, {x1[i + 1]}")
        if i % 4 == 2:
            ct = i // 4
            A(f"buffer_store_dwordx2 {hp[2 * ct:2 * ct + 2]}, {t}, {sWS}, {t1 if ct < 4 else t2} offen offset:{1024 * (ct % 4)}")
    c.stamp("z_h2", "b")
    signal(c, 2)
    c.stamp("z_sig", "b")
    V.release(x1, a, mv, ma, gr, g0, g1, sa_, hp, tokb, tmp)
    g0a, g1a = V.alloc(1), V.alloc(1)
    A(f"v_lshrrev_b32 {t}, 5, {lane}")
    A(f"v_bfe_u32 {u}, {lane}, 2, 2")
    A(f"v_lshl_add_u32 {t}, {t}, 3, {u}")
    A(f"v_mul_u32_u24 {t}, 0xc0, {t}")
    A(f"v_bfe_u32 {u}, {lane}, 4, 1")
    A(f"v_mul_u32_u24 {u}, 0x60, {u}")
    A(f"v_add_u32 {t}, {t}, {u}")
    A(f"v_and_b32 {u}, 3, {lane}")
    A(f"v_lshl_add_u32 {g0a}, {u}, 3, {t}")
    A(f"v_add_u32 {g0a}, {L_GU}, {g0a}")
    A(f"v_add_u32 {g1a}, {20 * 3072}, {g0a}")
    ha = V.alloc(1)
    A(f"v_bfe_u32 {t}, {lane}, 4, 1")
    A(f"v_mul_u32_u24 {t}, 0xc000, {t}")
    A(f"v_and_b32 {u}, 15, {lane}")
    A(f"v_lshl_add_u32 {t}, {u}, 4, {t}")
    A(f"v_lshrrev_b32 {u}, 5, {lane}")
    A(f"v_lshl_add_u32 {ha}, {u}, 8, {t}")
    sAc, sH = t6, t7
    A(f"s_mul_i32 {sAc}, {sW4}, 81920")
    A(f"s_add_u32 {sAc}, {sAc}, {t5}")
    A(f"s_mul_i32 {sH}, {sG}, {HBG}")
    A(f"s_mul_i32 {t0}, {sW4}, {4 * 49152}")
    A(f"s_add_u32 {sH}, {sH}, {t0}")
    A(f"s_mul_i32 {t0}, {sJ}, 1536")
    A(f"s_add_u32 {sH}, {sH}, {t0}")
    add_base(sH, WS_HB, WS_B, t0)
    A(f"s_lshl_b32 {t1}, {sW4}, 7")
    A(f"s_add_u32 {t2}, {t1}, 64")
    wait_edge(c, 2, t1, t2)
    V.release(t, u)
    c.stamp("c_e3")
    D = OPT["cd"]
    ring = [V.alloc(4, 4) for _ in range(D)]
    W = [V.alloc(12, 4), V.alloc(12, 4)]
    acc = [[V.alloc(16, 4) for _ in range(3)] for _ in range(2)]
    et = V.alloc(8)
    hq = [V.alloc(4, 4), V.alloc(4, 4)]

    def loadA(n):
        A(f"buffer_load_dwordx4 {ring[n % D]}, {c.l16}, {sWS}, {sAc} offen offset:{(n % 4) * 1024} sc1")
        if n % 4 == 3:
            A(f"s_add_u32 {sAc}, {sAc}, 4096")

    def readW(n, ct):
        s = n % 40
        for u_ in range(2):
            A(f"ds_read_b64_tr_b16 {W[n & 1][4 * ct + 2 * u_:4 * ct + 2 * u_ + 2]}, {g0a if s < 20 else g1a} "
              f"offset:{(s % 20) * 3072 + 768 * u_ + 32 * ct}")

    def glu(p):
        out = []
        for ct in range(3):
            g_, h_ = acc[p][ct], hq[ct & 1]
            for st in range(6):
                for r in range(8):
                    e = et[r]
                    if st == 0:
                        out.append(f"v_mul_f32 {e}, {hex(f32(-LOG2E))}, {g_[r]}")
                    elif st == 1:
                        out.append(f"v_exp_f32 {e}, {e}")
                    elif st == 2:
                        out.append(f"v_add_f32 {e}, 1.0, {e}")
                    elif st == 3:
                        out.append(f"v_rcp_f32 {e}, {e}")
                    elif st == 4:
                        out.append(f"v_mul_f32 {e}, {e}, {g_[8 + r]}")
                    elif r % 2 == 0:
                        out.append(f"v_cvt_pk_bf16_f32 {h_[r // 2]}, {et[r]}, {et[r + 1]}")
            out.append(f"buffer_store_dwordx4 {h_}, {ha}, {sWS}, {sH} offen offset:{512 * ct}{' sc1' if OPT['h_sc1'] else ''}")
        if p == 0:
            out.append(f"s_add_u32 {sH}, {sH}, {2 * 49152}")
        return out

    issued = OPT["cinit"]
    for n in range(issued):
        loadA(n)
    A("s_barrier")
    c.stamp("z_b10", "c")
    for ct in range(3):
        readW(0, ct)
    pend = []
    for n in range(80):
        p, s = divmod(n, 40)
        nxt = n + 1 < 80
        if n + 1 in (8, 16, 24, 32):
            A("s_barrier")
        if n == 41:
            pend = glu(0)
        if n in (10, 20, 30, 40, 50, 60, 70):
            c.stamp("z_n%d" % n, "c")
        for ct in range(3):
            A(f"v_mfma_f32_32x32x16_bf16 {acc[p][ct]}, {W[n & 1][4 * ct:4 * ct + 4]}, {ring[n % D]}, {'0' if s == 0 else acc[p][ct]}")
            if nxt:
                readW(n + 1, ct)
            for _ in range(2 if ct < 2 else 1):
                if pend:
                    A(pend.pop(0))
        for _ in range(2 if n % 3 == 0 else 1):
            if issued < min(80, n + 1 + D):
                loadA(issued)
                issued += 1
    assert not pend
    c.stamp("z_n80", "c")
    barrier()
    c.stamp("c_loop")
    for x in glu(1):
        A(x)
    c.stamp("z_glu", "d")
    signal(c, 3)
    c.stamp("z_sig", "d")
    V.release(ring, W, acc, et, hq, g0a, g1a, ha)
    wa, wb, t = V.alloc(1), V.alloc(1), V.alloc(1)
    wtile_addr(c, L_WD, 0, wa, wb, t)
    A(f"v_add_u32 {wb}, {12 * 5120}, {wa}")
    A(f"s_mul_i32 {t0}, {sG}, {HBG}")
    add_base(t0, WS_HB, WS_B, t1)
    A(f"s_and_b32 {t1}, {sI}, 1")
    A(f"s_mul_i32 {t1}, {t1}, 24576")
    A(f"s_add_u32 {t0}, {t0}, {t1}")
    d_rot(t5, t1)
    A(f"s_lshl_b32 {t1}, {t5}, 12")
    A(f"s_add_u32 {t0}, {t0}, {t1}")
    A(f"s_sub_u32 {t5}, 5, {t5}")
    A(f"s_lshl_b32 {t1}, {sI}, 2")
    A(f"s_add_u32 {t2}, {t1}, {sW4}")
    A(f"s_mul_i32 {t6}, {t2}, 49152")
    A(f"s_add_u32 {t6}, {t6}, {t0}")
    A(f"s_xor_b32 {t2}, {t2}, 4")
    A(f"s_mul_i32 {t7}, {t2}, 49152")
    A(f"s_add_u32 {t7}, {t7}, {t0}")
    fd = V.alloc(1)
    A(f"s_and_b32 {t1}, {sI}, 2")
    A(f"s_lshl_b32 {t1}, {t1}, 7")
    A(f"s_lshl_b32 {t0}, {sG}, 12")
    A(f"s_add_u32 {t0}, {t0}, {t1}")
    A(f"s_add_u32 {t0}, {t0}, {WS_FLAG + 512 * 3}")
    A(f"v_lshlrev_b32 {t}, 2, {lane}")
    poll(c, [f"buffer_load_dword {fd}, {t}, {sWS}, {t0} offen sc1"], lambda: A(f"v_cmp_ne_u32 vcc, {sT[0]}, {fd}"))
    V.release(t, fd)
    c.stamp("d_e4")

    def d_step(st):
        A(f"s_cmp_eq_u32 {t5}, {st}")
        A(f"s_cselect_b32 {t0}, -5, 1")
        A(f"s_lshl_b32 {t0}, {t0}, 12")
        return t0
    acc = tile_gemm(c, 24, t6, t7, OPT["dinit"], OPT["dd"], lambda ks: (wa if ks < 12 else wb, (ks % 12) * 5120), {0, 8, 16},
                    d_step, drain=False)
    V.release(wa, wb)
    c.stamp("z_k24", "d")
    pp, pa = V.alloc(12, 4), V.alloc(1)
    A(f"s_mul_i32 {t4}, {sG}, {ACT}")
    add_base(t4, WS_RS, WS_A, t1)
    A(f"s_and_b32 {t1}, {sI}, 2")
    A(f"s_mul_i32 {t1}, {t1}, 81920")
    A(f"s_add_u32 {t4}, {t4}, {t1}")
    A(f"s_mul_i32 {t1}, {sW4}, 2560")
    A(f"s_add_u32 {t4}, {t4}, {t1}")
    A(f"s_and_b32 {t1}, {sJ}, 15")
    A(f"s_xor_b32 {t2}, {t1}, 8")
    A(f"s_mul_i32 {t1}, {t1}, 10240")
    A(f"s_mul_i32 {t2}, {t2}, 10240")
    A(f"s_add_u32 {t3}, {t4}, {t1}")
    A(f"s_add_u32 {t4}, {t4}, {t2}")
    A(f"v_lshlrev_b32 {pa}, 3, {lane}")
    for i in range(10):
        A(f"v_cvt_pk_bf16_f32 {pp[i]}, {acc[1][2 * i]}, {acc[1][2 * i + 1]}")
        if i in (3, 7):
            A(f"buffer_store_dwordx4 {pp[i - 3:i + 1]}, {c.l16}, {sWS}, {t3} offen offset:{256 * (i - 3)}")
    A(f"buffer_store_dwordx2 {pp[8:10]}, {pa}, {sWS}, {t3} offen offset:2048")
    signal(c, 4)
    f, tmp = V.alloc(2), V.alloc(1)
    od = V.alloc(12, 4)
    lw, lr, go = V.alloc(1), V.alloc(1), V.alloc(3)
    A(f"s_mul_i32 {t2}, {sW4}, 2560")
    A(f"s_add_u32 {t2}, {t2}, {L_OUT}")
    A(f"v_and_b32 {f[0]}, 15, {lane}")
    A(f"v_mul_u32_u24 {f[0]}, 0xa0, {f[0]}")
    A(f"v_lshrrev_b32 {f[1]}, 4, {lane}")
    A(f"v_lshl_add_u32 {f[0]}, {f[1]}, 3, {f[0]}")
    A(f"v_add_u32 {lw}, {t2}, {f[0]}")
    A(f"v_add_u32 {lr}, {t2}, {c.l16}")
    A(f"s_lshl_b32 {t0}, {sI}, 6")
    A(f"s_lshl_b32 {t1}, {sW4}, 4")
    A(f"s_add_u32 {t0}, {t0}, {t1}")
    A(f"s_mul_i32 {t0}, {t0}, 1280")
    A(f"s_mul_i32 {t1}, {sN}, 160")
    A(f"s_add_u32 {t0}, {t0}, {t1}")
    A(f"s_mul_i32 {t1}, {sG}, {ACT}")
    A(f"s_add_u32 {t1}, {t1}, {t0}")
    for k in range(3):
        A(f"v_add_u32 {f[0]}, {64 * k}, {lane}")
        A(f"v_mul_u32_u24 {f[1]}, 0x199a, {f[0]}")
        A(f"v_lshrrev_b32 {f[1]}, 16, {f[1]}")
        A(f"v_mul_u32_u24 {f[1]}, 0x460, {f[1]}")
        A(f"v_lshl_add_u32 {go[k]}, {f[0]}, 4, {f[1]}")
    A(f"s_xor_b32 {t2}, {sJ}, 8")
    A(f"s_lshl_b32 {t2}, {t2}, 4")
    A(f"s_lshl_b32 {t3}, {sW4}, 2")
    A(f"s_add_u32 {t2}, {t2}, {t3}")
    A(f"s_lshl_b32 {t3}, {sG}, 12")
    A(f"s_add_u32 {t2}, {t2}, {t3}")
    A(f"s_add_u32 {t2}, {t2}, {WS_FLAG + 512 * 4}")
    A(f"v_mov_b32 {f[0]}, 0")
    poll(c, [f"buffer_load_dword {f[1]}, {f[0]}, {sWS}, {t2} offen sc1"], lambda: A(f"v_cmp_ne_u32 vcc, {sT[0]}, {f[1]}"))
    qq = acc[1]
    A(f"buffer_load_dwordx4 {qq[0:4]}, {c.l16}, {sWS}, {t4} offen sc1")
    A(f"buffer_load_dwordx4 {qq[4:8]}, {c.l16}, {sWS}, {t4} offen offset:1024 sc1")
    A(f"buffer_load_dwordx2 {qq[8:10]}, {pa}, {sWS}, {t4} offen offset:2048 sc1")
    a = acc[0]
    c.stamp("z_red", "d")
    for i in range(0, 20, 2):
        unpack(f[0], f[1], qq[i // 2])
        A(f"v_pk_add_f32 {a[i:i + 2]}, {a[i:i + 2]}, {f}")
        round_pair(a[i], a[i + 1], tmp)
        unpack(f[0], f[1], c.gbp[i // 2])
        A(f"v_pk_mul_f32 {a[i:i + 2]}, {a[i:i + 2]}, {f}")
        round_pair(a[i], a[i + 1], tmp)
        unpack(f[0], f[1], c.x1p[i // 2])
        A(f"v_pk_add_f32 {a[i:i + 2]}, {a[i:i + 2]}, {f}")
        A(f"v_cvt_pk_bf16_f32 {od[i // 2]}, {a[i]}, {a[i + 1]}")
        if i % 4 == 2:
            ct = i // 4
            A(f"ds_write_b64 {lw}, {od[2 * ct:2 * ct + 2]} offset:{32 * ct}")
    for k in range(3):
        A(f"ds_read_b128 {a[4 * k:4 * k + 4]}, {lr} offset:{1024 * k}")
    for k in range(3):
        if k == 2:
            A("s_mov_b32 exec_hi, 0")
        A(f"buffer_store_dwordx4 {a[4 * k:4 * k + 4]}, {go[k]}, {sOUT}, {t1} offen{' sc1' if OPT['out_sc1'] else ''}")
    A("s_mov_b32 exec_hi, -1")
    c.stamp("z_out", "d")
    prof_dump(c, 0)
    A("s_endpgm")
    for f_ in c.cold:
        f_()
    return V.high


def helper_role(c0):
    c = Ctx(c0.V.clone())
    c.__dict__.update({k: v for k, v in c0.__dict__.items() if k not in ("V", "cold")})
    V = c.V
    lane = c.lane
    A.label("L_helper")
    A.restore("split")
    t, u = V.alloc(1), c.dummy
    z = V.alloc(4, 4)
    for i in range(4):
        A(f"v_mov_b32 {z[i]}, 0")
    A(f"ds_write_b128 {z[0]}, {z} offset:{L_CNT}")
    A("s_waitcnt lgkmcnt(0)")
    A(f"s_load_dword {sT[0]}, {sWS[0:2]}, {WS_E}")
    srd_words((sWS,))
    late_setup()
    tag_setup()
    skip = lab("nocensus")
    A(f"s_cmp_lg_u32 {sW4}, 0")
    A.branch(f"s_cbranch_scc1 {skip}")
    A(f"s_lshl_b32 {t1}, {sG}, 5")
    A(f"s_add_u32 {t1}, {t1}, {sJ}")
    A(f"s_lshl_b32 {t1}, {t1}, 4")
    A(f"s_add_u32 {t1}, {t1}, {WS_CENSUS}")
    A(f"s_xor_b32 {t2}, {sT[1]}, {sXCC}")
    A(f"v_mov_b32 {z[2]}, {sT[0]}")
    A(f"v_mov_b32 {z[3]}, {t2}")
    A("s_mov_b64 exec, 1")
    A(f"buffer_store_dwordx4 {z}, {z[0]}, {sWS}, {t1} offen sc1")
    A("s_mov_b64 exec, -1")
    A("s_nop 1")
    A.label(skip)
    V.release(z)
    A(f"s_lshl_b32 {t3}, {sJ}, 2")
    A(f"s_add_u32 {t3}, {t3}, {sW4}")

    def share(dst, per_group, per_wave, base, idx=t3):
        A(f"s_mul_i32 {t1}, {sG}, {per_group}")
        A(f"s_mul_i32 {t2}, {idx}, {per_wave}")
        A(f"s_add_u32 {t1}, {t1}, {t2}")
        A(f"s_add_u32 {t1}, {t1}, {base}")
        A(f"s_add_u32 {dst[0]}, {sWS[0]}, {t1}")
        A(f"s_addc_u32 {dst[1]}, {sWS[1]}, 0")
    qkv_role()
    wq, x_ = V.alloc(1), V.alloc(1)
    A(f"v_lshrrev_b32 {t}, 4, {lane}")
    A(f"v_lshlrev_b32 {x_}, 2, {t}")
    A(f"v_and_b32 {wq}, 15, {lane}")
    A(f"v_xor_b32 {wq}, {wq}, {x_}")
    A(f"v_lshlrev_b32 {wq}, 4, {wq}")
    A(f"v_mul_u32_u24 {t}, 0xf00, {t}")
    A(f"s_lshl_b32 {t0}, {sCB}, 8")
    A(f"s_mul_i32 {t1}, {sW4}, {4 * 3840}")
    A(f"s_add_u32 {t0}, {t0}, {t1}")
    A(f"v_add3_u32 {wq}, {wq}, {t}, {t0}")
    A(f"s_mul_i32 {t6}, {sRH}, {20 * 61440}")
    A(f"s_mul_i32 {t5}, {sRH}, {40 * 61440}")
    A(f"s_sub_u32 {t5}, 61440, {t5}")
    A(f"s_lshl_b32 {t7}, {sW4}, 10")
    wd_pattern(c)
    gs, gl = V.alloc(3), V.alloc(3)
    A(f"s_mul_i32 {t0}, {sJ}, 96")
    A(f"s_lshr_b32 {t1}, {sW4}, 1")
    A(f"s_mul_i32 {t2}, {t1}, {32 * 3072}")
    A(f"s_add_u32 {t0}, {t0}, {t2}")
    A(f"s_mul_i32 {t1}, {t1}, {32 * 192}")
    A(f"s_and_b32 {t2}, {sW4}, 1")
    A(f"s_mul_i32 {t2}, {t2}, 96")
    A(f"s_add_u32 {t1}, {t1}, {t2}")
    A(f"s_add_u32 {t1}, {t1}, {L_GU}")
    for i in range(3):
        A(f"v_add_u32 {t}, {64 * i}, {lane}")
        A(f"v_mul_u32_u24 {x_}, 0x2aab, {t}")
        A(f"v_lshrrev_b32 {x_}, 16, {x_}")
        A(f"v_lshlrev_b32 {t}, 4, {t}")
        A(f"v_mul_u32_u24 {gs[i]}, 0xba0, {x_}")
        A(f"v_add3_u32 {gs[i]}, {gs[i]}, {t}, {t0}")
        A(f"v_mul_u32_u24 {gl[i]}, 0x60, {x_}")
        A(f"v_add3_u32 {gl[i]}, {gl[i]}, {t}, {t1}")
    V.release(x_)
    A(f"s_bitcmp1_b32 {sW4}, 0")
    A(f"s_cselect_b32 {sWG[0]}, {sWU[0]}, {sWG[0]}")
    A(f"s_cselect_b32 {sWG[1]}, {sWU[1]}, {sWG[1]}")
    A(f"s_mul_i32 {t0}, {t3}, 6400")
    A(f"s_add_u32 {p0[0]}, {sWO[0]}, {t0}")
    A(f"s_addc_u32 {p0[1]}, {sWO[1]}, 0")
    c.stamp("s_set")
    A("s_barrier")
    wtags = []

    def pace(win):
        if win:
            A(f"s_waitcnt vmcnt({win - 1})")

    def wq_dma(hi, win):
        while len(wtags) < hi:
            p = len(wtags)
            pace(win)
            A(f"s_add_u32 m0, {t7}, {L_WQ + 4096 * (p if p < 37 else p - 37)}")
            wtags.append(A.tagged(f"buffer_load_dwordx4 {wq}, {sWQ}, {t6} offen lds"))
            if p < 39:
                A(f"s_add_u32 {t6}, {t6}, {t5 if p == 19 else 61440}")
    wq_dma(OPT["n1"], 0)
    c.stamp("s_p1")
    if OPT["overlay"]:
        share(p1, ACT, 2560, WS_A)
        l2_touch(p1, 0, 40)
        share(p1, 32768, 256, WS_STATS)
        l2_touch(p1, 0, 4)
        A(f"s_and_b32 {t4}, {t3}, 63")
        share(p1, 4096, 64, WS_FLAG, t4)
        l2_touch(p1, 0, 1)
        share(sHB, HBG, 6144, WS_B)

    lds_spin(c, L_CNT + 8, 4)
    c.stamp("s_spin")
    gu = V.alloc(120, 4)
    ngu = [0]
    sGU = S(48)
    A(f"s_mov_b32 {sGU}, 0")

    def gu_load(n, win):
        for _ in range(n):
            if ngu[0] < 30:
                k = ngu[0]
                pace(win)
                A(f"buffer_load_dwordx4 {gu[4 * k:4 * k + 4]}, {gs[k % 3]}, {sWG}, {sGU} offen")
                if k % 3 == 2 and k < 29:
                    A(f"s_add_u32 {sGU}, {sGU}, {64 * 3072}")
                ngu[0] += 1
    for k in range(5):
        wq_dma(8 * k + 8, OPT["wq_win"])
        A.wait_vm(wtags[8 * k + 7])
        A("s_barrier")
        c.stamp("z_q%d" % k, "q")
        if k < 4:
            wq_dma(min(8 * k + 16, 37 if k == 0 else 40), OPT["wq_win"])
    V.release(wq)
    c.stamp("q_w")
    gu_load(OPT["gu_q"], OPT["gu_win"])
    one = V.alloc(4, 4)
    A(f"v_mov_b32 {one[0]}, 0x3f80")
    A(f"v_mov_b32 {one[1]}, 0")
    A(f"v_mov_b32 {one[2]}, 0x3f80")
    A(f"v_mov_b32 {one[3]}, 0")
    A(f"v_add_u32 {t}, {t7}, {c.l16}")
    A("s_barrier")
    c.stamp("q_bq")
    A(f"ds_write_b128 {t}, {one} offset:{L_K + 10 * KVS}")
    A("s_waitcnt lgkmcnt(0)")
    V.release(one)
    gu_load(OPT.get("gu_x", 0), OPT["gu_win"])
    l2_touch(p0, 0, OPT["pre_wo"])
    c.stamp("x_touch")
    A("s_barrier")
    c.stamp("x_kv")
    for q in range(5):
        A(f"s_add_u32 {t2}, {sI}, {q}")
        A(f"s_cmp_ge_u32 {t2}, 5")
        A(f"s_cselect_b32 {t3}, 5, 0")
        A(f"s_sub_u32 {t2}, {t2}, {t3}")
        A(f"s_lshl_b32 {t2}, {t2}, 2")
        A(f"s_add_u32 {t2}, {t2}, {sW4}")
        A(f"s_mul_i32 {t3}, {t2}, 40960")
        A(f"s_mul_i32 {t2}, {t2}, 5120")
        A(f"s_add_u32 {t2}, {t2}, {L_WO}")
        wo_tag = dma_slab(c, sWO, t3, t2, OPT["wo_win"])
    c.stamp("a_wo")
    gu_load(OPT["gu_a"], OPT["gu_win"])
    A.wait_vm(wo_tag)
    c.stamp("a_gu")
    A("s_barrier")
    c.stamp("b_b8")
    gu_load(OPT["gu_b"], OPT["gu_win"])
    if OPT["overlay"] and not OPT["h_sc1"]:
        l2_touch(sHB, 0, OPT.get("nb1", 40))
    A("s_barrier")
    c.stamp("b_b9")
    gu_load(OPT["gu_c"], OPT["gu_win"])
    written = [0]

    def gu_write(hi):
        while written[0] < hi:
            k = written[0]
            q, i = divmod(k, 3)
            if q == 5:
                A(f"v_add_u32 {gl[i]}, {5 * 64 * 192}, {gl[i]}")
            A(f"ds_write_b128 {gl[i]}, {gu[4 * k:4 * k + 4]} offset:{(q % 5) * 64 * 192}")
            written[0] += 1
    gu_write(max(0, ngu[0] - OPT["gu_c"]))
    lds_spin(c, L_CNT + 12, 4)
    gu_load(OPT["gu_d"], OPT["gu_win"])
    for k in range(5):
        gu_load(6 * k + 6 - ngu[0], OPT["gu_win"])
        gu_write(6 * k + 6)
        barrier()
        if k in (0, 4):
            c.stamp("c_g%d" % k)
        gu_load(6 * k + 12 - ngu[0], OPT["gu_win"])
    V.release(gs, gu, gl)
    if OPT["overlay"] and not OPT["h_sc1"]:
        l2_touch(sHB, OPT.get("nb1", 40), 96 - OPT.get("nb1", 40))
    nreg = OPT["nreg"]
    wd = V.alloc(20 * nreg, 4) if nreg else None
    wl = V.alloc(1)
    A(f"s_and_b32 {t4}, {sI}, 1")
    d_rot(t5, t1)
    A(f"s_mul_i32 {t6}, {t4}, 24")
    A(f"s_lshl_b32 {t1}, {t5}, 2")
    A(f"s_add_u32 {t6}, {t6}, {t1}")
    A(f"s_add_u32 {t6}, {t6}, {sW4}")
    A(f"s_mul_i32 {t6}, {t6}, 40960")
    A(f"s_sub_u32 {t5}, 5, {t5}")
    A(f"s_mul_i32 {t7}, {sW4}, 5120")
    A(f"s_add_u32 {t7}, {t7}, {L_WD}")
    A(f"v_add_u32 {wl}, {t7}, {c.l16}")
    dt = {}
    if OPT["pre_wd"]:
        A(f"s_lshl_b32 {t3}, {sJ}, 2")
        A(f"s_add_u32 {t3}, {t3}, {sW4}")
        A(f"s_mul_i32 {t3}, {t3}, 15360")
        A(f"s_add_u32 {p0[0]}, {sWD[0]}, {t3}")
        A(f"s_addc_u32 {p0[1]}, {sWD[1]}, 0")
        l2_touch(p0, 0, OPT["pre_wd"])
        c.stamp("z_touch", "c")

    def wd_next(q):
        if q < 5:
            A(f"s_cmp_eq_u32 {t5}, {q}")
            A(f"s_cselect_b32 {t2}, -5, 1")
            A(f"s_mul_i32 {t2}, {t2}, {4 * 40960}")
            A(f"s_add_u32 {t6}, {t6}, {t2}")
    dt[0] = dma_slab(c, sWD, t6, t7, OPT["wd_win"])
    wd_next(0)
    for q in range(1, nreg + 1):
        for i in range(5):
            pace(OPT["wd_win"])
            A(f"buffer_load_dwordx4 {wd[20 * q - 20 + 4 * i:20 * q - 16 + 4 * i]}, {c.pat[i]}, {sWD}, {t6} offen")
        wd_next(q)
    c.stamp("c_wd")
    A("s_barrier")
    c.stamp("c_b12")
    for q in range(nreg + 1, 6):
        A(f"s_add_u32 {t1}, {t7}, {4 * 5120 * q}")
        dt[q] = dma_slab(c, sWD, t6, t1, OPT["wd_win"])
        wd_next(q)
    c.stamp("z_dma", "d")
    for st in range(3):
        for q in (2 * st, 2 * st + 1):
            if q in dt:
                A.wait_vm(dt[q])
            else:
                if q == 3:
                    pass
                for i in range(5):
                    of = 4 * 5120 * q + 1024 * i
                    if of >= 65536 and not getattr(c, "wl_hi", False):
                        A(f"v_add_u32 {wl}, 61440, {wl}")
                        c.wl_hi = True
                    A(f"ds_write_b128 {wl}, {wd[20 * q - 20 + 4 * i:20 * q - 16 + 4 * i]} offset:{of - (61440 if getattr(c, 'wl_hi', False) else 0)}")
        barrier()
        if st == 0:
            c.stamp("d_d0")
    if OPT["clean"] & 2:
        skip = lab("noclean")
        A(f"s_lshl_b32 {t0}, {sJ}, 2")
        A(f"s_add_u32 {t0}, {t0}, {sW4}")
        A(f"s_cmp_lg_u32 {t0}, 3")
        A.branch(f"s_cbranch_scc1 {skip}")
        A("buffer_wbl2 sc1")
        A.label(skip)
    skip = lab("noepoch")
    A(f"s_lshl_b32 {t0}, s2, 2")
    A(f"s_add_u32 {t0}, {t0}, {sW4}")
    A(f"s_cmp_lg_u32 {t0}, 0")
    A.branch(f"s_cbranch_scc1 {skip}")
    e = V.alloc(4)
    A(f"s_mov_b32 {t1}, {WS_CENSUS + 8}")

    def chk():
        A(f"v_cmp_ne_u32 vcc, {sT[0]}, {e[0]}")
        for i in range(1, 4):
            A(f"v_cmp_ne_u32 {p0}, {sT[0]}, {e[i]}")
            A(f"s_or_b64 vcc, vcc, {p0}")
    poll(c, [f"buffer_load_dword {e[i]}, {c.l16}, {sWS}, {t1} offen offset:{1024 * i} sc1" for i in range(4)], chk, acquire=False)
    A(f"v_mov_b32 {t}, 0")
    A(f"v_mov_b32 {u}, {sT[0]}")
    A("s_mov_b64 exec, 1")
    A(f"buffer_store_dword {u}, {t}, {sWS}, 0 offen offset:{WS_E} sc1")
    A("s_mov_b64 exec, -1")
    A.label(skip)
    prof_dump(c, 1)
    A("s_endpgm")
    for f_ in c.cold:
        f_()
    return V.high


def main():
    c = prologue()
    h1 = compute_role(c)
    h2 = helper_role(c)
    A.label("L_end")
    A("s_endpgm")
    body = finish(A)
    ref = open(os.path.join(os.path.dirname(os.path.abspath(__file__)), "..", "cdna_kernels", NAME + ".s.ref")).read().split("\n")
    head = [l for l in ref if l.startswith(";") and "@launch" not in l and "Override launch" not in l and "grid=ceil" not in l]
    head += ["; stamps " + " ".join(n) for n in NAMES]
    txt = "\n".join(head) + f"\n; @launch grid=(256,1,1) block=(512,1,1) lds={LDS_BYTES}\n"
    txt += f'.amdgcn_target "amdgcn-amd-amdhsa--gfx950"\n.text\n.globl {NAME}_kernel\n.p2align 8\n.type {NAME}_kernel,@function\n{NAME}_kernel:\n'
    txt += body + "\n"
    txt += f'''.section .rodata,"a"
.p2align 6
.amdhsa_kernel {NAME}_kernel
  .amdhsa_next_free_vgpr 256
  .amdhsa_next_free_sgpr 102
  .amdhsa_accum_offset 256
  .amdhsa_group_segment_fixed_size 0
  .amdhsa_kernarg_size 96
  .amdhsa_user_sgpr_count 2
  .amdhsa_user_sgpr_kernarg_segment_ptr 1
  .amdhsa_system_sgpr_workgroup_id_x 1
.end_amdhsa_kernel
'''
    open(sys.argv[1], "w").write(txt)
    print("vgpr high water: compute %d helper %d; %d lines" % (h1, h2, txt.count("\n")))


main()
```

```python
import sys, os, struct
sys.path.insert(0, os.path.dirname(os.path.abspath(__file__)))
from asmlib import *

NAME = "adaLN_cond__sliding_block__glu_gated_glu__prompt"
OPT = dict(prof=0, out_sc1=0, clean=0, force_slow=0, force_fb=0, sp=0, nobulk=0, nt0=0, mim=15, overlay=1, h_sc1=1,
           n0=0, n1=16, wq_win=0, qinit=3, qd=6, cinit=4, cd=12, dinit=3, dd=8, binit=3,
           tgap=1, tq=0, tq5=0, tx=0, ta=0, tb=0, tc=0, td=0, tg=0, tw=0, drot=0, nreg=3, wd_win=0, wo_win=0, gu_win=0, gu_q=0, gu_a=12, gu_b=6, gu_c=6, gu_d=6)
ZOOM = ""
for a_ in sys.argv[2:]:
    k_, v_ = a_.split("=")
    if k_ == "zoom":
        ZOOM = v_
    else:
        OPT[k_] = int(v_)

WS_E, WS_MOD, WS_CENSUS = 0, 0x1000, 0x9000
WS_FLAG, WS_XFLAG, WS_STATS, WS_PROF = 0x10000, 0x18000, 0x20000, 0x60000
WS_H1, WS_O, WS_H2, WS_HB, WS_A, WS_B, WS_QKV, WS_RS, WS_END = 0x100000, 0x380000, 0x600000, 0x880000, 0xE80000, 0x1100000, 0x1700000, 0x1F00000, 0x2180000
ACT, HBG, QKVG = 327680, 786432, 983040
L_MOD2F, L_CNT, L_PART, L_MODEF, L_MOD1F = 0, 1280, 1536, 1792, 2048
L_WQ = 12288
KVS = 4160
L_K, L_V = 12288, 12288 + 5 * KVS
L_WO = 58112
L_RED = 12288
L_GU = 40960
L_WD = 2048
L_OUT = L_WD + 24 * 5120
LDS_BYTES = 163840
BIG = 0xF1800000
OOB = 0x7F000000
POLL_MAX = 1 << 17


def f32(x):
    return struct.unpack("<I", struct.pack("<f", x))[0]


LOG2E = 1.4426950408889634
QSCALE = f32(20 ** -0.5 * LOG2E)
S = lambda b, n=1: Reg("s", b, n)
sX, sOUT, sWS, sWO, sWQ, sWG, sWU, sWD, sCC, sWM = [S(4 + 4 * i, 4) for i in range(10)]
sPOLL = S(20, 32)
sT = S(52, 2)
sG, sJ, sW, sW4, sXCC, sMODE = [S(54 + i) for i in range(6)]
t0, t1, t2, t3, t4, t5, t6, t7 = [S(60 + i) for i in range(8)]
p0, p1 = S(68, 2), S(70, 2)
sHI = S(72, 2)
sCNT, sHOOK, sPASS, sI, sN = [S(74 + i) for i in range(5)]
sDUM = S(79)
sRH, sCB = S(46), S(47)
sHB = S(44, 2)
sSTAMP = S(80, 2)
PROF0 = 82

A = Asm()
nlab = [0]
NAMES = []


def lab(p):
    nlab[0] += 1
    return "L_%s_%d" % (p, nlab[0])


class Ctx:
    def __init__(self, V):
        self.V, self.nstamp, self.cold, self.names = V, 0, [], []

    def stamp(self, name="", zoom=""):
        if not OPT["prof"]:
            return
        if zoom and zoom not in ZOOM:
            return
        if not zoom and ZOOM and name[:1] not in ZOOM and name not in ("start", "end", "s_e1", "q_loop", "x_kv", "a_sig", "b_stat", "c_loop"):
            return
        assert self.nstamp < 20, name
        if self.nstamp:
            A(f"s_mov_b32 {S(PROF0 + self.nstamp - 1)}, {sSTAMP[0]}")
        A.raw(f"{'s_memtime' if OPT['prof'] == 2 else 's_memrealtime'} {sSTAMP}")
        self.names = self.names[:self.nstamp] + [name] + self.names[self.nstamp + 1:]
        self.nstamp += 1


def unpack(lo, hi, src):
    A(f"v_lshlrev_b32 {lo}, 16, {src}")
    A(f"v_and_b32 {hi}, 0xffff0000, {src}")


def round_pair(a, b, tmp):
    A(f"v_cvt_pk_bf16_f32 {tmp}, {a}, {b}")
    unpack(a, b, tmp)


def round1(a):
    A(f"v_cvt_pk_bf16_f32 {a}, {a}, {a}")
    A(f"v_and_b32 {a}, 0xffff0000, {a}")


def sum16(x):
    for m in ("quad_perm:[1,0,3,2]", "quad_perm:[2,3,0,1]", "row_half_mirror", "row_mirror"):
        A(f"v_add_f32_dpp {x}, {x}, {x} {m} row_mask:0xf bank_mask:0xf")


def xor16_add(x, tmp):
    A(f"v_mov_b32 {tmp}, {x}")
    A(f"v_permlane16_swap_b32 {tmp}, {x}")
    A(f"v_add_f32 {x}, {x}, {tmp}")


def xor32_op(op, x, tmp):
    A(f"v_mov_b32 {tmp}, {x}")
    A(f"v_permlane32_swap_b32 {tmp}, {x}")
    A(f"{op} {x}, {x}, {tmp}")


def poll(c, loads, check, acquire=True, backoff=0):
    top, done = lab("poll"), lab("pdone")
    A(f"s_mov_b32 {sCNT}, 0")
    A.label(top)
    if backoff:
        A(f"s_sleep {backoff}")
    for l in loads:
        A(l)
    A(f"s_add_u32 {sCNT}, {sCNT}, 1")
    A(f"s_cmp_gt_u32 {sCNT}, {POLL_MAX}")
    A.branch(f"s_cbranch_scc1 {done}", noflush=True)
    A("s_waitcnt vmcnt(0)")
    check()
    A.branch(f"s_cbranch_vccnz {top}")
    A.label(done)
    A("s_waitcnt vmcnt(0)")
    if acquire:
        acquire_if_slow()


def check_tags(regs):
    def f():
        A(f"v_cmp_ne_u64 vcc, {sT}, {regs[0]}")
        for r in regs[1:]:
            A(f"v_cmp_ne_u64 {p0}, {sT}, {r}")
            A(f"s_or_b64 vcc, vcc, {p0}")
    return f


BY_WAVE = {0: False, 1: True, 2: False, 3: True, 4: False}


def scalar_edge(edge):
    return OPT["sp"] >> edge & 1


def signal(c, edge, drain=True):
    V = c.V
    a, d = V.alloc(1), V.alloc(1)
    A(f"s_lshl_b32 {t0}, {sG}, 12")
    A(f"s_lshl_b32 {t1}, {sJ}, {2 if BY_WAVE[edge] else 4}")
    A(f"s_add_u32 {t0}, {t0}, {t1}")
    A(f"s_lshl_b32 {t1}, {sW4}, {7 if BY_WAVE[edge] else 2}")
    A(f"s_add_u32 {t0}, {t0}, {t1}")
    A(f"s_add_u32 {t0}, {t0}, {WS_FLAG + 512 * edge}")
    A(f"v_mov_b32 {a}, 0")
    A(f"v_mov_b32 {d}, {sT[0]}")
    slow, done = lab("sigslow"), lab("sigdone")
    A("s_mov_b64 exec, 1")
    A(f"s_cmp_lg_u32 {sMODE}, 0")
    if drain:
        A("s_waitcnt vmcnt(0)")
    A.branch(f"s_cbranch_scc1 {slow}", noflush=True)
    A(f"buffer_store_dword {d}, {a}, {sWS}, {t0} offen{' sc1' if scalar_edge(edge) else ''}")
    A.label(done)
    A("s_mov_b64 exec, -1")

    def cold():
        A.label(slow)
        if drain:
            A("buffer_wbl2 sc1")
            A("s_waitcnt vmcnt(0)")
        A(f"buffer_store_dword {d}, {a}, {sWS}, {t0} offen sc1")
        A.branch(f"s_branch {done}")
    c.cold.append(cold)
    V.release(a, d)


def acquire_if_slow():
    skip = lab("noacq")
    A(f"s_cmp_eq_u32 {sMODE}, 0")
    A.branch(f"s_cbranch_scc1 {skip}", noflush=True)
    A("buffer_inv sc1")
    A("s_waitcnt vmcnt(0)")
    A.label(skip)


def wait_edge(c, edge, s_off0, s_off1=None):
    V = c.V
    A(f"s_lshl_b32 {t0}, {sG}, 12")
    A(f"s_add_u32 {t0}, {t0}, {WS_FLAG + 512 * edge}")
    if scalar_edge(edge):
        offs = [s_off0] + ([s_off1] if s_off1 is not None else [])
        for o in offs:
            A(f"s_add_u32 {o}, {o}, {t0}")
        top, done = lab("spoll"), lab("spdone")
        A(f"s_mov_b32 {p0[0]}, {sT[0]}")
        A(f"s_mov_b32 {p0[1]}, {sT[0]}")
        A(f"s_mov_b32 {sCNT}, 0")
        A.label(top)
        for k, o in enumerate(offs):
            A(f"s_load_dwordx16 {sPOLL[16 * k:16 * k + 16]}, {sWS[0:2]}, {o} glc")
        A(f"s_add_u32 {sCNT}, {sCNT}, 1")
        A(f"s_cmp_gt_u32 {sCNT}, {POLL_MAX}")
        A.branch(f"s_cbranch_scc1 {done}", noflush=True)
        A("s_waitcnt lgkmcnt(0)")
        n = 8 * len(offs)
        for k in range(n):
            A(f"s_xor_b64 {sPOLL[2 * k:2 * k + 2]}, {sPOLL[2 * k:2 * k + 2]}, {p0}")
        for k in range(1, n):
            A(f"s_or_b64 {sPOLL[0:2]}, {sPOLL[0:2]}, {sPOLL[2 * k:2 * k + 2]}")
        A.branch(f"s_cbranch_scc1 {top}")
        A.label(done)
        A("s_waitcnt lgkmcnt(0)")
        acquire_if_slow()
        return
    a, d = V.alloc(1), V.alloc(1)
    A(f"v_and_b32 {a}, 15, {c.lane}")
    A(f"v_lshl_add_u32 {a}, {a}, 2, {s_off0}")
    if s_off1 is not None:
        A(f"s_sub_u32 {s_off1}, {s_off1}, {s_off0}")
        A(f"v_add_u32 {d}, {s_off1}, {a}")
        A(f"v_cndmask_b32_e64 {a}, {a}, {d}, {sHI}")
    poll(c, [f"buffer_load_dword {d}, {a}, {sWS}, {t0} offen sc1"], lambda: A(f"v_cmp_ne_u32 vcc, {sT[0]}, {d}"))
    V.release(a, d)


def add_base(dst, slow, fast, tmp):
    if not OPT["overlay"]:
        A(f"s_add_u32 {dst}, {dst}, {slow}")
        return
    A(f"s_cmp_eq_u32 {sMODE}, 0")
    A(f"s_cselect_b32 {tmp}, {fast - slow}, 0")
    A(f"s_add_u32 {dst}, {dst}, {tmp}")
    A(f"s_add_u32 {dst}, {dst}, {slow}")


def lds_spin(c, off, want):
    V = c.V
    a, d = V.alloc(1), V.alloc(1)
    top, done = lab("lspin"), lab("lsdone")
    A(f"v_mov_b32 {a}, 0")
    A(f"s_mov_b32 {sCNT}, 0")
    A.label(top)
    A(f"ds_read_b32 {d}, {a} offset:{off}")
    A(f"s_add_u32 {sCNT}, {sCNT}, 1")
    A(f"s_cmp_gt_u32 {sCNT}, {8 * POLL_MAX}")
    A.branch(f"s_cbranch_scc1 {done}", noflush=True)
    A("s_waitcnt lgkmcnt(0)")
    A(f"v_cmp_gt_u32 vcc, {want}, {d}")
    A.branch(f"s_cbranch_vccnz {top}")
    A.label(done)
    A("s_waitcnt lgkmcnt(0)")
    V.release(a, d)


def bump(c, off):
    a, d = c.V.alloc(1), c.V.alloc(1)
    A(f"v_mov_b32 {a}, 0")
    A(f"v_mov_b32 {d}, 1")
    A("s_mov_b64 exec, 1")
    A(f"ds_add_u32 {a}, {d} offset:{off}")
    A("s_mov_b64 exec, -1")
    c.V.release(a, d)


def l2_touch(base, first, n):
    for i in range(first, first + n):
        A.raw(f"s_load_dword {sDUM}, {base}, {64 * i}")


SRD_SIZE = ((sWM, 4915200), (sCC, 1280), (sWS, WS_END), (sX, 2621440), (sWQ, 2457600), (sWO, 819200), (sWG, 1966080),
            (sWU, 1966080), (sWD, 1966080), (sOUT, 2621440))


def srd_words(which):
    for srd, n in SRD_SIZE:
        if any(srd is w for w in which):
            nb = {sWQ.b: 1, sWO.b: 2, sWG.b: 4, sWU.b: 4, sWD.b: 8}.get(srd.b, 0)
            A(f"s_mov_b32 {srd[2]}, {0 if OPT['nobulk'] & nb else n}")
            A(f"s_mov_b32 {srd[3]}, 0x20000")


def prologue():
    V = Regs("v", 0, 256)
    c = Ctx(V)
    v0 = V.alloc(1)
    c.lane = V.alloc(1)
    tmp, u = V.alloc(1), V.alloc(1)
    A("s_cmp_ge_u32 s2, 256")
    A.branch("s_cbranch_scc1 L_end", noflush=True)
    A(f"s_getpc_b64 {p0}")
    A.label("L_pc")
    c.stamp("start")
    for srd, off in ((sWM, 64), (sCC, 56), (sWS, 88), (sX, 0)):
        A(f"s_load_dwordx2 {srd[0:2]}, s[0:1], {off}")
    A(f"v_lshrrev_b32 {tmp}, 6, {v0}")
    A(f"s_lshr_b32 {sJ}, s2, 3")
    A(f"v_readfirstlane_b32 {sW}, {tmp}")
    A(f"v_and_b32 {c.lane}, 63, {v0}")
    A(f"s_and_b32 {sG}, s2, 7")
    A(f"s_and_b32 {sW4}, {sW}, 3")
    A(f"s_cmp_ge_u32 {sW}, 4")
    c.l16 = v0
    A(f"v_lshlrev_b32 {c.l16}, 4, {c.lane}")
    A.branch("s_cbranch_scc0 L_compute", noflush=True)
    A(f"s_lshl_b32 {t0}, {sJ}, 2")
    A(f"s_add_u32 {t0}, {t0}, {sW4}")
    A(f"s_lshl_b32 {t0}, {t0}, 9")
    A(f"v_and_b32 {tmp}, 7, {c.lane}")
    A(f"v_lshl_add_u32 {tmp}, {tmp}, 6, {t0}")
    A(f"v_min_u32 {tmp}, L_end-L_pc, {tmp}")
    A(f"global_load_dword {u}, {tmp}, {p0}")
    A.branch("s_branch L_helper")
    A.label("L_compute")
    V.release(tmp)
    c.dummy = u
    A.save("split")
    return c


def late_setup():
    for srd, off in ((sWQ, 8), (sWO, 16), (sWG, 32), (sWU, 40), (sWD, 48), (sOUT, 72)):
        A(f"s_load_dwordx2 {srd[0:2]}, s[0:1], {off}")
    srd_words((sWQ, sWO, sWG, sWU, sWD, sOUT))
    A(f"s_getreg_b32 {sXCC}, hwreg(HW_REG_XCC_ID, 0, 4)")
    A(f"s_mov_b32 {sHI[0]}, 0")
    A(f"s_mov_b32 {sHI[1]}, -1")
    A(f"s_lshr_b32 {sI}, {sJ}, 3")
    A(f"s_and_b32 {sN}, {sJ}, 7")


def tag_setup():
    A("s_waitcnt lgkmcnt(0)")
    A(f"s_add_u32 {sT[0]}, {sT[0]}, 1")
    A(f"s_not_b32 {sT[1]}, {sT[0]}")


def barrier():
    A("s_waitcnt lgkmcnt(0)")
    A("s_barrier")


def att_masks(c):
    V = c.V
    c.mask = V.alloc(16, 4)
    z, big = V.alloc(1), V.alloc(1)
    A(f"v_lshrrev_b32 {z}, 5, {c.lane}")
    A(f"v_lshlrev_b32 {z}, 2, {z}")
    A(f"v_and_b32 {big}, 31, {c.lane}")
    A(f"v_sub_u32 {z}, {big}, {z}")
    A(f"v_mov_b32 {big}, {hex(BIG)}")
    build_mask(c, z, big)
    V.release(z, big)


def build_mask(c, z, big):
    for r in range(16):
        A(f"v_subrev_u32 {c.mask[r]}, {8 * (r >> 2) + (r & 3)}, {z}")
        A(f"v_ashrrev_i32 {c.mask[r]}, 31, {c.mask[r]}")
        A(f"v_and_b32 {c.mask[r]}, {big}, {c.mask[r]}")


def att_addr(c):
    V = c.V
    c.aK, c.aK4, c.aV = V.alloc(1), V.alloc(1), V.alloc(1)
    t, u = V.alloc(1), V.alloc(1)
    A(f"s_lshl_b32 {t0}, {sW4}, 9")
    A(f"v_and_b32 {t}, 15, {c.lane}")
    A(f"s_add_u32 {t1}, {t0}, {L_K}")
    A(f"v_lshl_add_u32 {t}, {t}, 4, {t1}")
    A(f"v_bfe_u32 {u}, {c.lane}, 4, 1")
    A(f"v_lshl_add_u32 {t}, {u}, 3, {t}")
    A(f"v_add_u32 {c.aK4}, {4 * KVS}, {t}")
    A(f"v_lshrrev_b32 {u}, 5, {c.lane}")
    A(f"v_mul_u32_u24 {c.aK}, {KVS}, {u}")
    A(f"v_add_u32 {c.aK}, {c.aK}, {t}")
    A(f"v_bfe_u32 {t}, {c.lane}, 2, 2")
    A(f"v_lshl_add_u32 {t}, {u}, 2, {t}")
    A(f"s_add_u32 {t1}, {t0}, {L_V}")
    A(f"v_lshl_add_u32 {c.aV}, {t}, 4, {t1}")
    A(f"v_and_b32 {t}, 3, {c.lane}")
    A(f"v_bfe_u32 {u}, {c.lane}, 4, 1")
    A(f"v_lshl_add_u32 {t}, {u}, 2, {t}")
    A(f"v_lshlrev_b32 {t}, 2, {t}")
    A(f"s_mov_b32 {t1}, 0x45543210")
    A(f"v_lshrrev_b32_e64 {t}, {t}, {t1}")
    A(f"v_and_b32 {t}, 7, {t}")
    A(f"v_mul_u32_u24 {t}, {KVS}, {t}")
    A(f"v_add_u32 {c.aV}, {c.aV}, {t}")
    V.release(t, u)


def attention(c):
    V = c.V
    Q0, Q1 = c.Q0, c.Q1
    Sx = [V.alloc(16, 4) for _ in range(3)]
    O, Cm = [V.alloc(16, 4), V.alloc(16, 4)], [V.alloc(16, 4), V.alloc(16, 4)]
    P, Vf = V.alloc(8, 4), V.alloc(8, 4)
    Ka, Kb = V.alloc(4, 4), V.alloc(2)
    m, mg, tmp = V.alloc(2), V.alloc(2), V.alloc(1)
    off = lambda n: (9 - n) * 256

    def readK(n, ka=Ka, kb=Kb):
        A(f"ds_read_b64 {ka[0:2]}, {c.aK} offset:{off(n)}")
        A(f"ds_read_b64 {ka[2:4]}, {c.aK} offset:{off(n) + 2 * KVS}")
        A(f"ds_read_b64 {kb}, {c.aK4} offset:{off(n)}")

    def readV(n):
        for ks in range(2):
            for u in range(2):
                A(f"ds_read_b64_tr_b16 {Vf[4 * ks + 2 * u:4 * ks + 2 * u + 2]}, {c.aV} offset:{off(n) + 8 * ks + 128 * u}")

    def qk(dst, st, cin, ka=Ka, kb=Kb):
        return [f"v_mfma_f32_32x32x16_bf16 {dst}, {ka}, {Q0[st]}, {cin}", f"v_mfma_f32_32x32x8bf16_1k {dst}, {kb}, {Q1[st]}, {dst}"]

    units = [(0, 0)] + [(st, n) for n in range(1, 9) for st in (0, 1)] + [(1, 9)]
    for st in range(2):
        A(f"v_mov_b32 {mg[st]}, {hex(BIG)}")
    A(f"s_mov_b32 {sPASS}, 0")
    A.label("L_att")
    readK(0, Vf[0:4], Vf[4:6])
    readK(1)
    for x in qk(Sx[0], 0, c.mask, Vf[0:4], Vf[4:6]) + qk(Sx[2], 1, c.mask):
        A(x)
    for st, sx in ((0, Sx[0]), (1, Sx[2])):
        A(f"v_max3_f32 {m[st]}, {sx[0]}, {sx[1]}, {mg[st]}")
        for r in range(2, 16, 2):
            A(f"v_max3_f32 {m[st]}, {sx[r]}, {sx[r + 1]}, {m[st]}")
        xor32_op("v_max_f32", m[st], tmp)
        for r in range(16):
            A(f"v_sub_f32 {Cm[st][r]}, 0, {m[st]}")
        for r in range(16):
            A(f"v_sub_f32 {sx[r]}, {sx[r]}, {m[st]}")
    A(f"v_mov_b32 {tmp}, {hex(BIG)}")
    for r in range(16):
        A(f"v_sub_f32 {c.mask[r]}, {tmp}, {c.mask[r]}")
    c.stamp("z_set", "a")
    for k, (st, n) in enumerate(units):
        s = Sx[k % 3]
        if st == 1 and n % 2 == 1 and n < 9:
            A(f"s_cmp_eq_u32 {sHOOK}, {n + 1}")
            A.branch(f"s_cbranch_scc1 L_hook_{n + 1}", noflush=True)
            A.label(f"L_back_{n + 1}")
        if st == 0 or n == 9:
            readV(n)
        nxt = units[k + 1] if k + 1 < len(units) else None
        pre, mm = [], []
        if nxt and k + 1 != 2:
            if nxt == (0, 8) or nxt == (1, 9):
                pre = [f"v_sub_f32 {Cm[nxt[0]][r]}, {c.mask[r]}, {m[nxt[0]]}" for r in range(16)]
            mm = qk(Sx[(k + 1) % 3], nxt[0], Cm[nxt[0]])
        for x in pre:
            A(x)
        order = []
        for r in range(0, 16, 2):
            order += [f"v_exp_f32 {s[r]}, {s[r]}", f"v_exp_f32 {s[r + 1]}, {s[r + 1]}"]
            if r >= 2:
                order.append(f"v_cvt_pk_bf16_f32 {P[r // 2 - 1]}, {s[r - 2]}, {s[r - 1]}")
        first = n == (0 if st == 0 else 1)
        for i, x in enumerate(order):
            A(x)
            if i == 2 and mm:
                A(mm[0])
            if i == 7 and mm:
                A(mm[1])
            if i == 9 and st == 0 and 1 <= n:
                readK(n + 1)
            if i == 15:
                A(f"v_mfma_f32_32x32x16_bf16 {O[st]}, {Vf[0:4]}, {P[0:4]}, {'0' if first else O[st]}")
        A(f"v_cvt_pk_bf16_f32 {P[7]}, {s[14]}, {s[15]}")
        A(f"v_mfma_f32_32x32x16_bf16 {O[st]}, {Vf[4:8]}, {P[4:8]}, {O[st]}")
    A(f"s_mov_b32 {t0}, {hex(f32(2.0 ** 40 if not OPT['force_fb'] else 1.5))}")
    for st in range(2):
        A(f"v_cndmask_b32_e64 {m[st]}, {O[st][12]}, {O[st][8]}, {sHI}")
    A(f"v_cmp_nge_f32 vcc, {t0}, {m[0]}")
    A(f"v_cmp_nge_f32 {p0}, {t0}, {m[1]}")
    A(f"s_or_b64 vcc, vcc, {p0}")
    A(f"s_cmp_eq_u32 {sPASS}, 0")
    A(f"s_cselect_b64 vcc, vcc, 0")
    A.branch("s_cbranch_vccnz L_fb")
    c.op = [Sx[0][0:6], Sx[0][6:12]]
    for st in range(2):
        A(f"v_rcp_f32 {m[st]}, {m[st]}")
    for st in range(2):
        for r in range(12):
            A(f"v_mul_f32 {O[st][r]}, {O[st][r]}, {m[st]}")
        for r in range(6):
            A(f"v_cvt_pk_bf16_f32 {c.op[st][r]}, {O[st][2 * r]}, {O[st][2 * r + 1]}")
        c.store_o(st)

    def cold():
        for n in (2, 4, 6, 8):
            A.label(f"L_hook_{n}")
            A("s_nop 7")
            for r in range(16):
                for x in (Cm[0], Cm[1], c.mask):
                    A(f"v_mov_b32 {x[r]}, {hex(BIG)}")
            A.branch(f"s_branch L_back_{n}")
        A.label("L_fb")
        z, big = P[0], P[1]
        A(f"v_lshrrev_b32 {z}, 5, {c.lane}")
        A(f"v_lshlrev_b32 {z}, 2, {z}")
        A(f"v_and_b32 {big}, 31, {c.lane}")
        A(f"v_sub_u32 {z}, {big}, {z}")
        A(f"v_mov_b32 {big}, {hex(BIG)}")
        build_mask(c, z, big)
        for r in range(16):
            A(f"v_sub_f32 {Cm[0][r]}, {big}, {c.mask[r]}")
        for n in range(1, 10):
            skip = lab("fbskip")
            A(f"s_cmp_le_u32 {sHOOK}, {n}")
            A.branch(f"s_cbranch_scc1 {skip}")
            readK(n)
            for st in range(2):
                if (st, n) in units and (st, n) != (1, 1):
                    for x in qk(Sx[st], st, Cm[0] if n == 8 + st else "0"):
                        A(x)
            for st in range(2):
                if (st, n) in units and (st, n) != (1, 1):
                    for r in range(0, 16, 2):
                        A(f"v_max3_f32 {mg[st]}, {Sx[st][r]}, {Sx[st][r + 1]}, {mg[st]}")
            A.label(skip)
        A(f"s_mov_b32 {sPASS}, 1")
        A.branch("s_branch L_att")
    c.cold.append(cold)
    V.release(Sx, O, Cm, P, Vf, Ka, Kb, m, mg, tmp, c.mask, c.aK, c.aK4, c.aV, Q0, Q1)


def wd_pattern(c):
    V = c.V
    c.pat = V.alloc(5)
    p, r = V.alloc(1), V.alloc(1)
    A(f"s_mul_i32 {t0}, {sN}, 160")
    for i in range(5):
        A(f"v_add_u32 {p}, {64 * i}, {c.lane}")
        A(f"v_mul_u32_u24 {r}, 0x199a, {p}")
        A(f"v_lshrrev_b32 {r}, 16, {r}")
        A(f"v_mul_u32_u24 {c.pat[i]}, 0x460, {r}")
        A(f"v_lshl_add_u32 {c.pat[i]}, {p}, 4, {c.pat[i]}")
        A(f"v_add_u32 {c.pat[i]}, {t0}, {c.pat[i]}")
    V.release(p, r)


def dma_slab(c, srd, s_src, lds, win=0):
    for i in range(5):
        if win:
            A(f"s_waitcnt vmcnt({win - 1})")
        if isinstance(lds, int):
            A(f"s_mov_b32 m0, {lds + 1024 * i}")
        else:
            A(f"s_add_u32 m0, {lds}, {1024 * i}")
        tag = A.tagged(f"buffer_load_dwordx4 {c.pat[i]}, {srd}, {s_src} offen lds")
    return tag


def prof_dump(c, role):
    if not OPT["prof"]:
        return
    V = c.V
    a, d = V.alloc(1), V.alloc(1)
    skip = lab("noprof")
    A("s_waitcnt vmcnt(0)")
    c.stamp("end")
    NAMES.append(c.names)
    A("s_waitcnt lgkmcnt(0)")
    A(f"s_mov_b32 {S(PROF0 + c.nstamp - 1)}, {sSTAMP[0]}")
    A(f"s_cmp_lg_u32 {sW4}, {OPT.get('pw', 0)}")
    A.branch(f"s_cbranch_scc1 {skip}")
    A(f"s_lshl_b32 {t0}, s2, 8")
    A(f"s_add_u32 {t0}, {t0}, {WS_PROF + 128 * role}")
    A(f"v_mov_b32 {a}, 0")
    A("s_mov_b64 exec, 1")
    for i in range(c.nstamp):
        A(f"v_mov_b32 {d}, {S(PROF0 + i)}")
        A(f"buffer_store_dword {d}, {a}, {sWS}, {t0} offen offset:{4 * i}")
    if role == 0 and "dbgskew" in OPT:
        nod = lab("nodbg")
        A(f"s_cmp_lg_u32 {sJ}, 0")
        A.branch(f"s_cbranch_scc1 {nod}")
        A(f"s_load_dwordx2 {p0}, s[0:1], 80")
        A(f"s_lshl_b32 {t1}, {sG}, 2")
        A(f"v_mov_b32 {a}, {t1}")
        A("s_waitcnt lgkmcnt(0)")
        for k, i in enumerate((0, c.nstamp - 1)):
            A(f"s_and_b32 {t1}, {S(PROF0 + i)}, 0xfffff")
            A(f"v_mov_b32 {d}, {t1}")
            A(f"global_store_dword {a}, {d}, {p0} offset:{32 * k}")
        A.label(nod)
    if role == 0 and "dbgwg" in OPT:
        nod = lab("nodbg")
        A(f"s_cmp_lg_u32 s2, {OPT['dbgwg']}")
        A.branch(f"s_cbranch_scc1 {nod}")
        A(f"s_load_dwordx2 {p0}, s[0:1], 80")
        A("s_waitcnt lgkmcnt(0)")
        keep = [i for i in range(1, c.nstamp) if c.names[i] not in ("s_pre", "x_sig", "a_end")][:16]
        for k, i in enumerate(keep):
            A(f"s_sub_u32 {t1}, {S(PROF0 + i)}, {S(PROF0)}")
            A(f"v_mov_b32 {d}, {t1}")
            A(f"global_store_dword {a}, {d}, {p0} offset:{4 * k}")
        print("debug words:", [c.names[i] for i in keep])
        A.label(nod)
    A("s_mov_b64 exec, -1")
    A.label(skip)
    V.release(a, d)


def tile_gemm(c, nks, s_a0, s_a1, init, depth, waddr, barrier_at, step=None, drain=True):
    V = c.V
    ring = [[V.alloc(4, 4), V.alloc(4, 4)] for _ in range(depth)]
    W = [V.alloc(20, 4), V.alloc(20, 4)]
    acc = [V.alloc(20, 4), V.alloc(20, 4)]

    def loadA1(ks, a):
        A(f"buffer_load_dwordx4 {ring[ks % depth][a]}, {c.l16}, {sWS}, {(s_a0, s_a1)[a]} offen offset:{(ks % 4) * 1024} sc1")
        if a == 1 and ks % 4 == 3 and ks + 1 < nks:
            inc = step(ks // 4) if step else 4096
            A(f"s_add_u32 {s_a0}, {s_a0}, {inc}")
            A(f"s_add_u32 {s_a1}, {s_a1}, {inc}")

    def loadA(ks):
        loadA1(ks, 0)
        loadA1(ks, 1)

    def readW(ks, ct, u):
        ad, imm = waddr(ks)
        A(f"ds_read_b64_tr_b16 {W[ks & 1][4 * ct + 2 * u:4 * ct + 2 * u + 2]}, {ad} offset:{imm + 1280 * u + 32 * ct}")

    issued = min(init, nks)
    for ks in range(issued):
        loadA(ks)
    if 0 in barrier_at:
        A("s_barrier")
    for ct in range(5):
        readW(0, ct, 0)
        readW(0, ct, 1)
    for ks in range(nks):
        nxt = ks + 1 < nks
        if nxt and (ks + 1) in barrier_at:
            barrier() if drain else A("s_barrier")
        if nks == 24 and ks % 4 == 0:
            c.stamp("z_k%d" % ks, "d")
        todo = []
        for _ in range(2):
            if issued < min(nks, ks + depth):
                todo += [(issued, 0), (issued, 1)]
                issued += 1
        for ct in range(5):
            for a in range(2):
                A(f"v_mfma_f32_16x16x32_bf16 {acc[a][4 * ct:4 * ct + 4]}, {W[ks & 1][4 * ct:4 * ct + 4]}, {ring[ks % depth][a]}, "
                  f"{'0' if ks == 0 else acc[a][4 * ct:4 * ct + 4]}")
                if nxt:
                    readW(ks + 1, ct, a)
            if todo and ct < 4 and (len(todo) > 2 or ct in (1, 3) or len(todo) + ct >= 4):
                loadA1(*todo.pop(0))
        assert not todo
    V.release(ring, W)
    return acc


def tile_reduce(c, acc, lds):
    V = c.V
    ad = V.alloc(1)
    A(f"s_mul_i32 {t0}, {sW4}, 5120")
    A(f"s_add_u32 {t0}, {t0}, {lds}")
    A(f"v_add_u32 {ad}, {t0}, {c.l16}")
    for ct in range(5):
        A(f"ds_write_b128 {ad}, {acc[1][4 * ct:4 * ct + 4]} offset:{1024 * ct}")
    A(f"s_xor_b32 {t0}, {sW4}, 1")
    A(f"s_mul_i32 {t0}, {t0}, 5120")
    A(f"s_add_u32 {t0}, {t0}, {lds}")
    A(f"v_add_u32 {ad}, {t0}, {c.l16}")
    barrier()
    for ct in range(5):
        A(f"ds_read_b128 {acc[1][4 * ct:4 * ct + 4]}, {ad} offset:{1024 * ct}")
    for r in range(20):
        A(f"v_add_f32 {acc[0][r]}, {acc[0][r]}, {acc[1][r]}")
    V.release(ad, acc[1])
    return acc[0]


def wtile_addr(c, base, half_bytes, ad, t, u):
    A(f"v_lshrrev_b32 {t}, 5, {c.lane}")
    A(f"v_bfe_u32 {u}, {c.lane}, 4, 1")
    A(f"v_lshlrev_b32 {t}, 4, {t}")
    A(f"v_lshl_add_u32 {t}, {u}, 2, {t}")
    A(f"v_bfe_u32 {u}, {c.lane}, 2, 2")
    A(f"v_add_u32 {t}, {t}, {u}")
    A(f"v_mul_u32_u24 {t}, 0xa0, {t}")
    A(f"v_and_b32 {u}, 3, {c.lane}")
    A(f"v_lshl_add_u32 {t}, {u}, 3, {t}")
    A(f"s_and_b32 {t0}, {sW4}, 1")
    A(f"s_mul_i32 {t0}, {t0}, {half_bytes}")
    A(f"s_add_u32 {t0}, {t0}, {base}")
    A(f"v_add_u32 {ad}, {t0}, {t}")


def tile_streams(base, per_group, tile_bytes, half_bytes, d0, d1):
    A(f"s_mul_i32 {t0}, {sG}, {per_group}")
    A(f"s_and_b32 {t1}, {sW4}, 1")
    A(f"s_mul_i32 {t1}, {t1}, {half_bytes}")
    A(f"s_add_u32 {t0}, {t0}, {t1}")
    add_base(t0, base[0], base[1], t1)
    A(f"s_lshl_b32 {t1}, {sI}, 2")
    A(f"s_add_u32 {t2}, {t1}, {sW4}")
    A(f"s_mul_i32 {d0}, {t2}, {tile_bytes}")
    A(f"s_add_u32 {d0}, {d0}, {t0}")
    A(f"s_xor_b32 {t2}, {t2}, 1")
    A(f"s_mul_i32 {d1}, {t2}, {tile_bytes}")
    A(f"s_add_u32 {d1}, {d1}, {t0}")


def d_rot(dst, tmp):
    A(f"s_lshr_b32 {dst}, {sI}, 1")
    A(f"s_mul_i32 {dst}, {dst}, 3")
    if OPT["drot"]:
        A(f"s_add_u32 {dst}, {dst}, {sN}")
        for _ in range(1):
            A(f"s_cmp_ge_u32 {dst}, 6")
            A(f"s_cselect_b32 {tmp}, 6, 0")
            A(f"s_sub_u32 {dst}, {dst}, {tmp}")


def ln_scalars(mean, var, tmp):
    round1(mean)
    round1(var)
    A(f"v_add_f32 {var}, {hex(f32(1e-5))}, {var}")
    round1(var)
    A(f"v_sqrt_f32 {var}, {var}")
    round1(var)
    A(f"v_rcp_f32 {var}, {var}")


def qkv_role():
    A(f"s_cmp_ge_u32 {sJ}, 15")
    A(f"s_cselect_b32 {sRH}, 1, 0")
    A(f"s_cselect_b32 {t0}, 15, 0")
    A(f"s_sub_u32 {sCB}, {sJ}, {t0}")
    A(f"s_min_u32 {sCB}, {sCB}, 14")


def qkv_addr(c):
    V, lane = c.V, c.lane
    c.wq = V.alloc(4)
    tq, tu, tr = V.alloc(1), V.alloc(1), V.alloc(1)
    A(f"v_lshrrev_b32 {tq}, 5, {lane}")
    A(f"v_bfe_u32 {tr}, {lane}, 2, 2")
    A(f"v_lshl_add_u32 {tq}, {tq}, 3, {tr}")
    A(f"v_lshlrev_b32 {tq}, 8, {tq}")
    A(f"v_bfe_u32 {tu}, {lane}, 4, 1")
    A(f"v_lshl_add_u32 {tq}, {tu}, 5, {tq}")
    A(f"v_and_b32 {tu}, 3, {lane}")
    A(f"v_lshl_add_u32 {tq}, {tu}, 3, {tq}")
    A(f"v_add_u32 {tq}, {L_WQ}, {tq}")
    for ct in range(4):
        A(f"v_xor_b32 {tu}, {ct}, {tr}")
        A(f"v_lshl_add_u32 {c.wq[ct]}, {tu}, 6, {tq}")
    c.xs, c.xa, c.xq1 = V.alloc(1), V.alloc(1), V.alloc(1)
    A(f"v_and_b32 {tq}, 15, {lane}")
    A(f"v_lshlrev_b32 {tq}, 4, {tq}")
    A(f"v_bfe_u32 {tr}, {lane}, 4, 1")
    A(f"v_lshrrev_b32 {tu}, 5, {lane}")
    A(f"v_lshl_add_u32 {c.xs}, {tr}, 12, {tq}")
    A(f"v_lshl_add_u32 {c.xs}, {tu}, 11, {c.xs}")
    A(f"v_lshl_add_u32 {tq}, {tr}, 3, {tq}")
    A(f"v_lshl_add_u32 {c.xa}, {tu}, 11, {tq}")
    A(f"v_mov_b32 {tu}, {OOB}")
    A(f"v_cndmask_b32_e64 {c.xq1}, {tq}, {tu}, {sHI}")
    V.release(tq, tu, tr)


def compute_role(c0):
    c = Ctx(c0.V.clone())
    c.__dict__.update({k: v for k, v in c0.__dict__.items() if k not in ("V", "cold")})
    V = c.V
    lane = c.lane
    wm = V.alloc(20, 4)
    cv = V.alloc(5)
    t, co, wo = V.alloc(1), V.alloc(1), V.alloc(1)
    A(f"v_lshrrev_b32 {t}, 1, {lane}")
    A(f"s_lshl_b32 {t0}, {sW4}, 5")
    A(f"v_add_u32 {t}, {t0}, {t}")
    A(f"v_lshlrev_b32 {co}, 1, {t}")
    A(f"v_mul_u32_u24 {wo}, 0x1e00, {t}")
    A(f"v_and_b32 {t}, 1, {lane}")
    A(f"v_lshl_add_u32 {wo}, {t}, 4, {wo}")
    srd_words((sWM, sCC, sWS, sX))
    A(f"s_mul_i32 {t3}, {sG}, 10")
    A(f"s_mul_i32 {t2}, {sG}, 20")
    A(f"s_add_u32 {t2}, {t2}, 70")
    A(f"s_cmp_lt_u32 {sJ}, 10")
    A(f"s_cselect_b32 {t3}, {t3}, {t2}")
    A(f"s_add_u32 {t3}, {t3}, {sJ}")
    A(f"s_lshl_b32 {t2}, {t3}, 5")
    A(f"s_cmp_lt_u32 {sJ}, {10 if OPT.get('exp1') else 30}")
    A(f"s_cselect_b32 {t2}, {t2}, {OOB}")
    xr = V.alloc(12, 4)
    xo, x3, cl, tok = V.alloc(1), V.alloc(1), V.alloc(1), V.alloc(1)
    A(f"v_and_b32 {cl}, 31, {lane}")
    A(f"v_lshrrev_b32 {tok}, 5, {lane}")
    A(f"s_lshl_b32 {t0}, {sJ}, 3")
    A(f"s_lshl_b32 {t1}, {sW4}, 1")
    A(f"s_add_u32 {t0}, {t0}, {t1}")
    A(f"v_add_u32 {tok}, {t0}, {tok}")
    A(f"v_mul_u32_u24 {xo}, 0x500, {tok}")
    A(f"v_lshl_add_u32 {xo}, {cl}, 4, {xo}")
    A(f"s_mul_i32 {t1}, {sG}, {ACT}")
    A(f"v_mov_b32 {x3}, {OOB}")
    A(f"v_cmp_gt_u32 {p1}, 16, {cl}")
    A(f"v_cndmask_b32_e64 {x3}, {x3}, {xo}, {p1}")
    A("s_waitcnt lgkmcnt(0)")
    A(f"s_load_dword {sT[0]}, {sWS[0:2]}, {WS_E}")
    c.stamp("z_karg", "s")
    for p in range(5):
        A(f"buffer_load_ushort {cv[p]}, {co}, {sCC}, 0 offen offset:{256 * p}")
    for p in range(5):
        A(f"buffer_load_dwordx4 {wm[4 * p:4 * p + 4]}, {wo}, {sWM}, {t2} offen{' nt' if OPT['nt0'] else ''}")
        if p < 4:
            A(f"s_add_u32 {t2}, {t2}, {128 * 7680}")
    A(f"buffer_load_dwordx4 {xr[0:4]}, {xo}, {sX}, {t1} offen{' nt' if OPT['nt0'] else ''}")
    A(f"buffer_load_dwordx4 {xr[4:8]}, {xo}, {sX}, {t1} offen offset:512{' nt' if OPT['nt0'] else ''}")
    A(f"buffer_load_dwordx4 {xr[8:12]}, {x3}, {sX}, {t1} offen offset:1024{' nt' if OPT['nt0'] else ''}")
    c.stamp("z_bs", "s")
    V.release(xo, x3, wo, c.dummy)
    late_setup()
    e = V.alloc(5)
    for i in range(5):
        A(f"v_lshlrev_b32 {cv[i]}, 16, {cv[i]}")
    c.stamp("z_c", "s")
    for op in (f"v_mul_f32 {{e}}, {hex(f32(-LOG2E))}, {{s}}", "v_exp_f32 {e}, {e}", "v_add_f32 {e}, 1.0, {e}", "v_rcp_f32 {e}, {e}",
               "v_mul_f32 {s}, {s}, {e}", "v_cvt_pk_bf16_f32 {e}, 0, {s}", "v_cvt_pk_bf16_f32 {s}, {s}, 0"):
        for i in range(5):
            A(op.format(e=e[i], s=cv[i]))
    acc = V.alloc(8)
    for p in range(5):
        for i in range(4):
            for h, m in ((0, cv), (1, e)):
                A(f"v_dot2_f32_bf16 {acc[2 * i + h]}, {wm[4 * p + i]}, {m[p]}, {'0' if p == 0 else acc[2 * i + h]}")
    c.stamp("s_wmod")
    for i in range(4):
        A(f"v_permlane32_swap_b32 {acc[i]}, {acc[i + 4]}")
    for i in range(4):
        A(f"v_add_f32 {acc[i]}, {acc[i]}, {acc[i + 4]}")
    for i in range(2):
        A(f"v_permlane16_swap_b32 {acc[i]}, {acc[i + 2]}")
    r = V.alloc(2)
    for i in range(2):
        A(f"v_add_f32 {r[i]}, {acc[i]}, {acc[i + 2]}")
    for m in ("row_ror:8", "row_ror:4", "row_ror:2"):
        for i in range(2):
            A(f"v_add_f32_dpp {r[i]}, {r[i]}, {r[i]} {m} row_mask:0xf bank_mask:0xf")
    A(f"v_lshlrev_b32 {t}, 5, {t}")
    A(f"v_lshrrev_b32 {co}, 4, {lane}")
    A(f"v_lshl_add_u32 {t}, {co}, 3, {t}")
    A(f"s_lshl_b32 {t0}, {sW4}, 6")
    A(f"v_add_u32 {t}, {t0}, {t}")
    A(f"ds_write_b64 {t}, {r} offset:{L_PART}")
    tag_setup()
    A("s_barrier")
    skip, join = lab("nopub"), lab("pubdone")
    A(f"s_cmp_lg_u32 {sW4}, 0")
    A.branch(f"s_cbranch_scc1 {skip}")
    pr, gr = wm[0:16], wm[16:20]
    A("s_mov_b64 exec, 15")
    for p in range(4):
        A(f"ds_read_b128 {pr[4 * p:4 * p + 4]}, {c.l16} offset:{L_PART + 64 * p}")
    A(f"s_lshl_b32 {t0}, {t3}, 7")
    A(f"s_add_u32 {t0}, {t0}, {WS_MOD}")
    A(f"s_cmp_lt_u32 {sJ}, 30")
    A(f"s_cselect_b32 {t0}, {t0}, {OOB}")
    A(f"v_mov_b32 {gr[2]}, {sT[0]}")
    A(f"v_mov_b32 {gr[3]}, {sT[1]}")
    for p in range(1, 4):
        for i in range(4):
            A(f"v_add_f32 {pr[i]}, {pr[i]}, {pr[4 * p + i]}")
    A(f"v_cvt_pk_bf16_f32 {gr[0]}, {pr[0]}, {pr[1]}")
    A(f"v_cvt_pk_bf16_f32 {gr[1]}, {pr[2]}, {pr[3]}")
    A(f"buffer_store_dwordx4 {gr}, {c.l16}, {sWS}, {t0} offen sc1")
    A("s_mov_b64 exec, -1")
    A("s_waitcnt vmcnt(1)")
    A.branch(f"s_branch {join}")
    A.label(skip)
    A("s_waitcnt vmcnt(0)")
    A.label(join)
    V.release(wm, cv, e, acc, r, t, co)
    c.stamp("s_pub")
    xf = V.alloc(24, 2)
    mean, var, tmp, m3 = V.alloc(1), V.alloc(1), V.alloc(1), V.alloc(1)
    for i in range(12):
        unpack(xf[2 * i], xf[2 * i + 1], xr[i])
    A(f"v_add_f32 {mean}, {xf[0]}, {xf[1]}")
    for i in range(2, 24):
        A(f"v_add_f32 {mean}, {mean}, {xf[i]}")
    sum16(mean)
    xor16_add(mean, tmp)
    A(f"v_mul_f32 {mean}, {hex(f32(1 / 640))}, {mean}")
    A(f"v_cndmask_b32_e64 {m3}, 0, {mean}, {p1}")
    d = xr
    for i in range(24):
        A(f"v_sub_f32 {d[i % 4]}, {xf[i]}, {mean if i < 16 else m3}")
        if i == 0:
            A(f"v_mul_f32 {var}, {d[0]}, {d[0]}")
        else:
            A(f"v_fmac_f32 {var}, {d[i % 4]}, {d[i % 4]}")
    sum16(var)
    xor16_add(var, tmp)
    A(f"v_mul_f32 {var}, {hex(f32(1 / 640))}, {var}")
    ln_scalars(mean, var, tmp)
    for i in range(0, 24, 2):
        A(f"v_sub_f32 {xf[i]}, {xf[i]}, {mean}")
        A(f"v_sub_f32 {xf[i + 1]}, {xf[i + 1]}, {mean}")
        round_pair(xf[i], xf[i + 1], tmp)
        A(f"v_mul_f32 {xf[i]}, {xf[i]}, {var}")
        A(f"v_mul_f32 {xf[i + 1]}, {xf[i + 1]}, {var}")
        round_pair(xf[i], xf[i + 1], tmp)
    V.release(mean, var, m3)
    c.stamp("z_ln", "s")
    qkv_role()
    qkv_addr(c)
    hao, ha3, ma, m3a = V.alloc(1), V.alloc(1), V.alloc(1), V.alloc(1)
    A(f"v_lshrrev_b32 {hao}, 5, {tok}")
    A(f"v_mul_u32_u24 {hao}, 0xa000, {hao}")
    A(f"v_and_b32 {ha3}, 31, {tok}")
    A(f"v_lshl_add_u32 {hao}, {ha3}, 4, {hao}")
    A(f"v_lshl_add_u32 {hao}, {cl}, 9, {hao}")
    A(f"v_mov_b32 {ha3}, {OOB}")
    A(f"v_cndmask_b32_e64 {ha3}, {ha3}, {hao}, {p1}")
    A(f"v_lshlrev_b32 {ma}, 5, {cl}")
    A(f"v_and_b32 {m3a}, 15, {cl}")
    A(f"v_lshlrev_b32 {m3a}, 5, {m3a}")
    V.release(cl, tok)
    ga, gb = V.alloc(4, 4), V.alloc(4, 4)
    a2, a3 = V.alloc(1), V.alloc(1)
    a1 = V.alloc(1)
    A(f"s_mul_i32 {t1}, {sW4}, 1280")
    A(f"s_lshl_b32 {t2}, {t1}, 1")
    A(f"s_add_u32 {t2}, {t2}, {WS_MOD}")
    A(f"s_lshl_b32 {t3}, {sG}, 9")
    A(f"s_lshl_b32 {t4}, {sW4}, 7")
    A(f"s_add_u32 {t3}, {t3}, {t4}")
    A(f"s_add_u32 {t3}, {t3}, {WS_CENSUS}")
    A(f"s_add_u32 {t4}, {t2}, 2048")
    A(f"v_and_b32 {a2}, 3, {lane}")
    A(f"v_lshlrev_b32 {a2}, 4, {a2}")
    A(f"v_lshrrev_b32 {a1}, 2, {lane}")
    A(f"v_lshl_add_u32 {a1}, {a1}, 7, {a2}")
    A(f"v_and_b32 {ga[0]}, 0x1ff, {a1}")
    A(f"v_add_u32 {ga[0]}, {t4}, {ga[0]}")
    A(f"v_and_b32 {a3}, 7, {lane}")
    A(f"v_lshl_add_u32 {a3}, {a3}, 4, {t3}")
    A(f"v_cndmask_b32_e64 {a3}, {ga[0]}, {a3}, {sHI}")
    A(f"v_and_b32 {a2}, 15, {lane}")
    A(f"v_lshlrev_b32 {a2}, 4, {a2}")
    c.stamp("s_pre")

    def chk():
        A(f"v_xor_b32 {ga[3]}, {sT[1]}, {ga[3]}")
        A(f"v_xor_b32 {gb[3]}, {sT[1]}, {gb[3]}")
        A(f"v_cmp_ne_u32 vcc, {sT[0]}, {ga[2]}")
        A(f"v_cmp_ne_u32 {p0}, {sT[0]}, {gb[2]}")
        A(f"v_or_b32 {tmp}, {ga[3]}, {gb[3]}")
        A(f"s_or_b64 vcc, vcc, {p0}")
        A(f"v_cmp_lt_u32 {p0}, 15, {tmp}")
        A(f"s_or_b64 vcc, vcc, {p0}")
    poll(c, [f"buffer_load_dwordx4 {ga}, {a1}, {sWS}, {t2} offen sc1",
             f"buffer_load_dwordx4 {gb}, {a3}, {sWS}, 0 offen sc1"], chk, acquire=False, backoff=OPT.get("gsleep", 0))
    V.release(a1)
    c.stamp("s_gath")
    A(f"v_cmp_ne_u32 vcc, {sXCC}, {gb[3]}")
    A(f"s_cmp_lg_u32 vcc_hi, 0")
    A(f"s_cselect_b32 {t3}, 1, {OPT['force_slow']}")
    A(f"s_cmp_ge_u32 {sW4}, 2")
    A(f"s_cselect_b32 {t4}, 1.0, 0")
    fa, fb = V.alloc(4, 4), V.alloc(4, 4)
    for g_, f_ in ((ga, fa), (gb, fb)):
        unpack(f_[0], f_[1], g_[0])
        unpack(f_[2], f_[3], g_[1])
        for i in range(4):
            A(f"v_add_f32 {f_[i]}, {t4}, {f_[i]}")
        round_pair(f_[0], f_[1], tmp)
        round_pair(f_[2], f_[3], tmp)
    A(f"s_add_u32 {t1}, {t1}, {L_MOD1F}")
    A(f"v_add_u32 {ga[0]}, {t1}, {c.l16}")
    A(f"v_add_u32 {a2}, {t1}, {a2}")
    A(f"s_lshl_b32 {t0}, {sW4}, 2")
    A(f"v_mov_b32 {ga[1]}, {t0}")
    A(f"v_mov_b32 {ga[2]}, {t3}")
    A(f"v_mov_b32 {ga[3]}, 0")
    A(f"v_mov_b32 {a3}, 1")
    A(f"ds_write_b128 {ga[0]}, {fa}")
    A("s_mov_b64 exec, 0xffff")
    A(f"ds_write_b128 {a2}, {fb} offset:1024")
    A("s_mov_b64 exec, 1")
    A(f"ds_write_b32 {ga[1]}, {ga[2]} offset:{L_MODEF}")
    A(f"ds_add_u32 {ga[3]}, {a3} offset:{L_CNT + 4}")
    A("s_mov_b64 exec, -1")
    V.release(gb, fa, fb, a2, a3)
    c.stamp("z_cvt", "s")
    lds_spin(c, L_CNT + 4, 4)
    c.stamp("z_spin", "s")
    A(f"v_mov_b32 {ga[0]}, 0")
    A(f"ds_read_b128 {ga}, {ga[0]} offset:{L_MODEF}")
    sc, sh = V.alloc(24, 4), V.alloc(24, 4)
    for k in range(3):
        ad = ma if k < 2 else m3a
        for h in range(2):
            A(f"ds_read_b128 {sc[8 * k + 4 * h:8 * k + 4 * h + 4]}, {ad} offset:{L_MOD1F + 2560 + 1024 * k + 16 * h}")
            A(f"ds_read_b128 {sh[8 * k + 4 * h:8 * k + 4 * h + 4]}, {ad} offset:{L_MOD1F + 1024 * k + 16 * h}")
    A(f"v_or_b32 {ga[0]}, {ga[0]}, {ga[1]}")
    A(f"v_or3_b32 {ga[0]}, {ga[0]}, {ga[2]}, {ga[3]}")
    A(f"v_readfirstlane_b32 {sMODE}, {ga[0]}")
    hd = V.alloc(12, 4)
    A(f"s_mul_i32 {t5}, {sG}, {ACT}")
    add_base(t5, WS_H1, WS_A, t6)
    A(f"s_add_u32 {t6}, {t5}, 16384")
    A(f"s_add_u32 {t7}, {t5}, 32768")
    for k in range(3):
        for i in range(8 * k, 8 * k + 8, 2):
            if OPT["mim"] & 1:
                A(f"v_pk_mul_f32 {xf[i:i + 2]}, {xf[i:i + 2]}, {sc[i:i + 2]}")
                round_pair(xf[i], xf[i + 1], tmp)
                A(f"v_pk_add_f32 {xf[i:i + 2]}, {xf[i:i + 2]}, {sh[i:i + 2]}")
            else:
                A(f"v_pk_fma_f32 {xf[i:i + 2]}, {xf[i:i + 2]}, {sc[i:i + 2]}, {sh[i:i + 2]}")
            A(f"v_cvt_pk_bf16_f32 {hd[i // 2]}, {xf[i]}, {xf[i + 1]}")
        A(f"buffer_store_dwordx4 {hd[4 * k:4 * k + 4]}, {ha3 if k == 2 else hao}, {sWS}, {(t5, t6, t7)[k]} offen")
    V.release(xf, xr, sc, sh, ma, m3a, hao, ha3, ga)
    c.stamp("z_h1st", "s")
    signal(c, 0)
    V.release(hd)
    c.stamp("s_h1")
    sA = t6
    A(f"s_lshl_b32 {t4}, {sRH}, 2")
    A(f"s_add_u32 {t4}, {t4}, {sW4}")
    A(f"s_mul_i32 {sA}, {t4}, 40960")
    A(f"s_mul_i32 {t0}, {sRH}, 20480")
    A(f"s_add_u32 {sA}, {sA}, {t5}")
    A(f"s_add_u32 {sA}, {sA}, {t0}")
    A(f"s_mul_i32 {t7}, {sRH}, 40960")
    A(f"s_sub_u32 {t7}, 4096, {t7}")
    A(f"s_lshl_b32 {t1}, {t4}, 6")
    wait_edge(c, 0, t1)
    V.release(tmp)
    c.stamp("s_e1")
    D = OPT["qd"]
    ring = [V.alloc(4, 4) for _ in range(D)]
    W = [V.alloc(16, 4), V.alloc(16, 4)]
    acc = [V.alloc(16, 4) for _ in range(4)]

    def loadA(p):
        A(f"buffer_load_dwordx4 {ring[p % D]}, {c.l16}, {sWS}, {sA} offen offset:{(p % 4) * 1024} sc1")
        if p % 4 == 3 and p < 39:
            A(f"s_add_u32 {sA}, {sA}, {t7 if p == 19 else 4096}")

    def readW(p, ct):
        slot = p if p < 37 else p - 37
        if p in (16, 32):
            A(f"v_add_u32 {c.wq[ct]}, {16 * 4096}, {c.wq[ct]}")
        if p == 37:
            A(f"v_subrev_u32 {c.wq[ct]}, {32 * 4096}, {c.wq[ct]}")
        for u in range(2):
            A(f"ds_read_b64_tr_b16 {W[p & 1][4 * ct + 2 * u:4 * ct + 2 * u + 2]}, {c.wq[ct]} offset:{(slot % 16) * 4096 + 1024 * u}")

    issued = OPT["qinit"]
    for p in range(issued):
        loadA(p)
    bump(c, L_CNT + 8)
    A("s_barrier")
    c.stamp("z_q0", "q")
    for ct in range(4):
        readW(0, ct)
    for p in range(40):
        nxt = p + 1 < 40
        if nxt and (p + 1) % 8 == 0:
            if p + 1 == 8:
                A("s_waitcnt lgkmcnt(0)")
            A("s_barrier")
            c.stamp("z_q%d" % ((p + 1) // 8), "q")
        for ct in range(4):
            A(f"v_mfma_f32_32x32x16_bf16 {acc[ct]}, {W[p & 1][4 * ct:4 * ct + 4]}, {ring[p % D]}, {'0' if p == 0 else acc[ct]}")
            if nxt:
                readW(p + 1, ct)
            if ct in (0, 2) and issued < min(40, p + D) and (ct == 0 or p % 2 == 0):
                loadA(issued)
                issued += 1
    V.release(ring, W, c.wq)
    A("s_barrier")
    c.stamp("q_loop")
    noq = lab("noq")
    A(f"s_mul_i32 {t5}, {sG}, {QKVG}")
    A(f"s_add_u32 {t5}, {t5}, {WS_QKV}")
    A(f"s_lshl_b32 {t0}, {sCB}, 16")
    A(f"s_lshl_b32 {t1}, {t4}, 8")
    A(f"s_add_u32 {t0}, {t0}, {t1}")
    A(f"s_add_u32 {t0}, {t0}, {t5}")
    A(f"s_cmp_lt_u32 {sJ}, 30")
    A(f"s_cselect_b32 {t2}, {t0}, {OOB}")
    A(f"s_mov_b32 {p0[0]}, {hex(QSCALE)}")
    A(f"s_mov_b32 {p0[1]}, {hex(QSCALE)}")
    A(f"s_cmp_ge_u32 {sCB}, 5")
    A.branch(f"s_cbranch_scc1 {noq}")
    for ct in range(4):
        for r in range(0, 16, 2):
            A(f"v_pk_mul_f32 {acc[ct][r:r + 2]}, {acc[ct][r:r + 2]}, {p0}")
    A.label(noq)
    pk = V.alloc(32, 4)
    for ct in range(4):
        for ap in range(2):
            d_ = pk[8 * ct + 4 * ap:8 * ct + 4 * ap + 4]
            for i in range(4):
                A(f"v_cvt_pk_bf16_f32 {d_[i]}, {acc[ct][8 * ap + 2 * i]}, {acc[ct][8 * ap + 2 * i + 1]}")
        for ap in range(2):
            d_ = pk[8 * ct + 4 * ap:8 * ct + 4 * ap + 4]
            for i in range(2):
                A(f"v_permlane16_swap_b32 {d_[i]}, {d_[2 + i]}")
            A(f"buffer_store_dwordx4 {d_}, {c.xs}, {sWS}, {t2} offen{'' if OPT.get('xplain') else ' sc1'}")
            if (ct, ap) != (3, 1):
                A(f"s_add_u32 {t2}, {t2}, 8192")
    V.release(c.xs)
    V.release(acc)
    c.stamp("z_st", "x")
    att_masks(c)
    att_addr(c)
    A(f"s_lshl_b32 {t0}, {sW4}, 1")
    A(f"s_add_u32 {t0}, {t0}, 2")
    A(f"s_cmp_eq_u32 {sG}, 0")
    A(f"s_cselect_b32 {sHOOK}, {t0}, 99")
    fa_, fd = V.alloc(1), V.alloc(1)
    nosig = lab("xnosig")
    A(f"s_lshl_b32 {t0}, {sG}, 12")
    A(f"s_add_u32 {t0}, {t0}, {WS_XFLAG}")
    A(f"s_lshl_b32 {t1}, {sJ}, 7")
    A(f"s_add_u32 {t1}, {t1}, {t0}")
    A(f"v_mov_b32 {fa_}, 0")
    A(f"v_mov_b32 {fd}, 1")
    A("s_mov_b64 exec, 1")
    A("s_waitcnt vmcnt(0)")
    A(f"ds_add_rtn_u32 {fd}, {fa_}, {fd} offset:{L_CNT}")
    A(f"v_readfirstlane_b32 {t2}, {fd}")
    A(f"v_mov_b32 {fd}, {sT[0]}")
    A(f"s_cmp_lg_u32 {t2}, 3")
    A.branch(f"s_cbranch_scc1 {nosig}", noflush=True)
    A(f"buffer_store_dword {fd}, {fa_}, {sWS}, {t1} offen sc1")
    A.label(nosig)
    A("s_mov_b64 exec, -1")
    V.release(pk)
    c.stamp("x_sig")
    A(f"s_cmp_lt_u32 {sW4}, 2")
    A(f"s_cselect_b32 {t3}, 1, 0")
    A(f"s_min_u32 {t2}, {t3}, {sG}")
    A(f"s_lshl_b32 {t1}, {t2}, 12")
    A(f"s_sub_u32 {t1}, {t0}, {t1}")
    A(f"s_mul_i32 {t2}, {t2}, {QKVG}")
    A(f"s_sub_u32 {t6}, {t5}, {t2}")
    A(f"s_cmp_gt_u32 {t3}, {sG}")
    A(f"s_cselect_b32 {t6}, {OOB}, {t6}")
    x_, y_ = V.alloc(1), V.alloc(1)
    A(f"v_min_u32 {x_}, 5, {lane}")
    A(f"v_lshrrev_b32 {y_}, 1, {x_}")
    A(f"v_mul_u32_u24 {fa_}, 0xa0, {y_}")
    A(f"v_and_b32 {x_}, 1, {x_}")
    A(f"v_lshl_add_u32 {fa_}, {x_}, 2, {fa_}")
    A(f"s_mul_i32 {t2}, {sJ}, 5")
    A(f"v_add_u32 {fa_}, {t2}, {fa_}")
    A(f"v_lshrrev_b32 {fa_}, 5, {fa_}")
    A(f"v_lshlrev_b32 {fa_}, 7, {fa_}")
    A(f"s_lshr_b32 {t2}, {sW4}, 1")
    A(f"s_mul_i32 {t2}, {t2}, {15 * 128}")
    A(f"s_add_u32 {t0}, {t0}, {t2}")
    A(f"s_and_b32 {t2}, {sW4}, 1")
    A(f"s_mul_i32 {t3}, {t2}, {15 * 128}")
    A(f"s_add_u32 {t1}, {t1}, {t3}")
    A(f"v_mov_b32 {x_}, {t1}")
    A(f"v_mov_b32 {fd}, {t0}")
    A(f"v_cmp_eq_u32 vcc, 0, {y_}")
    A(f"v_cndmask_b32 {x_}, {x_}, {fd}, vcc")
    A(f"v_add_u32 {fa_}, {fa_}, {x_}")
    V.release(x_, y_)
    A(f"s_lshl_b32 {t2}, {t2}, 10")
    A(f"s_add_u32 {t6}, {t6}, {t2}")
    A(f"s_mul_i32 {t2}, {sJ}, {5 * 2048}")
    A(f"s_add_u32 {t5}, {t5}, {t2}")
    A(f"s_add_u32 {t6}, {t6}, {t2}")
    A(f"s_add_u32 {t6}, {t6}, {160 * 2048}")
    A(f"s_lshl_b32 {t7}, {sW4}, 10")
    A(f"s_lshl_b32 {t2}, {sW4}, 9")
    A(f"s_add_u32 {t5}, {t5}, {t2}")
    poll(c, [f"buffer_load_dword {fd}, {fa_}, {sWS}, 0 offen sc1"], lambda: A(f"v_cmp_ne_u32 vcc, {sT[0]}, {fd}"), backoff=OPT.get("xsleep", 0))
    V.release(fa_, fd)
    c.stamp("x_flag")
    for arr in range(10):
        A(f"s_add_u32 m0, {t7}, {L_K + KVS * arr}")
        kv_tag = A.tagged(f"buffer_load_dwordx4 {c.l16}, {sWS}, {t6} offen sc1 lds")
        if arr < 9:
            A(f"s_add_u32 {t6}, {t6}, {2048 if arr != 4 else 156 * 2048}")
    c.Q0, c.Q1 = [V.alloc(4, 4), V.alloc(4, 4)], [V.alloc(2), V.alloc(2)]
    A(f"s_add_u32 {t1}, {t5}, 4096")
    A(f"s_add_u32 {t2}, {t5}, 8192")
    for st in range(2):
        of = 256 * (1 - st)
        A(f"buffer_load_dwordx2 {c.Q0[st][0:2]}, {c.xa}, {sWS}, {t5} offen offset:{of} sc1")
        A(f"buffer_load_dwordx2 {c.Q0[st][2:4]}, {c.xa}, {sWS}, {t1} offen offset:{of} sc1")
        q_tag = A.tagged(f"buffer_load_dwordx2 {c.Q1[st]}, {c.xq1}, {sWS}, {t2} offen offset:{of} sc1")
    V.release(c.xa, c.xq1)
    oa = [V.alloc(1) for _ in range(3)]
    xt = V.alloc(10, 2)
    tokb, gq, wa = V.alloc(1), V.alloc(1), V.alloc(1)
    dd, t, u = V.alloc(4, 4), V.alloc(1), V.alloc(1)
    mo = V.alloc(1)
    A(f"s_mul_i32 {t2}, {sW4}, 40")
    A(f"s_mul_i32 {t3}, {sN}, 5")
    A(f"s_add_u32 {t2}, {t2}, {t3}")
    A(f"s_lshl_b32 {t2}, {t2}, 7")
    A(f"s_add_u32 {t4}, {t2}, {WS_MOD + 80 * 128}")
    A(f"v_min_u32 {t}, 19, {lane}")
    A(f"v_and_b32 {u}, 3, {t}")
    A(f"v_lshrrev_b32 {mo}, 2, {t}")
    A(f"v_lshlrev_b32 {mo}, 7, {mo}")
    A(f"v_lshl_add_u32 {mo}, {u}, 4, {mo}")
    A(f"buffer_load_dwordx4 {dd}, {mo}, {sWS}, {t4} offen sc1")
    A(f"v_and_b32 {t}, 15, {lane}")
    A(f"s_lshl_b32 {t0}, {sI}, 6")
    A(f"s_lshl_b32 {t1}, {sW4}, 4")
    A(f"s_add_u32 {t0}, {t0}, {t1}")
    A(f"v_add_u32 {tokb}, {t0}, {t}")
    A(f"v_mul_u32_u24 {u}, 0x500, {tokb}")
    A(f"v_lshrrev_b32 {gq}, 4, {lane}")
    A(f"s_mul_i32 {t1}, {sN}, 160")
    A(f"v_lshl_add_u32 {t}, {gq}, 3, {t1}")
    A(f"v_add_u32 {u}, {u}, {t}")
    A(f"s_mul_i32 {t1}, {sG}, {ACT}")
    for ct in range(5):
        A(f"buffer_load_dwordx2 {xt[2 * ct:2 * ct + 2]}, {u}, {sX}, {t1} offen offset:{32 * ct}")
    hi, x_ = V.alloc(1), V.alloc(1)
    A(f"v_lshrrev_b32 {hi}, 5, {lane}")
    A(f"s_mul_i32 {t0}, {sJ}, 5")
    A(f"v_bfe_u32 {t}, {lane}, 4, 1")
    A(f"v_mul_u32_u24 {t}, 0x5000, {t}")
    A(f"v_and_b32 {u}, 15, {lane}")
    A(f"v_lshl_add_u32 {t}, {u}, 4, {t}")
    for k in range(3):
        A(f"s_add_u32 {t1}, {t0}, {2 * k}")
        A(f"v_add_u32 {u}, {t1}, {hi}")
        A(f"v_lshrrev_b32 {oa[k]}, 2, {u}")
        A(f"v_lshl_add_u32 {oa[k]}, {oa[k]}, 9, {t}")
        A(f"v_and_b32 {x_}, 1, {u}")
        A(f"v_lshl_add_u32 {oa[k]}, {x_}, 8, {oa[k]}")
        A(f"v_bfe_u32 {x_}, {u}, 1, 1")
        A(f"v_lshl_add_u32 {oa[k]}, {x_}, 3, {oa[k]}")
    A(f"v_mov_b32 {u}, {OOB}")
    A(f"v_cndmask_b32_e64 {oa[2]}, {oa[2]}, {u}, {sHI}")
    wtile_addr(c, L_WO, 10 * 5120, wa, t, u)
    V.release(hi, x_, u)
    A(f"s_mul_i32 {t5}, {sG}, {ACT}")
    add_base(t5, WS_O, WS_A, t1)
    A(f"s_mul_i32 {t1}, {sW4}, 81920")
    A(f"s_add_u32 {t6}, {t1}, {t5}")
    A(f"s_add_u32 {t7}, {t6}, 40960")
    A.wait_vm(q_tag)
    A("s_barrier")
    c.stamp("x_kv")

    def store_o(st):
        for k in range(3):
            A(f"buffer_store_dwordx2 {c.op[st][2 * k:2 * k + 2]}, {oa[k]}, {sWS}, {(t7, t6)[st]} offen")
    c.store_o = store_o
    attention(c)
    c.stamp("a_end")
    signal(c, 1)
    V.release(oa)
    u = gq
    c.stamp("a_sig")
    again, have = lab("modagain"), lab("modhave")
    check_tags([dd[2:4]])()
    A.branch(f"s_cbranch_vccnz {again}")
    A.label(have)

    def cold_mod(dd=dd, mo=mo):
        A.label(again)
        poll(c, [f"buffer_load_dwordx4 {dd}, {mo}, {sWS}, {t4} offen sc1"], check_tags([dd[2:4]]), acquire=False)
        A.branch(f"s_branch {have}")
    c.cold.append(cold_mod)
    tm = V.alloc(1)
    A(f"s_cmp_eq_u32 {sW4}, 2")
    A(f"s_cselect_b32 {t3}, 1.0, 0")
    unpack(dd[2], dd[3], dd[1])
    A(f"v_and_b32 {dd[1]}, 0xffff0000, {dd[0]}")
    A(f"v_lshlrev_b32 {dd[0]}, 16, {dd[0]}")
    for i in range(4):
        A(f"v_add_f32 {dd[i]}, {t3}, {dd[i]}")
    round_pair(dd[0], dd[1], tm)
    round_pair(dd[2], dd[3], tm)
    A(f"s_mul_i32 {t2}, {sW4}, 320")
    A(f"v_min_u32 {mo}, 19, {lane}")
    A(f"v_lshl_add_u32 {mo}, {mo}, 4, {t2}")
    A(f"ds_write_b128 {mo}, {dd} offset:{L_MOD2F}")
    tile_streams((WS_O, WS_A), ACT, 20480, 10240, t6, t7)
    A(f"s_lshl_b32 {t1}, {sI}, 7")
    A(f"s_add_u32 {t2}, {t1}, 64")
    wait_edge(c, 1, t1, t2)
    A("s_waitcnt lgkmcnt(0)")
    V.release(dd, mo, tm)
    c.stamp("b_e2")
    acc = tile_gemm(c, 10, t6, t7, OPT["binit"], 10, lambda ks: (wa, ks * 5120), {0})
    c.stamp("b_loop")
    V.release(wa)
    mv = V.alloc(20, 4)
    ma = V.alloc(1)
    A(f"v_lshlrev_b32 {ma}, 4, {u}")
    for ct in range(5):
        A(f"ds_read_b128 {mv[4 * ct:4 * ct + 4]}, {ma} offset:{L_MOD2F + 64 * ct}")
    a = tile_reduce(c, acc, L_RED)
    c.stamp("z_red", "b")
    x1 = V.alloc(20, 2)
    c.x1p = V.alloc(10)
    tmp = V.alloc(1)
    for i in range(0, 20, 2):
        round_pair(a[i], a[i + 1], tmp)
        A(f"v_pk_mul_f32 {a[i:i + 2]}, {a[i:i + 2]}, {mv[i:i + 2]}")
        round_pair(a[i], a[i + 1], tmp)
        unpack(x1[i], x1[i + 1], xt[i // 2])
        A(f"v_pk_add_f32 {x1[i:i + 2]}, {x1[i:i + 2]}, {a[i:i + 2]}")
        A(f"v_cvt_pk_bf16_f32 {c.x1p[i // 2]}, {x1[i]}, {x1[i + 1]}")
        unpack(x1[i], x1[i + 1], c.x1p[i // 2])
    V.release(xt)
    c.stamp("z_x1", "b")
    gr = V.alloc(4, 4)
    A(f"v_add_f32 {gr[0]}, {x1[0]}, {x1[1]}")
    for i in range(2, 20):
        A(f"v_add_f32 {gr[0]}, {gr[0]}, {x1[i]}")
    xor16_add(gr[0], tmp)
    xor32_op("v_add_f32", gr[0], tmp)
    A(f"v_mul_f32 {gr[0]}, {hex(f32(1 / 80))}, {gr[0]}")
    for i in range(20):
        A(f"v_sub_f32 {a[i % 4]}, {x1[i]}, {gr[0]}")
        if i == 0:
            A(f"v_mul_f32 {gr[1]}, {a[0]}, {a[0]}")
        else:
            A(f"v_fmac_f32 {gr[1]}, {a[i % 4]}, {a[i % 4]}")
    xor16_add(gr[1], tmp)
    xor32_op("v_add_f32", gr[1], tmp)
    A(f"v_mov_b32 {gr[2]}, {sT[0]}")
    A(f"v_mov_b32 {gr[3]}, {sT[1]}")
    A(f"v_lshlrev_b32 {t}, 7, {tokb}")
    A(f"s_lshl_b32 {t0}, {sG}, 15")
    A(f"s_add_u32 {t0}, {t0}, {WS_STATS}")
    A(f"s_lshl_b32 {t1}, {sN}, 4")
    A(f"s_add_u32 {t1}, {t1}, {t0}")
    slow, done = lab("stslow"), lab("stdone")
    A("s_mov_b64 exec, 0xffff")
    A(f"s_cmp_lg_u32 {sMODE}, 0")
    A.branch(f"s_cbranch_scc1 {slow}", noflush=True)
    A(f"buffer_store_dwordx4 {gr}, {t}, {sWS}, {t1} offen")
    A.label(done)
    A("s_mov_b64 exec, -1")

    def cold_st(gr=gr, t=t, slow=slow, done=done):
        A.label(slow)
        A(f"buffer_store_dwordx4 {gr}, {t}, {sWS}, {t1} offen sc1")
        A.branch(f"s_branch {done}")
    c.cold.append(cold_st)
    c.stamp("z_st", "b")
    c.gbp = V.alloc(10)
    for ct in range(5):
        A(f"ds_read_b128 {mv[4 * ct:4 * ct + 4]}, {ma} offset:{L_MOD2F + 960 + 64 * ct}")
    for i in range(10):
        A(f"v_cvt_pk_bf16_f32 {c.gbp[i]}, {mv[2 * i]}, {mv[2 * i + 1]}")
    sh = a
    for ct in range(5):
        A(f"ds_read_b128 {mv[4 * ct:4 * ct + 4]}, {ma} offset:{L_MOD2F + 640 + 64 * ct}")
        A(f"ds_read_b128 {sh[4 * ct:4 * ct + 4]}, {ma} offset:{L_MOD2F + 320 + 64 * ct}")
    g0, g1 = V.alloc(4, 4), V.alloc(4, 4)
    sa_ = V.alloc(1)
    A(f"v_lshl_add_u32 {sa_}, {u}, 5, {t}")
    poll(c, [f"buffer_load_dwordx4 {g0}, {sa_}, {sWS}, {t0} offen sc1",
             f"buffer_load_dwordx4 {g1}, {sa_}, {sWS}, {t0} offen offset:16 sc1"], check_tags([g0[2:4], g1[2:4]]), acquire=False)
    bump(c, L_CNT + 12)
    c.stamp("b_stat")
    mean, var = gr[0], gr[1]
    A(f"v_add_f32 {mean}, {g0[0]}, {g1[0]}")
    xor16_add(mean, tmp)
    xor32_op("v_add_f32", mean, tmp)
    A(f"v_mul_f32 {mean}, 0x3e000000, {mean}")
    A(f"v_sub_f32 {g0[0]}, {g0[0]}, {mean}")
    A(f"v_sub_f32 {g1[0]}, {g1[0]}, {mean}")
    A(f"v_mul_f32 {g0[0]}, {g0[0]}, {g0[0]}")
    A(f"v_fmac_f32 {g0[0]}, {g1[0]}, {g1[0]}")
    A(f"v_add_f32 {var}, {g0[1]}, {g1[1]}")
    A(f"v_fmac_f32 {var}, {hex(f32(80.0))}, {g0[0]}")
    xor16_add(var, tmp)
    xor32_op("v_add_f32", var, tmp)
    A(f"v_mul_f32 {var}, {hex(f32(1 / 640))}, {var}")
    ln_scalars(mean, var, tmp)
    A(f"v_lshrrev_b32 {t}, 5, {tokb}")
    A(f"v_mul_u32_u24 {t}, 0xa000, {t}")
    A(f"v_and_b32 {sa_}, 31, {tokb}")
    A(f"v_lshl_add_u32 {t}, {sa_}, 4, {t}")
    A(f"v_lshrrev_b32 {sa_}, 1, {u}")
    A(f"v_lshl_add_u32 {t}, {sa_}, 9, {t}")
    A(f"v_and_b32 {sa_}, 1, {u}")
    A(f"v_lshl_add_u32 {t}, {sa_}, 3, {t}")
    A(f"s_mul_i32 {t5}, {sG}, {ACT}")
    add_base(t5, WS_H2, WS_A, t1)
    A(f"s_mul_i32 {t1}, {sN}, 5120")
    A(f"s_add_u32 {t1}, {t1}, {t5}")
    A(f"s_add_u32 {t2}, {t1}, 4096")
    c.stamp("z_sc", "b")
    hp = V.alloc(10, 2)
    for i in range(0, 20, 2):
        A(f"v_sub_f32 {x1[i]}, {x1[i]}, {mean}")
        A(f"v_sub_f32 {x1[i + 1]}, {x1[i + 1]}, {mean}")
        round_pair(x1[i], x1[i + 1], tmp)
        A(f"v_mul_f32 {x1[i]}, {x1[i]}, {var}")
        A(f"v_mul_f32 {x1[i + 1]}, {x1[i + 1]}, {var}")
        round_pair(x1[i], x1[i + 1], tmp)
        A(f"v_pk_mul_f32 {x1[i:i + 2]}, {x1[i:i + 2]}, {mv[i:i + 2]}")
        round_pair(x1[i], x1[i + 1], tmp)
        A(f"v_pk_add_f32 {x1[i:i + 2]}, {x1[i:i + 2]}, {sh[i:i + 2]}")
        A(f"v_cvt_pk_bf16_f32 {hp[i // 2]}, {x1[i]}, {x1[i + 1]}")
        if i % 4 == 2:
            ct = i // 4
            A(f"buffer_store_dwordx2 {hp[2 * ct:2 * ct + 2]}, {t}, {sWS}, {t1 if ct < 4 else t2} offen offset:{1024 * (ct % 4)}")
    c.stamp("z_h2", "b")
    signal(c, 2)
    c.stamp("z_sig", "b")
    V.release(x1, a, mv, ma, gr, g0, g1, sa_, hp, tokb, tmp)
    g0a, g1a = V.alloc(1), V.alloc(1)
    A(f"v_lshrrev_b32 {t}, 5, {lane}")
    A(f"v_bfe_u32 {u}, {lane}, 2, 2")
    A(f"v_lshl_add_u32 {t}, {t}, 3, {u}")
    A(f"v_mul_u32_u24 {t}, 0xc0, {t}")
    A(f"v_bfe_u32 {u}, {lane}, 4, 1")
    A(f"v_mul_u32_u24 {u}, 0x60, {u}")
    A(f"v_add_u32 {t}, {t}, {u}")
    A(f"v_and_b32 {u}, 3, {lane}")
    A(f"v_lshl_add_u32 {g0a}, {u}, 3, {t}")
    A(f"v_add_u32 {g0a}, {L_GU}, {g0a}")
    A(f"v_add_u32 {g1a}, {20 * 3072}, {g0a}")
    ha = V.alloc(1)
    A(f"v_bfe_u32 {t}, {lane}, 4, 1")
    A(f"v_mul_u32_u24 {t}, 0xc000, {t}")
    A(f"v_and_b32 {u}, 15, {lane}")
    A(f"v_lshl_add_u32 {t}, {u}, 4, {t}")
    A(f"v_lshrrev_b32 {u}, 5, {lane}")
    A(f"v_lshl_add_u32 {ha}, {u}, 8, {t}")
    sAc, sH = t6, t7
    A(f"s_mul_i32 {sAc}, {sW4}, 81920")
    A(f"s_add_u32 {sAc}, {sAc}, {t5}")
    A(f"s_mul_i32 {sH}, {sG}, {HBG}")
    A(f"s_mul_i32 {t0}, {sW4}, {4 * 49152}")
    A(f"s_add_u32 {sH}, {sH}, {t0}")
    A(f"s_mul_i32 {t0}, {sJ}, 1536")
    A(f"s_add_u32 {sH}, {sH}, {t0}")
    add_base(sH, WS_HB, WS_B, t0)
    A(f"s_lshl_b32 {t1}, {sW4}, 7")
    A(f"s_add_u32 {t2}, {t1}, 64")
    wait_edge(c, 2, t1, t2)
    V.release(t, u)
    c.stamp("c_e3")
    D = OPT["cd"]
    ring = [V.alloc(4, 4) for _ in range(D)]
    W = [V.alloc(12, 4), V.alloc(12, 4)]
    acc = [[V.alloc(16, 4) for _ in range(3)] for _ in range(2)]
    et = V.alloc(8)
    hq = [V.alloc(4, 4), V.alloc(4, 4)]

    def loadA(n):
        A(f"buffer_load_dwordx4 {ring[n % D]}, {c.l16}, {sWS}, {sAc} offen offset:{(n % 4) * 1024} sc1")
        if n % 4 == 3:
            A(f"s_add_u32 {sAc}, {sAc}, 4096")

    def readW(n, ct):
        s = n % 40
        for u_ in range(2):
            A(f"ds_read_b64_tr_b16 {W[n & 1][4 * ct + 2 * u_:4 * ct + 2 * u_ + 2]}, {g0a if s < 20 else g1a} "
              f"offset:{(s % 20) * 3072 + 768 * u_ + 32 * ct}")

    def glu(p):
        out = []
        for ct in range(3):
            g_, h_ = acc[p][ct], hq[ct & 1]
            for st in range(6):
                for r in range(8):
                    e = et[r]
                    if st == 0:
                        out.append(f"v_mul_f32 {e}, {hex(f32(-LOG2E))}, {g_[r]}")
                    elif st == 1:
                        out.append(f"v_exp_f32 {e}, {e}")
                    elif st == 2:
                        out.append(f"v_add_f32 {e}, 1.0, {e}")
                    elif st == 3:
                        out.append(f"v_rcp_f32 {e}, {e}")
                    elif st == 4:
                        out.append(f"v_mul_f32 {e}, {e}, {g_[8 + r]}")
                    elif r % 2 == 0:
                        out.append(f"v_cvt_pk_bf16_f32 {h_[r // 2]}, {et[r]}, {et[r + 1]}")
            out.append(f"buffer_store_dwordx4 {h_}, {ha}, {sWS}, {sH} offen offset:{512 * ct}{' sc1' if OPT['h_sc1'] else ''}")
        if p == 0:
            out.append(f"s_add_u32 {sH}, {sH}, {2 * 49152}")
        return out

    issued = OPT["cinit"]
    for n in range(issued):
        loadA(n)
    A("s_barrier")
    c.stamp("z_b10", "c")
    for ct in range(3):
        readW(0, ct)
    pend = []
    for n in range(80):
        p, s = divmod(n, 40)
        nxt = n + 1 < 80
        if n + 1 in (8, 16, 24, 32):
            A("s_barrier")
        if n == 41:
            pend = glu(0)
        if n in (10, 20, 30, 40, 50, 60, 70):
            c.stamp("z_n%d" % n, "c")
        for ct in range(3):
            A(f"v_mfma_f32_32x32x16_bf16 {acc[p][ct]}, {W[n & 1][4 * ct:4 * ct + 4]}, {ring[n % D]}, {'0' if s == 0 else acc[p][ct]}")
            if nxt:
                readW(n + 1, ct)
            for _ in range(2 if ct < 2 else 1):
                if pend:
                    A(pend.pop(0))
        for _ in range(2 if n % 3 == 0 else 1):
            if issued < min(80, n + 1 + D):
                loadA(issued)
                issued += 1
    assert not pend
    c.stamp("z_n80", "c")
    barrier()
    c.stamp("c_loop")
    for x in glu(1):
        A(x)
    c.stamp("z_glu", "d")
    signal(c, 3)
    c.stamp("z_sig", "d")
    V.release(ring, W, acc, et, hq, g0a, g1a, ha)
    wa, wb, t = V.alloc(1), V.alloc(1), V.alloc(1)
    wtile_addr(c, L_WD, 0, wa, wb, t)
    A(f"v_add_u32 {wb}, {12 * 5120}, {wa}")
    A(f"s_mul_i32 {t0}, {sG}, {HBG}")
    add_base(t0, WS_HB, WS_B, t1)
    A(f"s_and_b32 {t1}, {sI}, 1")
    A(f"s_mul_i32 {t1}, {t1}, 24576")
    A(f"s_add_u32 {t0}, {t0}, {t1}")
    d_rot(t5, t1)
    A(f"s_lshl_b32 {t1}, {t5}, 12")
    A(f"s_add_u32 {t0}, {t0}, {t1}")
    A(f"s_sub_u32 {t5}, 5, {t5}")
    A(f"s_lshl_b32 {t1}, {sI}, 2")
    A(f"s_add_u32 {t2}, {t1}, {sW4}")
    A(f"s_mul_i32 {t6}, {t2}, 49152")
    A(f"s_add_u32 {t6}, {t6}, {t0}")
    A(f"s_xor_b32 {t2}, {t2}, 4")
    A(f"s_mul_i32 {t7}, {t2}, 49152")
    A(f"s_add_u32 {t7}, {t7}, {t0}")
    fd = V.alloc(1)
    A(f"s_and_b32 {t1}, {sI}, 2")
    A(f"s_lshl_b32 {t1}, {t1}, 7")
    A(f"s_lshl_b32 {t0}, {sG}, 12")
    A(f"s_add_u32 {t0}, {t0}, {t1}")
    A(f"s_add_u32 {t0}, {t0}, {WS_FLAG + 512 * 3}")
    A(f"v_lshlrev_b32 {t}, 2, {lane}")
    poll(c, [f"buffer_load_dword {fd}, {t}, {sWS}, {t0} offen sc1"], lambda: A(f"v_cmp_ne_u32 vcc, {sT[0]}, {fd}"))
    V.release(t, fd)
    c.stamp("d_e4")

    def d_step(st):
        A(f"s_cmp_eq_u32 {t5}, {st}")
        A(f"s_cselect_b32 {t0}, -5, 1")
        A(f"s_lshl_b32 {t0}, {t0}, 12")
        return t0
    acc = tile_gemm(c, 24, t6, t7, OPT["dinit"], OPT["dd"], lambda ks: (wa if ks < 12 else wb, (ks % 12) * 5120), {0, 8, 16},
                    d_step, drain=False)
    V.release(wa, wb)
    c.stamp("z_k24", "d")
    pp, pa = V.alloc(12, 4), V.alloc(1)
    A(f"s_mul_i32 {t4}, {sG}, {ACT}")
    add_base(t4, WS_RS, WS_A, t1)
    A(f"s_and_b32 {t1}, {sI}, 2")
    A(f"s_mul_i32 {t1}, {t1}, 81920")
    A(f"s_add_u32 {t4}, {t4}, {t1}")
    A(f"s_mul_i32 {t1}, {sW4}, 2560")
    A(f"s_add_u32 {t4}, {t4}, {t1}")
    A(f"s_and_b32 {t1}, {sJ}, 15")
    A(f"s_xor_b32 {t2}, {t1}, 8")
    A(f"s_mul_i32 {t1}, {t1}, 10240")
    A(f"s_mul_i32 {t2}, {t2}, 10240")
    A(f"s_add_u32 {t3}, {t4}, {t1}")
    A(f"s_add_u32 {t4}, {t4}, {t2}")
    A(f"v_lshlrev_b32 {pa}, 3, {lane}")
    for i in range(10):
        A(f"v_cvt_pk_bf16_f32 {pp[i]}, {acc[1][2 * i]}, {acc[1][2 * i + 1]}")
        if i in (3, 7):
            A(f"buffer_store_dwordx4 {pp[i - 3:i + 1]}, {c.l16}, {sWS}, {t3} offen offset:{256 * (i - 3)}")
    A(f"buffer_store_dwordx2 {pp[8:10]}, {pa}, {sWS}, {t3} offen offset:2048")
    signal(c, 4)
    f, tmp = V.alloc(2), V.alloc(1)
    od = V.alloc(12, 4)
    lw, lr, go = V.alloc(1), V.alloc(1), V.alloc(3)
    A(f"s_mul_i32 {t2}, {sW4}, 2560")
    A(f"s_add_u32 {t2}, {t2}, {L_OUT}")
    A(f"v_and_b32 {f[0]}, 15, {lane}")
    A(f"v_mul_u32_u24 {f[0]}, 0xa0, {f[0]}")
    A(f"v_lshrrev_b32 {f[1]}, 4, {lane}")
    A(f"v_lshl_add_u32 {f[0]}, {f[1]}, 3, {f[0]}")
    A(f"v_add_u32 {lw}, {t2}, {f[0]}")
    A(f"v_add_u32 {lr}, {t2}, {c.l16}")
    A(f"s_lshl_b32 {t0}, {sI}, 6")
    A(f"s_lshl_b32 {t1}, {sW4}, 4")
    A(f"s_add_u32 {t0}, {t0}, {t1}")
    A(f"s_mul_i32 {t0}, {t0}, 1280")
    A(f"s_mul_i32 {t1}, {sN}, 160")
    A(f"s_add_u32 {t0}, {t0}, {t1}")
    A(f"s_mul_i32 {t1}, {sG}, {ACT}")
    A(f"s_add_u32 {t1}, {t1}, {t0}")
    for k in range(3):
        A(f"v_add_u32 {f[0]}, {64 * k}, {lane}")
        A(f"v_mul_u32_u24 {f[1]}, 0x199a, {f[0]}")
        A(f"v_lshrrev_b32 {f[1]}, 16, {f[1]}")
        A(f"v_mul_u32_u24 {f[1]}, 0x460, {f[1]}")
        A(f"v_lshl_add_u32 {go[k]}, {f[0]}, 4, {f[1]}")
    A(f"s_xor_b32 {t2}, {sJ}, 8")
    A(f"s_lshl_b32 {t2}, {t2}, 4")
    A(f"s_lshl_b32 {t3}, {sW4}, 2")
    A(f"s_add_u32 {t2}, {t2}, {t3}")
    A(f"s_lshl_b32 {t3}, {sG}, 12")
    A(f"s_add_u32 {t2}, {t2}, {t3}")
    A(f"s_add_u32 {t2}, {t2}, {WS_FLAG + 512 * 4}")
    A(f"v_mov_b32 {f[0]}, 0")
    poll(c, [f"buffer_load_dword {f[1]}, {f[0]}, {sWS}, {t2} offen sc1"], lambda: A(f"v_cmp_ne_u32 vcc, {sT[0]}, {f[1]}"))
    qq = acc[1]
    A(f"buffer_load_dwordx4 {qq[0:4]}, {c.l16}, {sWS}, {t4} offen sc1")
    A(f"buffer_load_dwordx4 {qq[4:8]}, {c.l16}, {sWS}, {t4} offen offset:1024 sc1")
    A(f"buffer_load_dwordx2 {qq[8:10]}, {pa}, {sWS}, {t4} offen offset:2048 sc1")
    a = acc[0]
    c.stamp("z_red", "d")
    for i in range(0, 20, 2):
        unpack(f[0], f[1], qq[i // 2])
        A(f"v_pk_add_f32 {a[i:i + 2]}, {a[i:i + 2]}, {f}")
        round_pair(a[i], a[i + 1], tmp)
        unpack(f[0], f[1], c.gbp[i // 2])
        A(f"v_pk_mul_f32 {a[i:i + 2]}, {a[i:i + 2]}, {f}")
        if "eps" in OPT:
            for k_ in range(2):
                A(f"v_mul_f32 {a[i + k_]}, {hex(f32(1 + OPT['eps'] / 1000))}, {a[i + k_]}")
        round_pair(a[i], a[i + 1], tmp)
        unpack(f[0], f[1], c.x1p[i // 2])
        A(f"v_pk_add_f32 {a[i:i + 2]}, {a[i:i + 2]}, {f}")
        A(f"v_cvt_pk_bf16_f32 {od[i // 2]}, {a[i]}, {a[i + 1]}")
        if i % 4 == 2:
            ct = i // 4
            A(f"ds_write_b64 {lw}, {od[2 * ct:2 * ct + 2]} offset:{32 * ct}")
    for k in range(3):
        A(f"ds_read_b128 {a[4 * k:4 * k + 4]}, {lr} offset:{1024 * k}")
    for k in range(3):
        if k == 2:
            A("s_mov_b32 exec_hi, 0")
        A(f"buffer_store_dwordx4 {a[4 * k:4 * k + 4]}, {go[k]}, {sOUT}, {t1} offen{' sc1' if OPT['out_sc1'] else ''}")
    A("s_mov_b32 exec_hi, -1")
    c.stamp("z_out", "d")
    prof_dump(c, 0)
    A("s_endpgm")
    for f_ in c.cold:
        f_()
    return V.high


def helper_role(c0):
    c = Ctx(c0.V.clone())
    c.__dict__.update({k: v for k, v in c0.__dict__.items() if k not in ("V", "cold")})
    V = c.V
    lane = c.lane
    A.label("L_helper")
    A.restore("split")
    t, u = V.alloc(1), c.dummy
    z = V.alloc(4, 4)
    for i in range(4):
        A(f"v_mov_b32 {z[i]}, 0")
    A(f"ds_write_b128 {z[0]}, {z} offset:{L_CNT}")
    late_setup()
    qkv_role()
    wq, x_ = V.alloc(1), V.alloc(1)
    A(f"v_lshrrev_b32 {t}, 4, {lane}")
    A(f"v_lshlrev_b32 {x_}, 2, {t}")
    A(f"v_and_b32 {wq}, 15, {lane}")
    A(f"v_xor_b32 {wq}, {wq}, {x_}")
    A(f"v_lshlrev_b32 {wq}, 4, {wq}")
    A(f"v_mul_u32_u24 {t}, 0xf00, {t}")
    A(f"s_lshl_b32 {t0}, {sCB}, 8")
    A(f"s_mul_i32 {t1}, {sW4}, {4 * 3840}")
    A(f"s_add_u32 {t0}, {t0}, {t1}")
    A(f"v_add3_u32 {wq}, {wq}, {t}, {t0}")
    A(f"s_mul_i32 {t6}, {sRH}, {20 * 61440}")
    A(f"s_mul_i32 {t5}, {sRH}, {40 * 61440}")
    A(f"s_sub_u32 {t5}, 61440, {t5}")
    A(f"s_lshl_b32 {t7}, {sW4}, 10")
    wtags = []

    def pace(win):
        if win:
            A(f"s_waitcnt vmcnt({win - 1})")

    def wq_dma(hi, win):
        while len(wtags) < hi:
            p = len(wtags)
            pace(win)
            A(f"s_add_u32 m0, {t7}, {L_WQ + 4096 * (p if p < 37 else p - 37)}")
            wtags.append(A.tagged(f"buffer_load_dwordx4 {wq}, {sWQ}, {t6} offen lds"))
            if p < 39:
                A(f"s_add_u32 {t6}, {t6}, {t5 if p == 19 else 61440}")
    A("s_waitcnt lgkmcnt(0)")
    wq_dma(OPT["n0"], 0)
    c.stamp("z_p0", "s")
    A(f"s_load_dword {sT[0]}, {sWS[0:2]}, {WS_E}")
    srd_words((sWS,))
    tag_setup()
    A(f"s_cmp_eq_u32 {sW4}, 0")
    A(f"s_cselect_b32 {t4}, 0, {OOB}")
    A(f"s_add_u32 {t4}, {t4}, {WS_CENSUS}")
    A(f"s_lshl_b32 {t1}, {sG}, 5")
    A(f"s_add_u32 {t1}, {t1}, {sJ}")
    A(f"s_lshl_b32 {t1}, {t1}, 4")
    A(f"s_add_u32 {t1}, {t1}, {t4}")
    A(f"s_xor_b32 {t2}, {sT[1]}, {sXCC}")
    A(f"v_mov_b32 {z[2]}, {sT[0]}")
    A(f"v_mov_b32 {z[3]}, {t2}")
    A("s_mov_b64 exec, 1")
    A(f"buffer_store_dwordx4 {z}, {z[0]}, {sWS}, {t1} offen sc1")
    A("s_mov_b64 exec, -1")
    A("s_nop 1")
    V.release(z)
    A(f"s_lshl_b32 {t3}, {sJ}, 2")
    A(f"s_add_u32 {t3}, {t3}, {sW4}")

    def share(dst, per_group, per_wave, base, idx=t3):
        A(f"s_mul_i32 {t1}, {sG}, {per_group}")
        A(f"s_mul_i32 {t2}, {idx}, {per_wave}")
        A(f"s_add_u32 {t1}, {t1}, {t2}")
        A(f"s_add_u32 {t1}, {t1}, {base}")
        A(f"s_add_u32 {dst[0]}, {sWS[0]}, {t1}")
        A(f"s_addc_u32 {dst[1]}, {sWS[1]}, 0")
    wd_pattern(c)
    gs, gl = V.alloc(3), V.alloc(3)
    A(f"s_mul_i32 {t0}, {sJ}, 96")
    A(f"s_lshr_b32 {t1}, {sW4}, 1")
    A(f"s_mul_i32 {t2}, {t1}, {32 * 3072}")
    A(f"s_add_u32 {t0}, {t0}, {t2}")
    A(f"s_mul_i32 {t1}, {t1}, {32 * 192}")
    A(f"s_and_b32 {t2}, {sW4}, 1")
    A(f"s_mul_i32 {t2}, {t2}, 96")
    A(f"s_add_u32 {t1}, {t1}, {t2}")
    A(f"s_add_u32 {t1}, {t1}, {L_GU}")
    for i in range(3):
        A(f"v_add_u32 {t}, {64 * i}, {lane}")
        A(f"v_mul_u32_u24 {x_}, 0x2aab, {t}")
        A(f"v_lshrrev_b32 {x_}, 16, {x_}")
        A(f"v_lshlrev_b32 {t}, 4, {t}")
        A(f"v_mul_u32_u24 {gs[i]}, 0xba0, {x_}")
        A(f"v_add3_u32 {gs[i]}, {gs[i]}, {t}, {t0}")
        A(f"v_mul_u32_u24 {gl[i]}, 0x60, {x_}")
        A(f"v_add3_u32 {gl[i]}, {gl[i]}, {t}, {t1}")
    V.release(x_)
    A(f"s_bitcmp1_b32 {sW4}, 0")
    A(f"s_cselect_b32 {sWG[0]}, {sWU[0]}, {sWG[0]}")
    A(f"s_cselect_b32 {sWG[1]}, {sWU[1]}, {sWG[1]}")
    sIDX, sIDG = S(49), S(50)
    A(f"s_mov_b32 {sIDX}, {t3}")
    A(f"s_lshr_b32 {sIDG}, {t3}, 2")
    A(f"s_lshl_b32 {sIDG}, {sIDG}, 1")
    A(f"s_lshr_b32 {t0}, {sW4}, 1")
    A(f"s_add_u32 {sIDG}, {sIDG}, {t0}")
    wd_order = [24 * kh + 12 * r + p for p in range(12) for kh in range(2) for r in range(2)]
    todo = [(sWO, sIDX, 320, 40960 * b + 64 * i) for b in range(20) for i in range(5)]
    todo += [(sWG, sIDG, 768, 49152 * b + 64 * i) for b in range(40) for i in range(12)]
    n_gu_end = len(todo)
    todo += [(sWD, sIDX, 320, 40960 * b + 64 * i) for b in wd_order for i in range(5)]
    cur = dict(pos=0, key=None)

    def touch_at(srd, idx, share_b, off):
        key = (srd.b, share_b, off >> 19)
        if cur["key"] != key:
            A(f"s_mul_i32 {t0}, {idx}, {share_b}")
            if off >> 19:
                A(f"s_add_u32 {t0}, {t0}, {off >> 19 << 19}")
            A(f"s_add_u32 {p0[0]}, {srd[0]}, {t0}")
            A(f"s_addc_u32 {p0[1]}, {srd[1]}, 0")
            cur["key"] = key
        A.raw(f"s_load_dword {sDUM}, {p0}, {off & 0x7ffff}")

    def warm(n, limit=None):
        if OPT["nobulk"]:
            return
        while n > 0 and cur["pos"] < (limit or len(todo)):
            touch_at(*todo[cur["pos"]])
            cur["pos"] += 1
            n -= 1
    c.stamp("z_set", "s")
    A("s_barrier")
    wq_dma(OPT["n1"], 0)
    c.stamp("s_p1")
    if OPT["overlay"]:
        share(p1, ACT, 2560, WS_A)
        l2_touch(p1, 0, 40)
        share(p1, 32768, 256, WS_STATS)
        l2_touch(p1, 0, 4)
        A(f"s_and_b32 {t4}, {t3}, 63")
        share(p1, 4096, 64, WS_FLAG, t4)
        l2_touch(p1, 0, 1)
        share(sHB, HBG, 6144, WS_B)

    if OPT["tgap"] and OPT["n1"] < 20 and not OPT["nobulk"]:
        for b in range(OPT["n1"] // 2, 10):
            for h in range(2):
                for i in range(15):
                    touch_at(sWQ, sIDX, 960, 122880 * (b + 10 * h) + 64 * i)
    c.stamp("s_gap")
    lds_spin(c, L_CNT + 8, 4)
    c.stamp("s_spin")
    gu = V.alloc(120, 4)
    ngu = [0]
    sGU = S(48)
    A(f"s_mov_b32 {sGU}, 0")

    def gu_load(n, win):
        for _ in range(n):
            if ngu[0] < 30:
                k = ngu[0]
                pace(win)
                A(f"buffer_load_dwordx4 {gu[4 * k:4 * k + 4]}, {gs[k % 3]}, {sWG}, {sGU} offen")
                if k % 3 == 2 and k < 29:
                    A(f"s_add_u32 {sGU}, {sGU}, {64 * 3072}")
                ngu[0] += 1
    for k in range(5):
        wq_dma(8 * k + 8, OPT["wq_win"])
        A.wait_vm(wtags[8 * k + 7])
        A("s_barrier")
        c.stamp("z_q%d" % k, "q")
        if k < 4:
            wq_dma(min(8 * k + 16, 37 if k == 0 else 40), OPT["wq_win"])
            warm(OPT["tq"])
    V.release(wq)
    c.stamp("q_w")
    gu_load(OPT["gu_q"], OPT["gu_win"])
    warm(OPT["tq5"])
    one = V.alloc(4, 4)
    A(f"v_mov_b32 {one[0]}, 0x3f80")
    A(f"v_mov_b32 {one[1]}, 0")
    A(f"v_mov_b32 {one[2]}, 0x3f80")
    A(f"v_mov_b32 {one[3]}, 0")
    A(f"v_add_u32 {t}, {t7}, {c.l16}")
    A("s_barrier")
    c.stamp("q_bq")
    A(f"ds_write_b128 {t}, {one} offset:{L_K + 10 * KVS}")
    A("s_waitcnt lgkmcnt(0)")
    V.release(one)
    gu_load(OPT.get("gu_x", 0), OPT["gu_win"])
    warm(OPT["tx"], n_gu_end)
    c.stamp("x_touch")
    A("s_barrier")
    c.stamp("x_kv")
    for q in range(5):
        A(f"s_add_u32 {t2}, {sI}, {q}")
        A(f"s_cmp_ge_u32 {t2}, 5")
        A(f"s_cselect_b32 {t3}, 5, 0")
        A(f"s_sub_u32 {t2}, {t2}, {t3}")
        A(f"s_lshl_b32 {t2}, {t2}, 2")
        A(f"s_add_u32 {t2}, {t2}, {sW4}")
        A(f"s_mul_i32 {t3}, {t2}, 40960")
        A(f"s_mul_i32 {t2}, {t2}, 5120")
        A(f"s_add_u32 {t2}, {t2}, {L_WO}")
        wo_tag = dma_slab(c, sWO, t3, t2, OPT["wo_win"])
    c.stamp("a_wo")

    def mixed(nload, ntouch):
        per = ntouch // max(nload, 1)
        for k in range(nload):
            warm(per, n_gu_end)
            gu_load(1, OPT["gu_win"])
        warm(ntouch - per * nload, n_gu_end)
    mixed(OPT["gu_a"], OPT["ta"])
    A.wait_vm(wo_tag)
    c.stamp("a_gu")
    A("s_barrier")
    c.stamp("b_b8")
    mixed(OPT["gu_b"], OPT["tb"])
    if OPT["overlay"] and not OPT["h_sc1"]:
        l2_touch(sHB, 0, OPT.get("nb1", 40))
    A("s_barrier")
    c.stamp("b_b9")
    gu_load(OPT["gu_c"], OPT["gu_win"])
    written = [0]

    def gu_write(hi):
        while written[0] < hi:
            k = written[0]
            q, i = divmod(k, 3)
            if q == 5:
                A(f"v_add_u32 {gl[i]}, {5 * 64 * 192}, {gl[i]}")
            A(f"ds_write_b128 {gl[i]}, {gu[4 * k:4 * k + 4]} offset:{(q % 5) * 64 * 192}")
            written[0] += 1
    gu_write(max(0, ngu[0] - OPT["gu_c"]))
    warm(OPT["tc"], n_gu_end)
    lds_spin(c, L_CNT + 12, 4)
    mixed(OPT["gu_d"], OPT["td"])
    for k in range(5):
        gu_load(6 * k + 6 - ngu[0], OPT["gu_win"])
        gu_write(6 * k + 6)
        barrier()
        if k in (0, 4):
            c.stamp("c_g%d" % k)
        warm(OPT["tg"], n_gu_end)
        gu_load(6 * k + 12 - ngu[0], OPT["gu_win"])
    V.release(gs, gu, gl)
    cur["pos"] = n_gu_end
    if OPT["overlay"] and not OPT["h_sc1"]:
        l2_touch(sHB, OPT.get("nb1", 40), 96 - OPT.get("nb1", 40))
    nreg = OPT["nreg"]
    wd = V.alloc(20 * nreg, 4) if nreg else None
    wl = V.alloc(1)
    A(f"s_and_b32 {t4}, {sI}, 1")
    d_rot(t5, t1)
    A(f"s_mul_i32 {t6}, {t4}, 24")
    A(f"s_lshl_b32 {t1}, {t5}, 2")
    A(f"s_add_u32 {t6}, {t6}, {t1}")
    A(f"s_add_u32 {t6}, {t6}, {sW4}")
    A(f"s_mul_i32 {t6}, {t6}, 40960")
    A(f"s_sub_u32 {t5}, 5, {t5}")
    A(f"s_mul_i32 {t7}, {sW4}, 5120")
    A(f"s_add_u32 {t7}, {t7}, {L_WD}")
    A(f"v_add_u32 {wl}, {t7}, {c.l16}")
    dt = {}
    warm(OPT["tw"])
    c.stamp("z_touch", "c")

    def wd_next(q):
        if q < 5:
            A(f"s_cmp_eq_u32 {t5}, {q}")
            A(f"s_cselect_b32 {t2}, -5, 1")
            A(f"s_mul_i32 {t2}, {t2}, {4 * 40960}")
            A(f"s_add_u32 {t6}, {t6}, {t2}")
    dt[0] = dma_slab(c, sWD, t6, t7, OPT["wd_win"])
    wd_next(0)
    for q in range(1, nreg + 1):
        for i in range(5):
            pace(OPT["wd_win"])
            A(f"buffer_load_dwordx4 {wd[20 * q - 20 + 4 * i:20 * q - 16 + 4 * i]}, {c.pat[i]}, {sWD}, {t6} offen")
        wd_next(q)
    c.stamp("c_wd")
    A("s_barrier")
    c.stamp("c_b12")
    for q in range(nreg + 1, 6):
        A(f"s_add_u32 {t1}, {t7}, {4 * 5120 * q}")
        dt[q] = dma_slab(c, sWD, t6, t1, OPT["wd_win"])
        wd_next(q)
    c.stamp("z_dma", "d")
    for st in range(3):
        for q in (2 * st, 2 * st + 1):
            if q in dt:
                A.wait_vm(dt[q])
            else:
                if q == 3:
                    pass
                for i in range(5):
                    of = 4 * 5120 * q + 1024 * i
                    if of >= 65536 and not getattr(c, "wl_hi", False):
                        A(f"v_add_u32 {wl}, 61440, {wl}")
                        c.wl_hi = True
                    A(f"ds_write_b128 {wl}, {wd[20 * q - 20 + 4 * i:20 * q - 16 + 4 * i]} offset:{of - (61440 if getattr(c, 'wl_hi', False) else 0)}")
        barrier()
        if st == 0:
            c.stamp("d_d0")
    if OPT["clean"] & 2:
        skip = lab("noclean")
        A(f"s_lshl_b32 {t0}, {sJ}, 2")
        A(f"s_add_u32 {t0}, {t0}, {sW4}")
        A(f"s_cmp_lg_u32 {t0}, 3")
        A.branch(f"s_cbranch_scc1 {skip}")
        A("buffer_wbl2 sc1")
        A.label(skip)
    skip = lab("noepoch")
    A(f"s_lshl_b32 {t0}, s2, 2")
    A(f"s_add_u32 {t0}, {t0}, {sW4}")
    A(f"s_cmp_lg_u32 {t0}, 0")
    A.branch(f"s_cbranch_scc1 {skip}")
    e = V.alloc(4)
    A(f"s_mov_b32 {t1}, {WS_CENSUS + 8}")

    def chk():
        A(f"v_cmp_ne_u32 vcc, {sT[0]}, {e[0]}")
        for i in range(1, 4):
            A(f"v_cmp_ne_u32 {p0}, {sT[0]}, {e[i]}")
            A(f"s_or_b64 vcc, vcc, {p0}")
    poll(c, [f"buffer_load_dword {e[i]}, {c.l16}, {sWS}, {t1} offen offset:{1024 * i} sc1" for i in range(4)], chk, acquire=False)
    A(f"v_mov_b32 {t}, 0")
    A(f"v_mov_b32 {u}, {sT[0]}")
    A("s_mov_b64 exec, 1")
    A(f"buffer_store_dword {u}, {t}, {sWS}, 0 offen offset:{WS_E} sc1")
    A("s_mov_b64 exec, -1")
    A.label(skip)
    prof_dump(c, 1)
    A("s_endpgm")
    for f_ in c.cold:
        f_()
    return V.high


def main():
    c = prologue()
    h1 = compute_role(c)
    h2 = helper_role(c)
    A.label("L_end")
    A("s_endpgm")
    body = finish(A)
    ref = open(os.path.join(os.path.dirname(os.path.abspath(__file__)), "..", "cdna_kernels", NAME + ".s.ref")).read().split("\n")
    head = [l for l in ref if l.startswith(";") and "@launch" not in l and "Override launch" not in l and "grid=ceil" not in l]
    head += ["; stamps " + " ".join(n) for n in NAMES]
    txt = "\n".join(head) + f"\n; @launch grid=(256,1,1) block=(512,1,1) lds={LDS_BYTES}\n"
    txt += f'.amdgcn_target "amdgcn-amd-amdhsa--gfx950"\n.text\n.globl {NAME}_kernel\n.p2align 8\n.type {NAME}_kernel,@function\n{NAME}_kernel:\n'
    txt += body + "\n"
    txt += f'''.section .rodata,"a"
.p2align 6
.amdhsa_kernel {NAME}_kernel
  .amdhsa_next_free_vgpr 256
  .amdhsa_next_free_sgpr 102
  .amdhsa_accum_offset 256
  .amdhsa_group_segment_fixed_size 0
  .amdhsa_kernarg_size 96
  .amdhsa_user_sgpr_count 2
  .amdhsa_user_sgpr_kernarg_segment_ptr 1
  .amdhsa_system_sgpr_workgroup_id_x 1
.end_amdhsa_kernel
'''
    open(sys.argv[1], "w").write(txt)
    print("vgpr high water: compute %d helper %d; %d lines" % (h1, h2, txt.count("\n")))


main()
```

```python
import sys, os, struct
sys.path.insert(0, os.path.dirname(os.path.abspath(__file__)))
from asmlib import *

NAME = "adaLN_cond__sliding_block__glu_gated_glu__prompt"
OPT = dict(prof=0, out_sc1=0, clean=0, force_slow=0, force_fb=0, sp=0, nobulk=0, nt0=0, mim=0, overlay=1, h_sc1=1,
           n0=0, n1=16, wq_win=0, qinit=3, qd=6, cinit=4, cd=12, cramp=2, dinit=3, dd=8, binit=3, bsync=1,
           ta1=0, tgap=0, NP=12, tq=0, tq5=0, tx=0, ta=0, tb=0, tc=0, td=0, tg=0, tw=0, drot=0, nreg=2, wd_win=0, wo_win=0, gu_win=0, gc_win=0, gu_q=0, gu_a=9, gu_b=9, gu_c=0, gu_d=0)
ZOOM = ""
for a_ in sys.argv[2:]:
    k_, v_ = a_.split("=")
    if k_ == "zoom":
        ZOOM = v_
    else:
        OPT[k_] = int(v_)

WS_E, WS_MOD, WS_CENSUS = 0, 0x1000, 0x9000
WS_FLAG, WS_XFLAG, WS_STATS, WS_PROF = 0x10000, 0x18000, 0x20000, 0x60000
WS_H1, WS_O, WS_H2, WS_HB, WS_A, WS_B, WS_QKV, WS_RS, WS_END = 0x100000, 0x380000, 0x600000, 0x880000, 0xE80000, 0x1100000, 0x1700000, 0x1F00000, 0x2180000
ACT, HBG, QKVG = 327680, 786432, 983040
L_MOD2F, L_CNT, L_PART, L_MODEF, L_MOD1F = 0, 1280, 1536, 1792, 2048
L_WQ = 12288
KVS = 4160
L_K, L_V = 12288, 12288 + 5 * KVS
L_WO = 58112
L_RED = 2048 + 11 * 3072
L_G, L_U = 2048, 2048 + 26 * 3072 + 32
L_WD = 2048
L_OUT = L_WD + 24 * 5120
LDS_BYTES = 163840
BIG = 0xF1800000
OOB = 0x7F000000
POLL_MAX = 1 << 17
G_AT = (8, 16, 22, 27, 32)


def f32(x):
    return struct.unpack("<I", struct.pack("<f", x))[0]


LOG2E = 1.4426950408889634
QSCALE = f32(20 ** -0.5 * LOG2E)
S = lambda b, n=1: Reg("s", b, n)
sX, sOUT, sWS, sWO, sWQ, sWG, sWU, sWD, sCC, sWM = [S(4 + 4 * i, 4) for i in range(10)]
sPOLL = S(20, 32)
sT = S(52, 2)
sG, sJ, sW, sW4, sXCC, sMODE = [S(54 + i) for i in range(6)]
t0, t1, t2, t3, t4, t5, t6, t7 = [S(60 + i) for i in range(8)]
p0, p1 = S(68, 2), S(70, 2)
sHI = S(72, 2)
sCNT, sHOOK, sPASS, sI, sN = [S(74 + i) for i in range(5)]
sDUM = S(79)
sRH, sCB = S(46), S(47)
sHB = S(42, 2)
sSTAMP = S(80, 2)
PROF0 = 82

A = Asm()
nlab = [0]
NAMES = []


def lab(p):
    nlab[0] += 1
    return "L_%s_%d" % (p, nlab[0])


class Ctx:
    def __init__(self, V):
        self.V, self.nstamp, self.cold, self.names = V, 0, [], []

    def stamp(self, name="", zoom=""):
        if not OPT["prof"]:
            return
        if zoom and zoom not in ZOOM:
            return
        if not zoom and ZOOM and name[:1] not in ZOOM and name not in ("start", "end", "s_e1", "q_loop", "x_kv", "a_sig", "b_stat", "c_loop"):
            return
        assert self.nstamp < 20, name
        if self.nstamp:
            A(f"s_mov_b32 {S(PROF0 + self.nstamp - 1)}, {sSTAMP[0]}")
        A.raw(f"{'s_memtime' if OPT['prof'] == 2 else 's_memrealtime'} {sSTAMP}")
        self.names = self.names[:self.nstamp] + [name] + self.names[self.nstamp + 1:]
        self.nstamp += 1


def unpack(lo, hi, src):
    A(f"v_lshlrev_b32 {lo}, 16, {src}")
    A(f"v_and_b32 {hi}, 0xffff0000, {src}")


def round_pair(a, b, tmp):
    A(f"v_cvt_pk_bf16_f32 {tmp}, {a}, {b}")
    unpack(a, b, tmp)


def round1(a):
    A(f"v_cvt_pk_bf16_f32 {a}, {a}, {a}")
    A(f"v_and_b32 {a}, 0xffff0000, {a}")


def sum16(x):
    for m in ("quad_perm:[1,0,3,2]", "quad_perm:[2,3,0,1]", "row_half_mirror", "row_mirror"):
        A(f"v_add_f32_dpp {x}, {x}, {x} {m} row_mask:0xf bank_mask:0xf")


def xor16_add(x, tmp):
    A(f"v_mov_b32 {tmp}, {x}")
    A(f"v_permlane16_swap_b32 {tmp}, {x}")
    A(f"v_add_f32 {x}, {x}, {tmp}")


def xor32_op(op, x, tmp):
    A(f"v_mov_b32 {tmp}, {x}")
    A(f"v_permlane32_swap_b32 {tmp}, {x}")
    A(f"{op} {x}, {x}, {tmp}")


def poll(c, loads, check, acquire=True, backoff=0):
    top, done = lab("poll"), lab("pdone")
    A(f"s_mov_b32 {sCNT}, 0")
    A.label(top)
    if backoff:
        A(f"s_sleep {backoff}")
    for l in loads:
        A(l)
    A(f"s_add_u32 {sCNT}, {sCNT}, 1")
    A(f"s_cmp_gt_u32 {sCNT}, {POLL_MAX}")
    A.branch(f"s_cbranch_scc1 {done}", noflush=True)
    A("s_waitcnt vmcnt(0)")
    check()
    A.branch(f"s_cbranch_vccnz {top}")
    A.label(done)
    A("s_waitcnt vmcnt(0)")
    if acquire:
        acquire_if_slow()


def check_tags(regs):
    def f():
        A(f"v_cmp_ne_u64 vcc, {sT}, {regs[0]}")
        for r in regs[1:]:
            A(f"v_cmp_ne_u64 {p0}, {sT}, {r}")
            A(f"s_or_b64 vcc, vcc, {p0}")
    return f


BY_WAVE = {0: False, 1: True, 2: False, 3: False, 4: False}


def scalar_edge(edge):
    return OPT["sp"] >> edge & 1


def signal(c, edge, drain=True):
    V = c.V
    a, d = V.alloc(1), V.alloc(1)
    A(f"s_lshl_b32 {t0}, {sG}, 12")
    A(f"s_lshl_b32 {t1}, {sJ}, {2 if BY_WAVE[edge] else 4}")
    A(f"s_add_u32 {t0}, {t0}, {t1}")
    A(f"s_lshl_b32 {t1}, {sW4}, {7 if BY_WAVE[edge] else 2}")
    A(f"s_add_u32 {t0}, {t0}, {t1}")
    A(f"s_add_u32 {t0}, {t0}, {WS_FLAG + 512 * edge}")
    A(f"v_mov_b32 {a}, 0")
    A(f"v_mov_b32 {d}, {sT[0]}")
    slow, done = lab("sigslow"), lab("sigdone")
    A("s_mov_b64 exec, 1")
    A(f"s_cmp_lg_u32 {sMODE}, 0")
    if drain:
        A("s_waitcnt vmcnt(0)")
    A.branch(f"s_cbranch_scc1 {slow}", noflush=True)
    A(f"buffer_store_dword {d}, {a}, {sWS}, {t0} offen{' sc1' if scalar_edge(edge) else ''}")
    A.label(done)
    A("s_mov_b64 exec, -1")

    def cold():
        A.label(slow)
        if drain:
            A("buffer_wbl2 sc1")
            A("s_waitcnt vmcnt(0)")
        A(f"buffer_store_dword {d}, {a}, {sWS}, {t0} offen sc1")
        A.branch(f"s_branch {done}")
    c.cold.append(cold)
    V.release(a, d)


def acquire_if_slow():
    skip = lab("noacq")
    A(f"s_cmp_eq_u32 {sMODE}, 0")
    A.branch(f"s_cbranch_scc1 {skip}", noflush=True)
    A("buffer_inv sc1")
    A("s_waitcnt vmcnt(0)")
    A.label(skip)


def wait_edge(c, edge, s_off0, s_off1=None):
    V = c.V
    A(f"s_lshl_b32 {t0}, {sG}, 12")
    A(f"s_add_u32 {t0}, {t0}, {WS_FLAG + 512 * edge}")
    if scalar_edge(edge):
        offs = [s_off0] + ([s_off1] if s_off1 is not None else [])
        for o in offs:
            A(f"s_add_u32 {o}, {o}, {t0}")
        top, done = lab("spoll"), lab("spdone")
        A(f"s_mov_b32 {p0[0]}, {sT[0]}")
        A(f"s_mov_b32 {p0[1]}, {sT[0]}")
        A(f"s_mov_b32 {sCNT}, 0")
        A.label(top)
        for k, o in enumerate(offs):
            A(f"s_load_dwordx16 {sPOLL[16 * k:16 * k + 16]}, {sWS[0:2]}, {o} glc")
        A(f"s_add_u32 {sCNT}, {sCNT}, 1")
        A(f"s_cmp_gt_u32 {sCNT}, {POLL_MAX}")
        A.branch(f"s_cbranch_scc1 {done}", noflush=True)
        A("s_waitcnt lgkmcnt(0)")
        n = 8 * len(offs)
        for k in range(n):
            A(f"s_xor_b64 {sPOLL[2 * k:2 * k + 2]}, {sPOLL[2 * k:2 * k + 2]}, {p0}")
        for k in range(1, n):
            A(f"s_or_b64 {sPOLL[0:2]}, {sPOLL[0:2]}, {sPOLL[2 * k:2 * k + 2]}")
        A.branch(f"s_cbranch_scc1 {top}")
        A.label(done)
        A("s_waitcnt lgkmcnt(0)")
        acquire_if_slow()
        return
    a, d = V.alloc(1), V.alloc(1)
    A(f"v_and_b32 {a}, 15, {c.lane}")
    A(f"v_lshl_add_u32 {a}, {a}, 2, {s_off0}")
    if s_off1 is not None:
        A(f"s_sub_u32 {s_off1}, {s_off1}, {s_off0}")
        A(f"v_add_u32 {d}, {s_off1}, {a}")
        A(f"v_cndmask_b32_e64 {a}, {a}, {d}, {sHI}")
    poll(c, [f"buffer_load_dword {d}, {a}, {sWS}, {t0} offen sc1"], lambda: A(f"v_cmp_ne_u32 vcc, {sT[0]}, {d}"))
    V.release(a, d)


def add_base(dst, slow, fast, tmp):
    if not OPT["overlay"]:
        A(f"s_add_u32 {dst}, {dst}, {slow}")
        return
    A(f"s_cmp_eq_u32 {sMODE}, 0")
    A(f"s_cselect_b32 {tmp}, {fast - slow}, 0")
    A(f"s_add_u32 {dst}, {dst}, {tmp}")
    A(f"s_add_u32 {dst}, {dst}, {slow}")


def lds_spin(c, off, want):
    V = c.V
    a, d = V.alloc(1), V.alloc(1)
    top, done = lab("lspin"), lab("lsdone")
    A(f"v_mov_b32 {a}, 0")
    A(f"s_mov_b32 {sCNT}, 0")
    A.label(top)
    A(f"ds_read_b32 {d}, {a} offset:{off}")
    A(f"s_add_u32 {sCNT}, {sCNT}, 1")
    A(f"s_cmp_gt_u32 {sCNT}, {8 * POLL_MAX}")
    A.branch(f"s_cbranch_scc1 {done}", noflush=True)
    A("s_waitcnt lgkmcnt(0)")
    A(f"v_cmp_gt_u32 vcc, {want}, {d}")
    A.branch(f"s_cbranch_vccnz {top}")
    A.label(done)
    A("s_waitcnt lgkmcnt(0)")
    V.release(a, d)


def bump(c, off):
    a, d = c.V.alloc(1), c.V.alloc(1)
    A(f"v_mov_b32 {a}, 0")
    A(f"v_mov_b32 {d}, 1")
    A("s_mov_b64 exec, 1")
    A(f"ds_add_u32 {a}, {d} offset:{off}")
    A("s_mov_b64 exec, -1")
    c.V.release(a, d)


def l2_touch(base, first, n):
    for i in range(first, first + n):
        A.raw(f"s_load_dword {sDUM}, {base}, {64 * i}")


SRD_SIZE = ((sWM, 4915200), (sCC, 1280), (sWS, WS_END), (sX, 2621440), (sWQ, 2457600), (sWO, 819200), (sWG, 1966080),
            (sWU, 1966080), (sWD, 1966080), (sOUT, 2621440))


def srd_words(which):
    for srd, n in SRD_SIZE:
        if any(srd is w for w in which):
            nb = {sWQ.b: 1, sWO.b: 2, sWG.b: 4, sWU.b: 4, sWD.b: 8}.get(srd.b, 0)
            A(f"s_mov_b32 {srd[2]}, {0 if OPT['nobulk'] & nb else n}")
            A(f"s_mov_b32 {srd[3]}, 0x20000")


def prologue():
    V = Regs("v", 0, 256)
    c = Ctx(V)
    v0 = V.alloc(1)
    c.lane = V.alloc(1)
    tmp, u = V.alloc(1), V.alloc(1)
    A("s_cmp_ge_u32 s2, 256")
    A.branch("s_cbranch_scc1 L_end", noflush=True)
    A(f"s_getpc_b64 {p0}")
    A.label("L_pc")
    c.stamp("start")
    for srd, off in ((sWM, 64), (sCC, 56), (sWS, 88), (sX, 0)):
        A(f"s_load_dwordx2 {srd[0:2]}, s[0:1], {off}")
    A(f"v_lshrrev_b32 {tmp}, 6, {v0}")
    A(f"s_lshr_b32 {sJ}, s2, 3")
    A(f"v_readfirstlane_b32 {sW}, {tmp}")
    A(f"v_and_b32 {c.lane}, 63, {v0}")
    A(f"s_and_b32 {sG}, s2, 7")
    A(f"s_and_b32 {sW4}, {sW}, 3")
    A(f"s_cmp_ge_u32 {sW}, 4")
    c.l16 = v0
    A(f"v_lshlrev_b32 {c.l16}, 4, {c.lane}")
    A.branch("s_cbranch_scc0 L_compute", noflush=True)
    A(f"s_lshl_b32 {t0}, {sJ}, 2")
    A(f"s_add_u32 {t0}, {t0}, {sW4}")
    A(f"s_lshl_b32 {t0}, {t0}, 9")
    A(f"v_and_b32 {tmp}, 7, {c.lane}")
    A(f"v_lshl_add_u32 {tmp}, {tmp}, 6, {t0}")
    A(f"v_min_u32 {tmp}, L_end-L_pc, {tmp}")
    A(f"global_load_dword {u}, {tmp}, {p0}")
    A.branch("s_branch L_helper")
    A.label("L_compute")
    V.release(tmp)
    c.dummy = u
    A.save("split")
    return c


def late_setup():
    for srd, off in ((sWQ, 8), (sWO, 16), (sWG, 32), (sWU, 40), (sWD, 48), (sOUT, 72)):
        A(f"s_load_dwordx2 {srd[0:2]}, s[0:1], {off}")
    srd_words((sWQ, sWO, sWG, sWU, sWD, sOUT))
    A(f"s_getreg_b32 {sXCC}, hwreg(HW_REG_XCC_ID, 0, 4)")
    A(f"s_mov_b32 {sHI[0]}, 0")
    A(f"s_mov_b32 {sHI[1]}, -1")
    A(f"s_lshr_b32 {sI}, {sJ}, 3")
    A(f"s_and_b32 {sN}, {sJ}, 7")


def tag_setup():
    A("s_waitcnt lgkmcnt(0)")
    A(f"s_add_u32 {sT[0]}, {sT[0]}, 1")
    A(f"s_not_b32 {sT[1]}, {sT[0]}")


def barrier():
    A("s_waitcnt lgkmcnt(0)")
    A("s_barrier")


def att_masks(c):
    V = c.V
    c.mask = V.alloc(16, 4)
    z, big = V.alloc(1), V.alloc(1)
    A(f"v_lshrrev_b32 {z}, 5, {c.lane}")
    A(f"v_lshlrev_b32 {z}, 2, {z}")
    A(f"v_and_b32 {big}, 31, {c.lane}")
    A(f"v_sub_u32 {z}, {big}, {z}")
    A(f"v_mov_b32 {big}, {hex(BIG)}")
    build_mask(c, z, big)
    V.release(z, big)


def build_mask(c, z, big):
    for r in range(16):
        A(f"v_subrev_u32 {c.mask[r]}, {8 * (r >> 2) + (r & 3)}, {z}")
        A(f"v_ashrrev_i32 {c.mask[r]}, 31, {c.mask[r]}")
        A(f"v_and_b32 {c.mask[r]}, {big}, {c.mask[r]}")


def att_addr(c):
    V = c.V
    c.aK, c.aK4, c.aV = V.alloc(1), V.alloc(1), V.alloc(1)
    t, u = V.alloc(1), V.alloc(1)
    A(f"s_lshl_b32 {t0}, {sW4}, 9")
    A(f"v_and_b32 {t}, 15, {c.lane}")
    A(f"s_add_u32 {t1}, {t0}, {L_K}")
    A(f"v_lshl_add_u32 {t}, {t}, 4, {t1}")
    A(f"v_bfe_u32 {u}, {c.lane}, 4, 1")
    A(f"v_lshl_add_u32 {t}, {u}, 3, {t}")
    A(f"v_add_u32 {c.aK4}, {4 * KVS}, {t}")
    A(f"v_lshrrev_b32 {u}, 5, {c.lane}")
    A(f"v_mul_u32_u24 {c.aK}, {KVS}, {u}")
    A(f"v_add_u32 {c.aK}, {c.aK}, {t}")
    A(f"v_bfe_u32 {t}, {c.lane}, 2, 2")
    A(f"v_lshl_add_u32 {t}, {u}, 2, {t}")
    A(f"s_add_u32 {t1}, {t0}, {L_V}")
    A(f"v_lshl_add_u32 {c.aV}, {t}, 4, {t1}")
    A(f"v_and_b32 {t}, 3, {c.lane}")
    A(f"v_bfe_u32 {u}, {c.lane}, 4, 1")
    A(f"v_lshl_add_u32 {t}, {u}, 2, {t}")
    A(f"v_lshlrev_b32 {t}, 2, {t}")
    A(f"s_mov_b32 {t1}, 0x45543210")
    A(f"v_lshrrev_b32_e64 {t}, {t}, {t1}")
    A(f"v_and_b32 {t}, 7, {t}")
    A(f"v_mul_u32_u24 {t}, {KVS}, {t}")
    A(f"v_add_u32 {c.aV}, {c.aV}, {t}")
    V.release(t, u)


def attention(c):
    V = c.V
    Q0, Q1 = c.Q0, c.Q1
    Sx = [V.alloc(16, 4) for _ in range(3)]
    O, Cm = [V.alloc(16, 4), V.alloc(16, 4)], [V.alloc(16, 4), V.alloc(16, 4)]
    P, Vf = V.alloc(8, 4), V.alloc(8, 4)
    Ka, Kb = V.alloc(4, 4), V.alloc(2)
    m, mg, tmp = V.alloc(2), V.alloc(2), V.alloc(1)
    off = lambda n: (9 - n) * 256

    def readK(n, ka=Ka, kb=Kb):
        A(f"ds_read_b64 {ka[0:2]}, {c.aK} offset:{off(n)}")
        A(f"ds_read_b64 {ka[2:4]}, {c.aK} offset:{off(n) + 2 * KVS}")
        A(f"ds_read_b64 {kb}, {c.aK4} offset:{off(n)}")

    def readV(n):
        for ks in range(2):
            for u in range(2):
                A(f"ds_read_b64_tr_b16 {Vf[4 * ks + 2 * u:4 * ks + 2 * u + 2]}, {c.aV} offset:{off(n) + 8 * ks + 128 * u}")

    def qk(dst, st, cin, ka=Ka, kb=Kb):
        return [f"v_mfma_f32_32x32x16_bf16 {dst}, {ka}, {Q0[st]}, {cin}", f"v_mfma_f32_32x32x8bf16_1k {dst}, {kb}, {Q1[st]}, {dst}"]

    units = [(0, 0)] + [(st, n) for n in range(1, 9) for st in (0, 1)] + [(1, 9)]
    for st in range(2):
        A(f"v_mov_b32 {mg[st]}, {hex(BIG)}")
    A(f"s_mov_b32 {sPASS}, 0")
    A.label("L_att")
    readK(0, Vf[0:4], Vf[4:6])
    readK(1)
    for x in qk(Sx[0], 0, c.mask, Vf[0:4], Vf[4:6]) + qk(Sx[2], 1, c.mask):
        A(x)
    for st, sx in ((0, Sx[0]), (1, Sx[2])):
        A(f"v_max3_f32 {m[st]}, {sx[0]}, {sx[1]}, {mg[st]}")
        for r in range(2, 16, 2):
            A(f"v_max3_f32 {m[st]}, {sx[r]}, {sx[r + 1]}, {m[st]}")
        xor32_op("v_max_f32", m[st], tmp)
        for r in range(16):
            A(f"v_sub_f32 {Cm[st][r]}, 0, {m[st]}")
        for r in range(16):
            A(f"v_sub_f32 {sx[r]}, {sx[r]}, {m[st]}")
    A(f"v_mov_b32 {tmp}, {hex(BIG)}")
    for r in range(16):
        A(f"v_sub_f32 {c.mask[r]}, {tmp}, {c.mask[r]}")
    c.stamp("z_set", "a")
    for k, (st, n) in enumerate(units):
        s = Sx[k % 3]
        if st == 1 and n % 2 == 1 and n < 9:
            A(f"s_cmp_eq_u32 {sHOOK}, {n + 1}")
            A.branch(f"s_cbranch_scc1 L_hook_{n + 1}", noflush=True)
            A.label(f"L_back_{n + 1}")
        if st == 0 or n == 9:
            readV(n)
        nxt = units[k + 1] if k + 1 < len(units) else None
        pre, mm = [], []
        if nxt and k + 1 != 2:
            if nxt == (0, 8) or nxt == (1, 9):
                pre = [f"v_sub_f32 {Cm[nxt[0]][r]}, {c.mask[r]}, {m[nxt[0]]}" for r in range(16)]
            mm = qk(Sx[(k + 1) % 3], nxt[0], Cm[nxt[0]])
        for x in pre:
            A(x)
        order = []
        for r in range(0, 16, 2):
            order += [f"v_exp_f32 {s[r]}, {s[r]}", f"v_exp_f32 {s[r + 1]}, {s[r + 1]}"]
            if r >= 2:
                order.append(f"v_cvt_pk_bf16_f32 {P[r // 2 - 1]}, {s[r - 2]}, {s[r - 1]}")
        first = n == (0 if st == 0 else 1)
        for i, x in enumerate(order):
            A(x)
            if i == 2 and mm:
                A(mm[0])
            if i == 7 and mm:
                A(mm[1])
            if i == 9 and st == 0 and 1 <= n:
                readK(n + 1)
            if i == 15:
                A(f"v_mfma_f32_32x32x16_bf16 {O[st]}, {Vf[0:4]}, {P[0:4]}, {'0' if first else O[st]}")
        A(f"v_cvt_pk_bf16_f32 {P[7]}, {s[14]}, {s[15]}")
        A(f"v_mfma_f32_32x32x16_bf16 {O[st]}, {Vf[4:8]}, {P[4:8]}, {O[st]}")
    A(f"s_mov_b32 {t0}, {hex(f32(2.0 ** 40 if not OPT['force_fb'] else 1.5))}")
    for st in range(2):
        A(f"v_cndmask_b32_e64 {m[st]}, {O[st][12]}, {O[st][8]}, {sHI}")
    A(f"v_cmp_nge_f32 vcc, {t0}, {m[0]}")
    A(f"v_cmp_nge_f32 {p0}, {t0}, {m[1]}")
    A(f"s_or_b64 vcc, vcc, {p0}")
    A(f"s_cmp_eq_u32 {sPASS}, 0")
    A(f"s_cselect_b64 vcc, vcc, 0")
    A.branch("s_cbranch_vccnz L_fb")
    c.op = [Sx[0][0:6], Sx[0][6:12]]
    for st in range(2):
        A(f"v_rcp_f32 {m[st]}, {m[st]}")
    for st in range(2):
        for r in range(12):
            A(f"v_mul_f32 {O[st][r]}, {O[st][r]}, {m[st]}")
        for r in range(6):
            A(f"v_cvt_pk_bf16_f32 {c.op[st][r]}, {O[st][2 * r]}, {O[st][2 * r + 1]}")
        c.store_o(st)

    def cold():
        for n in (2, 4, 6, 8):
            A.label(f"L_hook_{n}")
            A("s_nop 7")
            for r in range(16):
                for x in (Cm[0], Cm[1], c.mask):
                    A(f"v_mov_b32 {x[r]}, {hex(BIG)}")
            A.branch(f"s_branch L_back_{n}")
        A.label("L_fb")
        z, big = P[0], P[1]
        A(f"v_lshrrev_b32 {z}, 5, {c.lane}")
        A(f"v_lshlrev_b32 {z}, 2, {z}")
        A(f"v_and_b32 {big}, 31, {c.lane}")
        A(f"v_sub_u32 {z}, {big}, {z}")
        A(f"v_mov_b32 {big}, {hex(BIG)}")
        build_mask(c, z, big)
        for r in range(16):
            A(f"v_sub_f32 {Cm[0][r]}, {big}, {c.mask[r]}")
        for n in range(1, 10):
            skip = lab("fbskip")
            A(f"s_cmp_le_u32 {sHOOK}, {n}")
            A.branch(f"s_cbranch_scc1 {skip}")
            readK(n)
            for st in range(2):
                if (st, n) in units and (st, n) != (1, 1):
                    for x in qk(Sx[st], st, Cm[0] if n == 8 + st else "0"):
                        A(x)
            for st in range(2):
                if (st, n) in units and (st, n) != (1, 1):
                    for r in range(0, 16, 2):
                        A(f"v_max3_f32 {mg[st]}, {Sx[st][r]}, {Sx[st][r + 1]}, {mg[st]}")
            A.label(skip)
        A(f"s_mov_b32 {sPASS}, 1")
        A.branch("s_branch L_att")
    c.cold.append(cold)
    V.release(Sx, O, Cm, P, Vf, Ka, Kb, m, mg, tmp, c.mask, c.aK, c.aK4, c.aV, Q0, Q1)


def wd_pattern(c):
    V = c.V
    c.pat = V.alloc(5)
    p, r = V.alloc(1), V.alloc(1)
    A(f"s_mul_i32 {t0}, {sN}, 160")
    for i in range(5):
        A(f"v_add_u32 {p}, {64 * i}, {c.lane}")
        A(f"v_mul_u32_u24 {r}, 0x199a, {p}")
        A(f"v_lshrrev_b32 {r}, 16, {r}")
        A(f"v_mul_u32_u24 {c.pat[i]}, 0x460, {r}")
        A(f"v_lshl_add_u32 {c.pat[i]}, {p}, 4, {c.pat[i]}")
        A(f"v_add_u32 {c.pat[i]}, {t0}, {c.pat[i]}")
    V.release(p, r)


def dma_slab(c, srd, s_src, lds, win=0):
    for i in range(5):
        if win:
            A(f"s_waitcnt vmcnt({win - 1})")
        if isinstance(lds, int):
            A(f"s_mov_b32 m0, {lds + 1024 * i}")
        else:
            A(f"s_add_u32 m0, {lds}, {1024 * i}")
        tag = A.tagged(f"buffer_load_dwordx4 {c.pat[i]}, {srd}, {s_src} offen lds")
    return tag


def prof_dump(c, role):
    if not OPT["prof"]:
        return
    V = c.V
    a, d = V.alloc(1), V.alloc(1)
    skip = lab("noprof")
    A("s_waitcnt vmcnt(0)")
    c.stamp("end")
    NAMES.append(c.names)
    A("s_waitcnt lgkmcnt(0)")
    A(f"s_mov_b32 {S(PROF0 + c.nstamp - 1)}, {sSTAMP[0]}")
    A(f"s_cmp_lg_u32 {sW4}, {OPT.get('pw', 0)}")
    A.branch(f"s_cbranch_scc1 {skip}")
    A(f"s_lshl_b32 {t0}, s2, 8")
    A(f"s_add_u32 {t0}, {t0}, {WS_PROF + 128 * role}")
    A(f"v_mov_b32 {a}, 0")
    A("s_mov_b64 exec, 1")
    for i in range(c.nstamp):
        A(f"v_mov_b32 {d}, {S(PROF0 + i)}")
        A(f"buffer_store_dword {d}, {a}, {sWS}, {t0} offen offset:{4 * i}")
    if role == 0 and "dbgskew" in OPT:
        nod = lab("nodbg")
        A(f"s_cmp_lg_u32 {sJ}, 0")
        A.branch(f"s_cbranch_scc1 {nod}")
        A(f"s_load_dwordx2 {p0}, s[0:1], 80")
        A(f"s_lshl_b32 {t1}, {sG}, 2")
        A(f"v_mov_b32 {a}, {t1}")
        A("s_waitcnt lgkmcnt(0)")
        for k, i in enumerate((0, c.nstamp - 1)):
            A(f"s_and_b32 {t1}, {S(PROF0 + i)}, 0xfffff")
            A(f"v_mov_b32 {d}, {t1}")
            A(f"global_store_dword {a}, {d}, {p0} offset:{32 * k}")
        A.label(nod)
    if role == 0 and "dbgwg" in OPT:
        nod = lab("nodbg")
        A(f"s_cmp_lg_u32 s2, {OPT['dbgwg']}")
        A.branch(f"s_cbranch_scc1 {nod}")
        A(f"s_load_dwordx2 {p0}, s[0:1], 80")
        A("s_waitcnt lgkmcnt(0)")
        keep = [i for i in range(1, c.nstamp) if c.names[i] not in ("s_pre", "x_sig", "a_end")][:16]
        for k, i in enumerate(keep):
            A(f"s_sub_u32 {t1}, {S(PROF0 + i)}, {S(PROF0)}")
            A(f"v_mov_b32 {d}, {t1}")
            A(f"global_store_dword {a}, {d}, {p0} offset:{4 * k}")
        print("debug words:", [c.names[i] for i in keep])
        A.label(nod)
    A("s_mov_b64 exec, -1")
    A.label(skip)
    V.release(a, d)


def tile_gemm(c, nks, s_a0, s_a1, init, depth, waddr, barrier_at, step=None, drain=True, done=None):
    V = c.V
    ring = [[V.alloc(4, 4), V.alloc(4, 4)] for _ in range(depth)]
    W = [V.alloc(20, 4), V.alloc(20, 4)]
    acc = [V.alloc(20, 4), V.alloc(20, 4)]

    def loadA1(ks, a):
        A(f"buffer_load_dwordx4 {ring[ks % depth][a]}, {c.l16}, {sWS}, {(s_a0, s_a1)[a]} offen offset:{(ks % 4) * 1024} sc1")
        if a == 1 and ks % 4 == 3 and ks + 1 < nks:
            inc = step(ks // 4) if step else 4096
            A(f"s_add_u32 {s_a0}, {s_a0}, {inc}")
            A(f"s_add_u32 {s_a1}, {s_a1}, {inc}")

    def loadA(ks):
        loadA1(ks, 0)
        loadA1(ks, 1)

    def readW(ks, ct, u):
        ad, imm = waddr(ks)
        A(f"ds_read_b64_tr_b16 {W[ks & 1][4 * ct + 2 * u:4 * ct + 2 * u + 2]}, {ad} offset:{imm + 1280 * u + 32 * ct}")

    issued = min(init, nks)
    for ks in range(issued):
        loadA(ks)
    if 0 in barrier_at:
        A("s_barrier")
    for ct in range(5):
        readW(0, ct, 0)
        readW(0, ct, 1)
    for ks in range(nks):
        nxt = ks + 1 < nks
        if nxt and (ks + 1) in barrier_at:
            barrier() if drain else A("s_barrier")
        if nks == 24 and ks % 4 == 0:
            c.stamp("z_k%d" % ks, "d")
        todo = []
        for _ in range(2):
            if issued < min(nks, ks + depth):
                todo += [(issued, 0), (issued, 1)]
                issued += 1
        for ct in range(5):
            for a in range(2):
                A(f"v_mfma_f32_16x16x32_bf16 {acc[a][4 * ct:4 * ct + 4]}, {W[ks & 1][4 * ct:4 * ct + 4]}, {ring[ks % depth][a]}, "
                  f"{'0' if ks == 0 else acc[a][4 * ct:4 * ct + 4]}")
                if nxt:
                    readW(ks + 1, ct, a)
            if todo and ct < 4 and (len(todo) > 2 or ct in (1, 3) or len(todo) + ct >= 4):
                loadA1(*todo.pop(0))
        assert not todo
        if done and issued == nks:
            done()
            done = None
    V.release(ring, W)
    return acc


def tile_reduce(c, acc, lds):
    V = c.V
    ad = V.alloc(1)
    A(f"s_mul_i32 {t0}, {sW4}, 5120")
    A(f"s_add_u32 {t0}, {t0}, {lds}")
    A(f"v_add_u32 {ad}, {t0}, {c.l16}")
    for ct in range(5):
        A(f"ds_write_b128 {ad}, {acc[1][4 * ct:4 * ct + 4]} offset:{1024 * ct}")
    A(f"s_xor_b32 {t0}, {sW4}, 1")
    A(f"s_mul_i32 {t0}, {t0}, 5120")
    A(f"s_add_u32 {t0}, {t0}, {lds}")
    A(f"v_add_u32 {ad}, {t0}, {c.l16}")
    barrier()
    for ct in range(5):
        A(f"ds_read_b128 {acc[1][4 * ct:4 * ct + 4]}, {ad} offset:{1024 * ct}")
    for r in range(20):
        A(f"v_add_f32 {acc[0][r]}, {acc[0][r]}, {acc[1][r]}")
    V.release(ad, acc[1])
    return acc[0]


def wtile_addr(c, base, half_bytes, ad, t, u):
    A(f"v_lshrrev_b32 {t}, 5, {c.lane}")
    A(f"v_bfe_u32 {u}, {c.lane}, 4, 1")
    A(f"v_lshlrev_b32 {t}, 4, {t}")
    A(f"v_lshl_add_u32 {t}, {u}, 2, {t}")
    A(f"v_bfe_u32 {u}, {c.lane}, 2, 2")
    A(f"v_add_u32 {t}, {t}, {u}")
    A(f"v_mul_u32_u24 {t}, 0xa0, {t}")
    A(f"v_and_b32 {u}, 3, {c.lane}")
    A(f"v_lshl_add_u32 {t}, {u}, 3, {t}")
    A(f"s_and_b32 {t0}, {sW4}, 1")
    A(f"s_mul_i32 {t0}, {t0}, {half_bytes}")
    A(f"s_add_u32 {t0}, {t0}, {base}")
    A(f"v_add_u32 {ad}, {t0}, {t}")


def tile_streams(base, per_group, tile_bytes, half_bytes, d0, d1):
    A(f"s_mul_i32 {t0}, {sG}, {per_group}")
    A(f"s_and_b32 {t1}, {sW4}, 1")
    A(f"s_mul_i32 {t1}, {t1}, {half_bytes}")
    A(f"s_add_u32 {t0}, {t0}, {t1}")
    add_base(t0, base[0], base[1], t1)
    A(f"s_lshl_b32 {t1}, {sI}, 2")
    A(f"s_add_u32 {t2}, {t1}, {sW4}")
    A(f"s_mul_i32 {d0}, {t2}, {tile_bytes}")
    A(f"s_add_u32 {d0}, {d0}, {t0}")
    A(f"s_xor_b32 {t2}, {t2}, 1")
    A(f"s_mul_i32 {d1}, {t2}, {tile_bytes}")
    A(f"s_add_u32 {d1}, {d1}, {t0}")


def pk_sub_lo(d, x, pair):
    A(f"v_pk_add_f32 {d}, {x}, {pair} op_sel_hi:[1,0] neg_lo:[0,1] neg_hi:[0,1]")


def pk_mul_hi(d, x, pair):
    A(f"v_pk_mul_f32 {d}, {x}, {pair} op_sel:[0,1] op_sel_hi:[1,1]")


def pk_sum(dst, x, n, tmp):
    A(f"v_pk_add_f32 {tmp}, {x[0:2]}, {x[2:4]}")
    for i in range(4, n, 2):
        A(f"v_pk_add_f32 {tmp}, {tmp}, {x[i:i + 2]}")
    A(f"v_add_f32 {dst}, {tmp[0]}, {tmp[1]}")


def d_rot(dst, tmp):
    A(f"s_lshr_b32 {dst}, {sI}, 1")
    A(f"s_mul_i32 {dst}, {dst}, 3")
    if OPT["drot"]:
        A(f"s_add_u32 {dst}, {dst}, {sN}")
        for _ in range(1):
            A(f"s_cmp_ge_u32 {dst}, 6")
            A(f"s_cselect_b32 {tmp}, 6, 0")
            A(f"s_sub_u32 {dst}, {dst}, {tmp}")


def ln_scalars(var):
    A(f"v_add_f32 {var}, {hex(f32(1e-5))}, {var}")
    A(f"v_rsq_f32 {var}, {var}")


def qkv_role():
    A(f"s_cmp_ge_u32 {sJ}, 15")
    A(f"s_cselect_b32 {sRH}, 1, 0")
    A(f"s_cselect_b32 {t0}, 15, 0")
    A(f"s_sub_u32 {sCB}, {sJ}, {t0}")
    A(f"s_min_u32 {sCB}, {sCB}, 14")


def qkv_addr(c):
    V, lane = c.V, c.lane
    c.wq = V.alloc(4)
    tq, tu, tr = V.alloc(1), V.alloc(1), V.alloc(1)
    A(f"v_lshrrev_b32 {tq}, 5, {lane}")
    A(f"v_bfe_u32 {tr}, {lane}, 2, 2")
    A(f"v_lshl_add_u32 {tq}, {tq}, 3, {tr}")
    A(f"v_lshlrev_b32 {tq}, 8, {tq}")
    A(f"v_bfe_u32 {tu}, {lane}, 4, 1")
    A(f"v_lshl_add_u32 {tq}, {tu}, 5, {tq}")
    A(f"v_and_b32 {tu}, 3, {lane}")
    A(f"v_lshl_add_u32 {tq}, {tu}, 3, {tq}")
    A(f"v_add_u32 {tq}, {L_WQ}, {tq}")
    for ct in range(4):
        A(f"v_xor_b32 {tu}, {ct}, {tr}")
        A(f"v_lshl_add_u32 {c.wq[ct]}, {tu}, 6, {tq}")
    c.xs, c.xa, c.xq1 = V.alloc(1), V.alloc(1), V.alloc(1)
    A(f"v_and_b32 {tq}, 15, {lane}")
    A(f"v_lshlrev_b32 {tq}, 4, {tq}")
    A(f"v_bfe_u32 {tr}, {lane}, 4, 1")
    A(f"v_lshrrev_b32 {tu}, 5, {lane}")
    A(f"v_lshl_add_u32 {c.xs}, {tr}, 12, {tq}")
    A(f"v_lshl_add_u32 {c.xs}, {tu}, 11, {c.xs}")
    A(f"v_lshl_add_u32 {tq}, {tr}, 3, {tq}")
    A(f"v_lshl_add_u32 {c.xa}, {tu}, 11, {tq}")
    A(f"v_mov_b32 {tu}, {OOB}")
    A(f"v_cndmask_b32_e64 {c.xq1}, {tq}, {tu}, {sHI}")
    V.release(tq, tu, tr)


def compute_role(c0):
    c = Ctx(c0.V.clone())
    c.__dict__.update({k: v for k, v in c0.__dict__.items() if k not in ("V", "cold")})
    V = c.V
    lane = c.lane
    wm = V.alloc(20, 4)
    cv = V.alloc(5)
    t, co, wo = V.alloc(1), V.alloc(1), V.alloc(1)
    A(f"v_lshrrev_b32 {t}, 1, {lane}")
    A(f"s_lshl_b32 {t0}, {sW4}, 5")
    A(f"v_add_u32 {t}, {t0}, {t}")
    A(f"v_lshlrev_b32 {co}, 1, {t}")
    A(f"v_mul_u32_u24 {wo}, 0x1e00, {t}")
    A(f"v_and_b32 {t}, 1, {lane}")
    A(f"v_lshl_add_u32 {wo}, {t}, 4, {wo}")
    srd_words((sWM, sCC, sWS, sX))
    A(f"s_mul_i32 {t3}, {sG}, 10")
    A(f"s_mul_i32 {t2}, {sG}, 20")
    A(f"s_add_u32 {t2}, {t2}, 70")
    A(f"s_cmp_lt_u32 {sJ}, 10")
    A(f"s_cselect_b32 {t3}, {t3}, {t2}")
    A(f"s_add_u32 {t3}, {t3}, {sJ}")
    A(f"s_lshl_b32 {t2}, {t3}, 5")
    A(f"s_cmp_lt_u32 {sJ}, {10 if OPT.get('exp1') else 30}")
    A(f"s_cselect_b32 {t2}, {t2}, {OOB}")
    xr = V.alloc(12, 4)
    xo, x3, cl, tok = V.alloc(1), V.alloc(1), V.alloc(1), V.alloc(1)
    A(f"v_and_b32 {cl}, 31, {lane}")
    A(f"v_lshrrev_b32 {tok}, 5, {lane}")
    A(f"s_lshl_b32 {t0}, {sJ}, 3")
    A(f"s_lshl_b32 {t1}, {sW4}, 1")
    A(f"s_add_u32 {t0}, {t0}, {t1}")
    A(f"v_add_u32 {tok}, {t0}, {tok}")
    A(f"v_mul_u32_u24 {xo}, 0x500, {tok}")
    A(f"v_lshl_add_u32 {xo}, {cl}, 4, {xo}")
    A(f"s_mul_i32 {t1}, {sG}, {ACT}")
    A(f"v_mov_b32 {x3}, {OOB}")
    A(f"v_cmp_gt_u32 {p1}, 16, {cl}")
    A(f"v_cndmask_b32_e64 {x3}, {x3}, {xo}, {p1}")
    A("s_waitcnt lgkmcnt(0)")
    A(f"s_load_dword {sT[0]}, {sWS[0:2]}, {WS_E}")
    c.stamp("z_karg", "s")
    for p in range(5):
        A(f"buffer_load_ushort {cv[p]}, {co}, {sCC}, 0 offen offset:{256 * p}")
    for p in range(5):
        A(f"buffer_load_dwordx4 {wm[4 * p:4 * p + 4]}, {wo}, {sWM}, {t2} offen{' nt' if OPT['nt0'] else ''}")
        if p < 4:
            A(f"s_add_u32 {t2}, {t2}, {128 * 7680}")
    A(f"buffer_load_dwordx4 {xr[0:4]}, {xo}, {sX}, {t1} offen{' nt' if OPT['nt0'] else ''}")
    A(f"buffer_load_dwordx4 {xr[4:8]}, {xo}, {sX}, {t1} offen offset:512{' nt' if OPT['nt0'] else ''}")
    A(f"buffer_load_dwordx4 {xr[8:12]}, {x3}, {sX}, {t1} offen offset:1024{' nt' if OPT['nt0'] else ''}")
    c.stamp("z_bs", "s")
    V.release(xo, x3, wo, c.dummy)
    late_setup()
    e = V.alloc(5)
    for i in range(5):
        A(f"v_lshlrev_b32 {cv[i]}, 16, {cv[i]}")
    c.stamp("z_c", "s")
    for op in (f"v_mul_f32 {{e}}, {hex(f32(-LOG2E))}, {{s}}", "v_exp_f32 {e}, {e}", "v_add_f32 {e}, 1.0, {e}", "v_rcp_f32 {e}, {e}",
               "v_mul_f32 {s}, {s}, {e}", "v_cvt_pk_bf16_f32 {e}, 0, {s}", "v_cvt_pk_bf16_f32 {s}, {s}, 0"):
        for i in range(5):
            A(op.format(e=e[i], s=cv[i]))
    acc = V.alloc(8)
    for p in range(5):
        for i in range(4):
            for h, m in ((0, cv), (1, e)):
                A(f"v_dot2_f32_bf16 {acc[2 * i + h]}, {wm[4 * p + i]}, {m[p]}, {'0' if p == 0 else acc[2 * i + h]}")
    c.stamp("s_wmod")
    for i in range(4):
        A(f"v_permlane32_swap_b32 {acc[i]}, {acc[i + 4]}")
    for i in range(4):
        A(f"v_add_f32 {acc[i]}, {acc[i]}, {acc[i + 4]}")
    for i in range(2):
        A(f"v_permlane16_swap_b32 {acc[i]}, {acc[i + 2]}")
    r = V.alloc(2)
    for i in range(2):
        A(f"v_add_f32 {r[i]}, {acc[i]}, {acc[i + 2]}")
    for m in ("row_ror:8", "row_ror:4", "row_ror:2"):
        for i in range(2):
            A(f"v_add_f32_dpp {r[i]}, {r[i]}, {r[i]} {m} row_mask:0xf bank_mask:0xf")
    A(f"v_lshlrev_b32 {t}, 5, {t}")
    A(f"v_lshrrev_b32 {co}, 4, {lane}")
    A(f"v_lshl_add_u32 {t}, {co}, 3, {t}")
    A(f"s_lshl_b32 {t0}, {sW4}, 6")
    A(f"v_add_u32 {t}, {t0}, {t}")
    A(f"ds_write_b64 {t}, {r} offset:{L_PART}")
    tag_setup()
    A("s_barrier")
    skip, join = lab("nopub"), lab("pubdone")
    A(f"s_cmp_lg_u32 {sW4}, 0")
    A.branch(f"s_cbranch_scc1 {skip}")
    pr, gr = wm[0:16], wm[16:20]
    A("s_mov_b64 exec, 15")
    for p in range(4):
        A(f"ds_read_b128 {pr[4 * p:4 * p + 4]}, {c.l16} offset:{L_PART + 64 * p}")
    A(f"s_lshl_b32 {t0}, {t3}, 7")
    A(f"s_add_u32 {t0}, {t0}, {WS_MOD}")
    A(f"s_cmp_lt_u32 {sJ}, 30")
    A(f"s_cselect_b32 {t0}, {t0}, {OOB}")
    A(f"v_mov_b32 {gr[2]}, {sT[0]}")
    A(f"v_mov_b32 {gr[3]}, {sT[1]}")
    for p in range(1, 4):
        for i in range(4):
            A(f"v_add_f32 {pr[i]}, {pr[i]}, {pr[4 * p + i]}")
    A(f"v_cvt_pk_bf16_f32 {gr[0]}, {pr[0]}, {pr[1]}")
    A(f"v_cvt_pk_bf16_f32 {gr[1]}, {pr[2]}, {pr[3]}")
    A(f"buffer_store_dwordx4 {gr}, {c.l16}, {sWS}, {t0} offen sc1")
    A("s_mov_b64 exec, -1")
    A("s_waitcnt vmcnt(1)")
    A.branch(f"s_branch {join}")
    A.label(skip)
    A("s_waitcnt vmcnt(0)")
    A.label(join)
    V.release(wm, cv, e, acc, r, t, co)
    c.stamp("s_pub")
    xf = V.alloc(24, 2)
    mv_, m3, tp, tmp = V.alloc(2), V.alloc(2), V.alloc(2), V.alloc(1)
    mean, var = mv_[0], mv_[1]
    for i in range(12):
        unpack(xf[2 * i], xf[2 * i + 1], xr[i])
    pk_sum(mean, xf, 24, tp)
    sum16(mean)
    xor16_add(mean, tmp)
    A(f"v_mul_f32 {mean}, {hex(f32(1 / 640))}, {mean}")
    A(f"v_cndmask_b32_e64 {m3[0]}, 0, {mean}, {p1}")
    for i in range(0, 24, 2):
        pk_sub_lo(xf[i:i + 2], xf[i:i + 2], mv_ if i < 16 else m3)
    A(f"v_pk_mul_f32 {tp}, {xf[0:2]}, {xf[0:2]}")
    for i in range(2, 24, 2):
        A(f"v_pk_fma_f32 {tp}, {xf[i:i + 2]}, {xf[i:i + 2]}, {tp}")
    A(f"v_add_f32 {var}, {tp[0]}, {tp[1]}")
    sum16(var)
    xor16_add(var, tmp)
    A(f"v_mul_f32 {var}, {hex(f32(1 / 640))}, {var}")
    ln_scalars(var)
    for i in range(0, 24, 2):
        pk_mul_hi(xf[i:i + 2], xf[i:i + 2], mv_)
    V.release(mv_, m3, tp)
    c.stamp("z_ln", "s")
    qkv_role()
    qkv_addr(c)
    hao, ha3, ma, m3a = V.alloc(1), V.alloc(1), V.alloc(1), V.alloc(1)
    A(f"v_lshrrev_b32 {hao}, 5, {tok}")
    A(f"v_mul_u32_u24 {hao}, 0xa000, {hao}")
    A(f"v_and_b32 {ha3}, 31, {tok}")
    A(f"v_lshl_add_u32 {hao}, {ha3}, 4, {hao}")
    A(f"v_lshl_add_u32 {hao}, {cl}, 9, {hao}")
    A(f"v_mov_b32 {ha3}, {OOB}")
    A(f"v_cndmask_b32_e64 {ha3}, {ha3}, {hao}, {p1}")
    A(f"v_lshlrev_b32 {ma}, 5, {cl}")
    A(f"v_and_b32 {m3a}, 15, {cl}")
    A(f"v_lshlrev_b32 {m3a}, 5, {m3a}")
    V.release(cl, tok)
    ga, gb = V.alloc(4, 4), V.alloc(4, 4)
    a2, a3 = V.alloc(1), V.alloc(1)
    a1 = V.alloc(1)
    A(f"s_mul_i32 {t1}, {sW4}, 1280")
    A(f"s_lshl_b32 {t2}, {t1}, 1")
    A(f"s_add_u32 {t2}, {t2}, {WS_MOD}")
    A(f"s_lshl_b32 {t3}, {sG}, 9")
    A(f"s_lshl_b32 {t4}, {sW4}, 7")
    A(f"s_add_u32 {t3}, {t3}, {t4}")
    A(f"s_add_u32 {t3}, {t3}, {WS_CENSUS}")
    A(f"s_add_u32 {t4}, {t2}, 2048")
    A(f"v_and_b32 {a2}, 3, {lane}")
    A(f"v_lshlrev_b32 {a2}, 4, {a2}")
    A(f"v_lshrrev_b32 {a1}, 2, {lane}")
    A(f"v_lshl_add_u32 {a1}, {a1}, 7, {a2}")
    A(f"v_and_b32 {ga[0]}, 0x1ff, {a1}")
    A(f"v_add_u32 {ga[0]}, {t4}, {ga[0]}")
    A(f"v_and_b32 {a3}, 7, {lane}")
    A(f"v_lshl_add_u32 {a3}, {a3}, 4, {t3}")
    A(f"v_cndmask_b32_e64 {a3}, {ga[0]}, {a3}, {sHI}")
    A(f"v_and_b32 {a2}, 15, {lane}")
    A(f"v_lshlrev_b32 {a2}, 4, {a2}")
    c.stamp("s_pre")

    def chk():
        A(f"v_xor_b32 {ga[3]}, {sT[1]}, {ga[3]}")
        A(f"v_xor_b32 {gb[3]}, {sT[1]}, {gb[3]}")
        A(f"v_cmp_ne_u32 vcc, {sT[0]}, {ga[2]}")
        A(f"v_cmp_ne_u32 {p0}, {sT[0]}, {gb[2]}")
        A(f"v_or_b32 {tmp}, {ga[3]}, {gb[3]}")
        A(f"s_or_b64 vcc, vcc, {p0}")
        A(f"v_cmp_lt_u32 {p0}, 15, {tmp}")
        A(f"s_or_b64 vcc, vcc, {p0}")
    poll(c, [f"buffer_load_dwordx4 {ga}, {a1}, {sWS}, {t2} offen sc1",
             f"buffer_load_dwordx4 {gb}, {a3}, {sWS}, 0 offen sc1"], chk, acquire=False, backoff=OPT.get("gsleep", 0))
    V.release(a1)
    c.stamp("s_gath")
    A(f"v_cmp_ne_u32 vcc, {sXCC}, {gb[3]}")
    A(f"s_cmp_lg_u32 vcc_hi, 0")
    A(f"s_cselect_b32 {t3}, 1, {OPT['force_slow']}")
    A(f"s_cmp_ge_u32 {sW4}, 2")
    A(f"s_cselect_b32 {t4}, 1.0, 0")
    fa, fb = V.alloc(4, 4), V.alloc(4, 4)
    for g_, f_ in ((ga, fa), (gb, fb)):
        unpack(f_[0], f_[1], g_[0])
        unpack(f_[2], f_[3], g_[1])
        for i in range(4):
            A(f"v_add_f32 {f_[i]}, {t4}, {f_[i]}")
    A(f"s_add_u32 {t1}, {t1}, {L_MOD1F}")
    A(f"v_add_u32 {ga[0]}, {t1}, {c.l16}")
    A(f"v_add_u32 {a2}, {t1}, {a2}")
    A(f"s_lshl_b32 {t0}, {sW4}, 2")
    A(f"v_mov_b32 {ga[1]}, {t0}")
    A(f"v_mov_b32 {ga[2]}, {t3}")
    A(f"v_mov_b32 {ga[3]}, 0")
    A(f"v_mov_b32 {a3}, 1")
    A(f"ds_write_b128 {ga[0]}, {fa}")
    A("s_mov_b64 exec, 0xffff")
    A(f"ds_write_b128 {a2}, {fb} offset:1024")
    A("s_mov_b64 exec, 1")
    A(f"ds_write_b32 {ga[1]}, {ga[2]} offset:{L_MODEF}")
    A(f"ds_add_u32 {ga[3]}, {a3} offset:{L_CNT + 4}")
    A("s_mov_b64 exec, -1")
    V.release(gb, fa, fb, a2, a3)
    c.stamp("z_cvt", "s")
    lds_spin(c, L_CNT + 4, 4)
    c.stamp("z_spin", "s")
    A(f"v_mov_b32 {ga[0]}, 0")
    A(f"ds_read_b128 {ga}, {ga[0]} offset:{L_MODEF}")
    sc, sh = V.alloc(24, 4), V.alloc(24, 4)
    for k in range(3):
        ad = ma if k < 2 else m3a
        for h in range(2):
            A(f"ds_read_b128 {sc[8 * k + 4 * h:8 * k + 4 * h + 4]}, {ad} offset:{L_MOD1F + 2560 + 1024 * k + 16 * h}")
            A(f"ds_read_b128 {sh[8 * k + 4 * h:8 * k + 4 * h + 4]}, {ad} offset:{L_MOD1F + 1024 * k + 16 * h}")
    A(f"v_or_b32 {ga[0]}, {ga[0]}, {ga[1]}")
    A(f"v_or3_b32 {ga[0]}, {ga[0]}, {ga[2]}, {ga[3]}")
    A(f"v_readfirstlane_b32 {sMODE}, {ga[0]}")
    hd = V.alloc(12, 4)
    A(f"s_mul_i32 {t5}, {sG}, {ACT}")
    add_base(t5, WS_H1, WS_A, t6)
    A(f"s_add_u32 {t6}, {t5}, 16384")
    A(f"s_add_u32 {t7}, {t5}, 32768")
    for k in range(3):
        for i in range(8 * k, 8 * k + 8, 2):
            if OPT["mim"] & 1:
                A(f"v_pk_mul_f32 {xf[i:i + 2]}, {xf[i:i + 2]}, {sc[i:i + 2]}")
                round_pair(xf[i], xf[i + 1], tmp)
                A(f"v_pk_add_f32 {xf[i:i + 2]}, {xf[i:i + 2]}, {sh[i:i + 2]}")
            else:
                A(f"v_pk_fma_f32 {xf[i:i + 2]}, {xf[i:i + 2]}, {sc[i:i + 2]}, {sh[i:i + 2]}")
            A(f"v_cvt_pk_bf16_f32 {hd[i // 2]}, {xf[i]}, {xf[i + 1]}")
        A(f"buffer_store_dwordx4 {hd[4 * k:4 * k + 4]}, {ha3 if k == 2 else hao}, {sWS}, {(t5, t6, t7)[k]} offen")
    V.release(xf, xr, sc, sh, ma, m3a, hao, ha3, ga)
    c.stamp("z_h1st", "s")
    signal(c, 0)
    V.release(hd)
    c.stamp("s_h1")
    sA = t6
    A(f"s_lshl_b32 {t4}, {sRH}, 2")
    A(f"s_add_u32 {t4}, {t4}, {sW4}")
    A(f"s_mul_i32 {sA}, {t4}, 40960")
    A(f"s_mul_i32 {t0}, {sRH}, 20480")
    A(f"s_add_u32 {sA}, {sA}, {t5}")
    A(f"s_add_u32 {sA}, {sA}, {t0}")
    A(f"s_mul_i32 {t7}, {sRH}, 40960")
    A(f"s_sub_u32 {t7}, 4096, {t7}")
    A(f"s_lshl_b32 {t1}, {t4}, 6")
    wait_edge(c, 0, t1)
    V.release(tmp)
    c.stamp("s_e1")
    D = OPT["qd"]
    ring = [V.alloc(4, 4) for _ in range(D)]
    W = [V.alloc(16, 4), V.alloc(16, 4)]
    acc = [V.alloc(16, 4) for _ in range(4)]

    def loadA(p):
        A(f"buffer_load_dwordx4 {ring[p % D]}, {c.l16}, {sWS}, {sA} offen offset:{(p % 4) * 1024} sc1")
        if p % 4 == 3 and p < 39:
            A(f"s_add_u32 {sA}, {sA}, {t7 if p == 19 else 4096}")

    def readW(p, ct):
        slot = p if p < 37 else p - 37
        if p in (16, 32):
            A(f"v_add_u32 {c.wq[ct]}, {16 * 4096}, {c.wq[ct]}")
        if p == 37:
            A(f"v_subrev_u32 {c.wq[ct]}, {32 * 4096}, {c.wq[ct]}")
        for u in range(2):
            A(f"ds_read_b64_tr_b16 {W[p & 1][4 * ct + 2 * u:4 * ct + 2 * u + 2]}, {c.wq[ct]} offset:{(slot % 16) * 4096 + 1024 * u}")

    issued = OPT["qinit"]
    for p in range(issued):
        loadA(p)
    bump(c, L_CNT + 8)
    A("s_barrier")
    c.stamp("z_q0", "q")
    for ct in range(4):
        readW(0, ct)
    for p in range(40):
        nxt = p + 1 < 40
        if nxt and (p + 1) % 8 == 0:
            if p + 1 == 8:
                A("s_waitcnt lgkmcnt(0)")
            c.stamp("z_a%d" % ((p + 1) // 8), "q")
            A("s_barrier")
        for ct in range(4):
            A(f"v_mfma_f32_32x32x16_bf16 {acc[ct]}, {W[p & 1][4 * ct:4 * ct + 4]}, {ring[p % D]}, {'0' if p == 0 else acc[ct]}")
            if nxt:
                readW(p + 1, ct)
            if ct in (0, 2) and issued < min(40, p + D):
                loadA(issued)
                issued += 1
    V.release(ring, W, c.wq)
    A("s_barrier")
    c.stamp("q_loop")
    noq = lab("noq")
    A(f"s_mul_i32 {t5}, {sG}, {QKVG}")
    A(f"s_add_u32 {t5}, {t5}, {WS_QKV}")
    A(f"s_lshl_b32 {t0}, {sCB}, 16")
    A(f"s_lshl_b32 {t1}, {t4}, 8")
    A(f"s_add_u32 {t0}, {t0}, {t1}")
    A(f"s_add_u32 {t0}, {t0}, {t5}")
    A(f"s_cmp_lt_u32 {sJ}, 30")
    A(f"s_cselect_b32 {t2}, {t0}, {OOB}")
    A(f"s_mov_b32 {p0[0]}, {hex(QSCALE)}")
    A(f"s_mov_b32 {p0[1]}, {hex(QSCALE)}")
    A(f"s_cmp_ge_u32 {sCB}, 5")
    A.branch(f"s_cbranch_scc1 {noq}")
    for ct in range(4):
        for r in range(0, 16, 2):
            A(f"v_pk_mul_f32 {acc[ct][r:r + 2]}, {acc[ct][r:r + 2]}, {p0}")
    A.label(noq)
    pk = V.alloc(32, 4)
    for ct in range(4):
        for ap in range(2):
            d_ = pk[8 * ct + 4 * ap:8 * ct + 4 * ap + 4]
            for i in range(4):
                A(f"v_cvt_pk_bf16_f32 {d_[i]}, {acc[ct][8 * ap + 2 * i]}, {acc[ct][8 * ap + 2 * i + 1]}")
        for ap in range(2):
            d_ = pk[8 * ct + 4 * ap:8 * ct + 4 * ap + 4]
            for i in range(2):
                A(f"v_permlane16_swap_b32 {d_[i]}, {d_[2 + i]}")
            A(f"buffer_store_dwordx4 {d_}, {c.xs}, {sWS}, {t2} offen{'' if OPT.get('xplain') else ' sc1'}")
            if (ct, ap) != (3, 1):
                A(f"s_add_u32 {t2}, {t2}, 8192")
    V.release(c.xs)
    V.release(acc)
    c.stamp("z_st", "x")
    att_masks(c)
    att_addr(c)
    A(f"s_lshl_b32 {t0}, {sW4}, 1")
    A(f"s_add_u32 {t0}, {t0}, 2")
    A(f"s_cmp_eq_u32 {sG}, 0")
    A(f"s_cselect_b32 {sHOOK}, {t0}, 99")
    fa_, fd = V.alloc(1), V.alloc(1)
    nosig = lab("xnosig")
    A(f"s_lshl_b32 {t0}, {sG}, 12")
    A(f"s_add_u32 {t0}, {t0}, {WS_XFLAG}")
    A(f"s_lshl_b32 {t1}, {sJ}, 7")
    A(f"s_add_u32 {t1}, {t1}, {t0}")
    A(f"v_mov_b32 {fa_}, 0")
    A(f"v_mov_b32 {fd}, 1")
    A("s_mov_b64 exec, 1")
    A("s_waitcnt vmcnt(0)")
    A(f"ds_add_rtn_u32 {fd}, {fa_}, {fd} offset:{L_CNT}")
    A(f"v_readfirstlane_b32 {t2}, {fd}")
    A(f"v_mov_b32 {fd}, {sT[0]}")
    A(f"s_cmp_lg_u32 {t2}, 3")
    A.branch(f"s_cbranch_scc1 {nosig}", noflush=True)
    A(f"buffer_store_dword {fd}, {fa_}, {sWS}, {t1} offen sc1")
    A.label(nosig)
    A("s_mov_b64 exec, -1")
    V.release(pk)
    c.stamp("x_sig")
    A(f"s_cmp_lt_u32 {sW4}, 2")
    A(f"s_cselect_b32 {t3}, 1, 0")
    A(f"s_min_u32 {t2}, {t3}, {sG}")
    A(f"s_lshl_b32 {t1}, {t2}, 12")
    A(f"s_sub_u32 {t1}, {t0}, {t1}")
    A(f"s_mul_i32 {t2}, {t2}, {QKVG}")
    A(f"s_sub_u32 {t6}, {t5}, {t2}")
    A(f"s_cmp_gt_u32 {t3}, {sG}")
    A(f"s_cselect_b32 {t6}, {OOB}, {t6}")
    x_, y_ = V.alloc(1), V.alloc(1)
    A(f"v_min_u32 {x_}, 5, {lane}")
    A(f"v_lshrrev_b32 {y_}, 1, {x_}")
    A(f"v_mul_u32_u24 {fa_}, 0xa0, {y_}")
    A(f"v_and_b32 {x_}, 1, {x_}")
    A(f"v_lshl_add_u32 {fa_}, {x_}, 2, {fa_}")
    A(f"s_mul_i32 {t2}, {sJ}, 5")
    A(f"v_add_u32 {fa_}, {t2}, {fa_}")
    A(f"v_lshrrev_b32 {fa_}, 5, {fa_}")
    A(f"v_lshlrev_b32 {fa_}, 7, {fa_}")
    A(f"s_lshr_b32 {t2}, {sW4}, 1")
    A(f"s_mul_i32 {t2}, {t2}, {15 * 128}")
    A(f"s_add_u32 {t0}, {t0}, {t2}")
    A(f"s_and_b32 {t2}, {sW4}, 1")
    A(f"s_mul_i32 {t3}, {t2}, {15 * 128}")
    A(f"s_add_u32 {t1}, {t1}, {t3}")
    A(f"v_mov_b32 {x_}, {t1}")
    A(f"v_mov_b32 {fd}, {t0}")
    A(f"v_cmp_eq_u32 vcc, 0, {y_}")
    A(f"v_cndmask_b32 {x_}, {x_}, {fd}, vcc")
    A(f"v_add_u32 {fa_}, {fa_}, {x_}")
    V.release(x_, y_)
    A(f"s_lshl_b32 {t2}, {t2}, 10")
    A(f"s_add_u32 {t6}, {t6}, {t2}")
    A(f"s_mul_i32 {t2}, {sJ}, {5 * 2048}")
    A(f"s_add_u32 {t5}, {t5}, {t2}")
    A(f"s_add_u32 {t6}, {t6}, {t2}")
    A(f"s_add_u32 {t6}, {t6}, {160 * 2048}")
    A(f"s_lshl_b32 {t7}, {sW4}, 10")
    A(f"s_lshl_b32 {t2}, {sW4}, 9")
    A(f"s_add_u32 {t5}, {t5}, {t2}")
    poll(c, [f"buffer_load_dword {fd}, {fa_}, {sWS}, 0 offen sc1"], lambda: A(f"v_cmp_ne_u32 vcc, {sT[0]}, {fd}"), backoff=OPT.get("xsleep", 0))
    V.release(fa_, fd)
    c.stamp("x_flag")
    for arr in range(10):
        A(f"s_add_u32 m0, {t7}, {L_K + KVS * arr}")
        kv_tag = A.tagged(f"buffer_load_dwordx4 {c.l16}, {sWS}, {t6} offen sc1 lds")
        if arr < 9:
            A(f"s_add_u32 {t6}, {t6}, {2048 if arr != 4 else 156 * 2048}")
    c.Q0, c.Q1 = [V.alloc(4, 4), V.alloc(4, 4)], [V.alloc(2), V.alloc(2)]
    A(f"s_add_u32 {t1}, {t5}, 4096")
    A(f"s_add_u32 {t2}, {t5}, 8192")
    for st in range(2):
        of = 256 * (1 - st)
        A(f"buffer_load_dwordx2 {c.Q0[st][0:2]}, {c.xa}, {sWS}, {t5} offen offset:{of} sc1")
        A(f"buffer_load_dwordx2 {c.Q0[st][2:4]}, {c.xa}, {sWS}, {t1} offen offset:{of} sc1")
        q_tag = A.tagged(f"buffer_load_dwordx2 {c.Q1[st]}, {c.xq1}, {sWS}, {t2} offen offset:{of} sc1")
    V.release(c.xa, c.xq1)
    oa = [V.alloc(1) for _ in range(3)]
    xt = V.alloc(10, 2)
    tokb, gq, wa = V.alloc(1), V.alloc(1), V.alloc(1)
    dd, t, u = V.alloc(4, 4), V.alloc(1), V.alloc(1)
    mo = V.alloc(1)
    A(f"s_mul_i32 {t2}, {sW4}, 40")
    A(f"s_mul_i32 {t3}, {sN}, 5")
    A(f"s_add_u32 {t2}, {t2}, {t3}")
    A(f"s_lshl_b32 {t2}, {t2}, 7")
    A(f"s_add_u32 {t4}, {t2}, {WS_MOD + 80 * 128}")
    A(f"v_min_u32 {t}, 19, {lane}")
    A(f"v_and_b32 {u}, 3, {t}")
    A(f"v_lshrrev_b32 {mo}, 2, {t}")
    A(f"v_lshlrev_b32 {mo}, 7, {mo}")
    A(f"v_lshl_add_u32 {mo}, {u}, 4, {mo}")
    A(f"buffer_load_dwordx4 {dd}, {mo}, {sWS}, {t4} offen sc1")
    A(f"v_and_b32 {t}, 15, {lane}")
    A(f"s_lshl_b32 {t0}, {sI}, 6")
    A(f"s_lshl_b32 {t1}, {sW4}, 4")
    A(f"s_add_u32 {t0}, {t0}, {t1}")
    A(f"v_add_u32 {tokb}, {t0}, {t}")
    A(f"v_mul_u32_u24 {u}, 0x500, {tokb}")
    A(f"v_lshrrev_b32 {gq}, 4, {lane}")
    A(f"s_mul_i32 {t1}, {sN}, 160")
    A(f"v_lshl_add_u32 {t}, {gq}, 3, {t1}")
    A(f"v_add_u32 {u}, {u}, {t}")
    A(f"s_mul_i32 {t1}, {sG}, {ACT}")
    for ct in range(5):
        A(f"buffer_load_dwordx2 {xt[2 * ct:2 * ct + 2]}, {u}, {sX}, {t1} offen offset:{32 * ct}")
    hi, x_ = V.alloc(1), V.alloc(1)
    A(f"v_lshrrev_b32 {hi}, 5, {lane}")
    A(f"s_mul_i32 {t0}, {sJ}, 5")
    A(f"v_bfe_u32 {t}, {lane}, 4, 1")
    A(f"v_mul_u32_u24 {t}, 0x5000, {t}")
    A(f"v_and_b32 {u}, 15, {lane}")
    A(f"v_lshl_add_u32 {t}, {u}, 4, {t}")
    for k in range(3):
        A(f"s_add_u32 {t1}, {t0}, {2 * k}")
        A(f"v_add_u32 {u}, {t1}, {hi}")
        A(f"v_lshrrev_b32 {oa[k]}, 2, {u}")
        A(f"v_lshl_add_u32 {oa[k]}, {oa[k]}, 9, {t}")
        A(f"v_and_b32 {x_}, 1, {u}")
        A(f"v_lshl_add_u32 {oa[k]}, {x_}, 8, {oa[k]}")
        A(f"v_bfe_u32 {x_}, {u}, 1, 1")
        A(f"v_lshl_add_u32 {oa[k]}, {x_}, 3, {oa[k]}")
    A(f"v_mov_b32 {u}, {OOB}")
    A(f"v_cndmask_b32_e64 {oa[2]}, {oa[2]}, {u}, {sHI}")
    wtile_addr(c, L_WO, 10 * 5120, wa, t, u)
    V.release(hi, x_, u)
    A(f"s_mul_i32 {t5}, {sG}, {ACT}")
    add_base(t5, WS_O, WS_A, t1)
    A(f"s_mul_i32 {t1}, {sW4}, 81920")
    A(f"s_add_u32 {t6}, {t1}, {t5}")
    A(f"s_add_u32 {t7}, {t6}, 40960")
    A.wait_vm(q_tag)
    A("s_barrier")
    c.stamp("x_kv")

    def store_o(st):
        for k in range(3):
            A(f"buffer_store_dwordx2 {c.op[st][2 * k:2 * k + 2]}, {oa[k]}, {sWS}, {(t7, t6)[st]} offen")
    c.store_o = store_o
    attention(c)
    c.stamp("a_end")
    signal(c, 1)
    V.release(oa)
    u = gq
    c.stamp("a_sig")
    again, have = lab("modagain"), lab("modhave")
    check_tags([dd[2:4]])()
    A.branch(f"s_cbranch_vccnz {again}")
    A.label(have)

    def cold_mod(dd=dd, mo=mo):
        A.label(again)
        poll(c, [f"buffer_load_dwordx4 {dd}, {mo}, {sWS}, {t4} offen sc1"], check_tags([dd[2:4]]), acquire=False)
        A.branch(f"s_branch {have}")
    c.cold.append(cold_mod)
    tm = V.alloc(1)
    A(f"s_cmp_eq_u32 {sW4}, 2")
    A(f"s_cselect_b32 {t3}, 1.0, 0")
    unpack(dd[2], dd[3], dd[1])
    A(f"v_and_b32 {dd[1]}, 0xffff0000, {dd[0]}")
    A(f"v_lshlrev_b32 {dd[0]}, 16, {dd[0]}")
    for i in range(4):
        A(f"v_add_f32 {dd[i]}, {t3}, {dd[i]}")
    A(f"s_mul_i32 {t2}, {sW4}, 320")
    A(f"v_min_u32 {mo}, 19, {lane}")
    A(f"v_lshl_add_u32 {mo}, {mo}, 4, {t2}")
    A(f"ds_write_b128 {mo}, {dd} offset:{L_MOD2F}")
    c.x1 = V.alloc(20, 2)
    for i in range(10):
        unpack(c.x1[2 * i], c.x1[2 * i + 1], xt[i])
    V.release(xt)
    tile_streams((WS_O, WS_A), ACT, 20480, 10240, t6, t7)
    A(f"s_lshl_b32 {t1}, {sI}, 7")
    A(f"s_add_u32 {t2}, {t1}, 64")
    wait_edge(c, 1, t1, t2)
    A("s_waitcnt lgkmcnt(0)")
    V.release(dd, mo, tm)
    c.stamp("b_e2")
    acc = tile_gemm(c, 10, t6, t7, OPT["binit"], 10, lambda ks: (wa, ks * 5120), {0}, done=(lambda: A("s_barrier")) if OPT["bsync"] else None)
    c.stamp("b_loop")
    V.release(wa)
    mv = V.alloc(20, 4)
    ma = V.alloc(1)
    A(f"v_lshlrev_b32 {ma}, 4, {u}")
    for ct in range(5):
        A(f"ds_read_b128 {mv[4 * ct:4 * ct + 4]}, {ma} offset:{L_MOD2F + 64 * ct}")
    a = tile_reduce(c, acc, L_RED)
    c.stamp("z_red", "b")
    x1 = c.x1
    tmp, tp = V.alloc(1), V.alloc(2)
    for i in range(0, 20, 2):
        A(f"v_pk_fma_f32 {x1[i:i + 2]}, {a[i:i + 2]}, {mv[i:i + 2]}, {x1[i:i + 2]}")
    c.stamp("z_x1", "b")
    gr = V.alloc(4, 4)
    pk_sum(gr[0], x1, 20, tp)
    xor16_add(gr[0], tmp)
    xor32_op("v_add_f32", gr[0], tmp)
    A(f"v_mul_f32 {gr[0]}, {hex(f32(1 / 80))}, {gr[0]}")
    for i in range(0, 20, 2):
        pk_sub_lo(a[i:i + 2], x1[i:i + 2], gr[0:2])
    A(f"v_pk_mul_f32 {tp}, {a[0:2]}, {a[0:2]}")
    for i in range(2, 20, 2):
        A(f"v_pk_fma_f32 {tp}, {a[i:i + 2]}, {a[i:i + 2]}, {tp}")
    A(f"v_add_f32 {gr[1]}, {tp[0]}, {tp[1]}")
    xor16_add(gr[1], tmp)
    xor32_op("v_add_f32", gr[1], tmp)
    V.release(tp)
    A(f"v_mov_b32 {gr[2]}, {sT[0]}")
    A(f"v_mov_b32 {gr[3]}, {sT[1]}")
    A(f"v_lshlrev_b32 {t}, 7, {tokb}")
    A(f"s_lshl_b32 {t0}, {sG}, 15")
    A(f"s_add_u32 {t0}, {t0}, {WS_STATS}")
    A(f"s_lshl_b32 {t1}, {sN}, 4")
    A(f"s_add_u32 {t1}, {t1}, {t0}")
    slow, done = lab("stslow"), lab("stdone")
    A("s_mov_b64 exec, 0xffff")
    A(f"s_cmp_lg_u32 {sMODE}, 0")
    A.branch(f"s_cbranch_scc1 {slow}", noflush=True)
    A(f"buffer_store_dwordx4 {gr}, {t}, {sWS}, {t1} offen")
    A.label(done)
    A("s_mov_b64 exec, -1")

    def cold_st(gr=gr, t=t, slow=slow, done=done):
        A.label(slow)
        A(f"buffer_store_dwordx4 {gr}, {t}, {sWS}, {t1} offen sc1")
        A.branch(f"s_branch {done}")
    c.cold.append(cold_st)
    c.stamp("z_st", "b")
    c.gb = V.alloc(20, 4)
    for ct in range(5):
        A(f"ds_read_b128 {c.gb[4 * ct:4 * ct + 4]}, {ma} offset:{L_MOD2F + 960 + 64 * ct}")
    sh = a
    for ct in range(5):
        A(f"ds_read_b128 {mv[4 * ct:4 * ct + 4]}, {ma} offset:{L_MOD2F + 640 + 64 * ct}")
        A(f"ds_read_b128 {sh[4 * ct:4 * ct + 4]}, {ma} offset:{L_MOD2F + 320 + 64 * ct}")
    g0, g1 = V.alloc(4, 4), V.alloc(4, 4)
    sa_ = V.alloc(1)
    A(f"v_lshl_add_u32 {sa_}, {u}, 5, {t}")
    h2a = V.alloc(1)
    A(f"v_lshrrev_b32 {h2a}, 5, {tokb}")
    A(f"v_mul_u32_u24 {h2a}, 0xa000, {h2a}")
    A(f"v_and_b32 {tmp}, 31, {tokb}")
    A(f"v_lshl_add_u32 {h2a}, {tmp}, 4, {h2a}")
    A(f"v_lshrrev_b32 {tmp}, 1, {u}")
    A(f"v_lshl_add_u32 {h2a}, {tmp}, 9, {h2a}")
    A(f"v_and_b32 {tmp}, 1, {u}")
    A(f"v_lshl_add_u32 {h2a}, {tmp}, 3, {h2a}")
    A(f"s_mul_i32 {t5}, {sG}, {ACT}")
    add_base(t5, WS_H2, WS_A, t3)
    A(f"s_mul_i32 {t3}, {sN}, 5120")
    A(f"s_add_u32 {t3}, {t3}, {t5}")
    A(f"s_add_u32 {t2}, {t3}, 4096")
    poll(c, [f"buffer_load_dwordx4 {g0}, {sa_}, {sWS}, {t0} offen sc1",
             f"buffer_load_dwordx4 {g1}, {sa_}, {sWS}, {t0} offen offset:16 sc1"], check_tags([g0[2:4], g1[2:4]]), acquire=False)
    bump(c, L_CNT + 12)
    c.stamp("b_stat")
    mean, var = gr[0], gr[1]
    A(f"v_add_f32 {mean}, {g0[0]}, {g1[0]}")
    xor16_add(mean, tmp)
    xor32_op("v_add_f32", mean, tmp)
    A(f"v_mul_f32 {mean}, 0x3e000000, {mean}")
    A(f"v_sub_f32 {g0[0]}, {g0[0]}, {mean}")
    A(f"v_sub_f32 {g1[0]}, {g1[0]}, {mean}")
    A(f"v_mul_f32 {g0[0]}, {g0[0]}, {g0[0]}")
    A(f"v_fmac_f32 {g0[0]}, {g1[0]}, {g1[0]}")
    A(f"v_add_f32 {var}, {g0[1]}, {g1[1]}")
    A(f"v_fmac_f32 {var}, {hex(f32(80.0))}, {g0[0]}")
    xor16_add(var, tmp)
    xor32_op("v_add_f32", var, tmp)
    A(f"v_mul_f32 {var}, {hex(f32(1 / 640))}, {var}")
    ln_scalars(var)
    c.stamp("z_sc", "b")
    hp, hx = V.alloc(10, 2), V.alloc(20, 2)
    for i in range(0, 20, 2):
        pk_sub_lo(hx[i:i + 2], x1[i:i + 2], gr[0:2])
    for i in range(0, 20, 2):
        pk_mul_hi(hx[i:i + 2], hx[i:i + 2], gr[0:2])
        A(f"v_pk_fma_f32 {hx[i:i + 2]}, {hx[i:i + 2]}, {mv[i:i + 2]}, {sh[i:i + 2]}")
        A(f"v_cvt_pk_bf16_f32 {hp[i // 2]}, {hx[i]}, {hx[i + 1]}")
        if i % 4 == 2:
            ct = i // 4
            A(f"buffer_store_dwordx2 {hp[2 * ct:2 * ct + 2]}, {h2a}, {sWS}, {t3 if ct < 4 else t2} offen offset:{1024 * (ct % 4)}")
    c.stamp("z_h2", "b")
    signal(c, 2)
    c.stamp("z_sig", "b")
    V.release(hx, h2a, a, mv, ma, gr, g0, g1, sa_, hp, tokb, tmp)
    ga0, ga1, ha = V.alloc(1), V.alloc(1), V.alloc(1)
    A(f"v_lshrrev_b32 {t}, 5, {lane}")
    A(f"v_bfe_u32 {u}, {lane}, 2, 2")
    A(f"v_lshl_add_u32 {t}, {t}, 3, {u}")
    A(f"v_mul_u32_u24 {t}, 0xc0, {t}")
    A(f"v_bfe_u32 {u}, {lane}, 4, 1")
    A(f"v_mul_u32_u24 {u}, {L_U - L_G}, {u}")
    A(f"v_add_u32 {t}, {t}, {u}")
    A(f"v_and_b32 {u}, 3, {lane}")
    A(f"v_lshl_add_u32 {ga0}, {u}, 3, {t}")
    A(f"v_add_u32 {ga0}, {L_G}, {ga0}")
    A(f"v_add_u32 {ga1}, {20 * 3072}, {ga0}")
    A(f"v_bfe_u32 {t}, {lane}, 4, 1")
    A(f"v_mul_u32_u24 {t}, 0xc000, {t}")
    A(f"v_and_b32 {u}, 15, {lane}")
    A(f"v_lshl_add_u32 {t}, {u}, 4, {t}")
    A(f"v_lshrrev_b32 {u}, 5, {lane}")
    A(f"v_lshl_add_u32 {ha}, {u}, 8, {t}")
    sAc, sH = t6, t7
    A(f"s_lshr_b32 {t3}, {sJ}, 4")
    A(f"s_lshl_b32 {t4}, {t3}, 2")
    A(f"s_add_u32 {t4}, {t4}, {sW4}")
    A(f"s_mul_i32 {sAc}, {t4}, 40960")
    A(f"s_add_u32 {sAc}, {sAc}, {t5}")
    A(f"s_mul_i32 {t0}, {t3}, 20480")
    A(f"s_add_u32 {sAc}, {sAc}, {t0}")
    A(f"s_mul_i32 {t5}, {t3}, 40960")
    A(f"s_sub_u32 {t5}, 4096, {t5}")
    A(f"s_mul_i32 {sH}, {sG}, {HBG}")
    A(f"s_mul_i32 {t0}, {t4}, {2 * 49152}")
    A(f"s_add_u32 {sH}, {sH}, {t0}")
    A(f"s_and_b32 {t0}, {sJ}, 15")
    A(f"s_mul_i32 {t0}, {t0}, 3072")
    A(f"s_add_u32 {sH}, {sH}, {t0}")
    add_base(sH, WS_HB, WS_B, t0)
    A(f"s_lshr_b32 {t1}, {t4}, 1")
    A(f"s_lshl_b32 {t1}, {t1}, 7")
    A(f"s_add_u32 {t2}, {t1}, 64")
    wait_edge(c, 2, t1, t2)
    V.release(t, u)
    c.stamp("c_e3")
    D = OPT["cd"]
    ring = [V.alloc(4, 4) for _ in range(D)]
    W = [V.alloc(24, 4), V.alloc(24, 4)]
    acc = [V.alloc(16, 4) for _ in range(6)]
    et = V.alloc(8)
    hq = [V.alloc(4, 4), V.alloc(4, 4)]

    def loadA(p):
        A(f"buffer_load_dwordx4 {ring[p % D]}, {c.l16}, {sWS}, {sAc} offen offset:{(p % 4) * 1024} sc1")
        if p % 4 == 3 and p < 39:
            A(f"s_add_u32 {sAc}, {sAc}, {t5 if p == 19 else 4096}")

    def readW(b, p, ct):
        slot = p % 26
        for u_ in range(2):
            A(f"ds_read_b64_tr_b16 {W[b][4 * ct + 2 * u_:4 * ct + 2 * u_ + 2]}, {ga0 if slot < 20 else ga1} "
              f"offset:{(slot % 20) * 3072 + 768 * u_ + 32 * ct}")

    def glu(cts):
        out = []
        for ct in cts:
            g_, h_ = acc[ct], hq[ct & 1]
            for st in range(6):
                for r in range(8):
                    e = et[r]
                    if st == 0:
                        out.append(f"v_mul_f32 {e}, {hex(f32(-LOG2E))}, {g_[r]}")
                    elif st == 1:
                        out.append(f"v_exp_f32 {e}, {e}")
                    elif st == 2:
                        out.append(f"v_add_f32 {e}, 1.0, {e}")
                    elif st == 3:
                        out.append(f"v_rcp_f32 {e}, {e}")
                    elif st == 4:
                        out.append(f"v_mul_f32 {e}, {e}, {g_[8 + r]}")
                    elif r % 2 == 0:
                        out.append(f"v_cvt_pk_bf16_f32 {h_[r // 2]}, {et[r]}, {et[r + 1]}")
            out.append(f"buffer_store_dwordx4 {h_}, {ha}, {sWS}, {sH} offen offset:{512 * ct}{' sc1' if OPT['h_sc1'] else ''}")
        return out

    jobs = [(p, range(6)) for p in range(32)] + [(p, range(3)) for p in range(32, 40)] + [(p, range(3, 6)) for p in range(32, 40)]
    issued = OPT["cinit"]
    for p in range(issued):
        loadA(p)
    A("s_barrier")
    c.stamp("z_b10", "c")
    for ct in range(6):
        readW(0, 0, ct)
    pend = []
    for k, (p, cts) in enumerate(jobs):
        nxt = jobs[k + 1] if k + 1 < len(jobs) else None
        if k + 1 in G_AT:
            if k + 1 in (8, 16):
                A("s_waitcnt lgkmcnt(0)")
            c.stamp("z_a%d" % (k + 1), "c")
            A("s_barrier")
        if k == 41:
            pend = glu(range(3))
        if k in (40,):
            c.stamp("z_n%d" % k, "c")
        reads = [(nxt[0], ct) for ct in nxt[1]] if nxt else []
        for n_, ct in enumerate(cts):
            A(f"v_mfma_f32_32x32x16_bf16 {acc[ct]}, {W[k & 1][4 * ct:4 * ct + 4]}, {ring[p % D]}, {'0' if p == 0 else acc[ct]}")
            if reads:
                readW((k + 1) & 1, *reads.pop(0))
            if n_ in (0, 2, 4)[:OPT['cramp']] and k < 40 and issued < min(40, p + D):
                loadA(issued)
                issued += 1
            for _ in range(7):
                if pend:
                    A(pend.pop(0))
        assert not reads
    assert issued == 40
    c.stamp("z_n80", "c")
    barrier()
    c.stamp("c_loop")
    for x in pend + glu(range(3, 6)):
        A(x)
    c.stamp("z_glu", "d")
    signal(c, 3)
    if OPT.get("dwait"):
        bump(c, L_CNT + 16)
    c.stamp("z_sig", "d")
    V.release(ring, W, acc, et, hq, ga0, ga1, ha)
    wa, wb, t = V.alloc(1), V.alloc(1), V.alloc(1)
    wtile_addr(c, L_WD, 0, wa, wb, t)
    A(f"v_add_u32 {wb}, {12 * 5120}, {wa}")
    A(f"s_mul_i32 {t0}, {sG}, {HBG}")
    add_base(t0, WS_HB, WS_B, t1)
    A(f"s_and_b32 {t1}, {sI}, 1")
    A(f"s_mul_i32 {t1}, {t1}, 24576")
    A(f"s_add_u32 {t0}, {t0}, {t1}")
    d_rot(t5, t1)
    A(f"s_lshl_b32 {t1}, {t5}, 12")
    A(f"s_add_u32 {t0}, {t0}, {t1}")
    A(f"s_sub_u32 {t5}, 5, {t5}")
    A(f"s_lshl_b32 {t1}, {sI}, 2")
    A(f"s_add_u32 {t2}, {t1}, {sW4}")
    A(f"s_mul_i32 {t6}, {t2}, 49152")
    A(f"s_add_u32 {t6}, {t6}, {t0}")
    A(f"s_xor_b32 {t2}, {t2}, 4")
    A(f"s_mul_i32 {t7}, {t2}, 49152")
    A(f"s_add_u32 {t7}, {t7}, {t0}")
    fd = V.alloc(1)
    A(f"s_and_b32 {t1}, {sI}, 2")
    A(f"s_lshl_b32 {t1}, {t1}, 7")
    A(f"s_lshl_b32 {t0}, {sG}, 12")
    A(f"s_add_u32 {t0}, {t0}, {t1}")
    A(f"s_add_u32 {t0}, {t0}, {WS_FLAG + 512 * 3}")
    A(f"v_lshlrev_b32 {t}, 2, {lane}")
    poll(c, [f"buffer_load_dword {fd}, {t}, {sWS}, {t0} offen sc1"], lambda: A(f"v_cmp_ne_u32 vcc, {sT[0]}, {fd}"))
    V.release(t, fd)
    c.stamp("d_e4")

    def d_step(st):
        A(f"s_cmp_eq_u32 {t5}, {st}")
        A(f"s_cselect_b32 {t0}, -5, 1")
        A(f"s_lshl_b32 {t0}, {t0}, 12")
        return t0
    acc = tile_gemm(c, 24, t6, t7, OPT["dinit"], OPT["dd"], lambda ks: (wa if ks < 12 else wb, (ks % 12) * 5120), {0, 8, 16},
                    d_step, drain=False)
    V.release(wa, wb)
    c.stamp("z_k24", "d")
    pp, pa = V.alloc(12, 4), V.alloc(1)
    A(f"s_mul_i32 {t4}, {sG}, {ACT}")
    add_base(t4, WS_RS, WS_A, t1)
    A(f"s_and_b32 {t1}, {sI}, 2")
    A(f"s_mul_i32 {t1}, {t1}, 81920")
    A(f"s_add_u32 {t4}, {t4}, {t1}")
    A(f"s_mul_i32 {t1}, {sW4}, 2560")
    A(f"s_add_u32 {t4}, {t4}, {t1}")
    A(f"s_and_b32 {t1}, {sJ}, 15")
    A(f"s_xor_b32 {t2}, {t1}, 8")
    A(f"s_mul_i32 {t1}, {t1}, 10240")
    A(f"s_mul_i32 {t2}, {t2}, 10240")
    A(f"s_add_u32 {t3}, {t4}, {t1}")
    A(f"s_add_u32 {t4}, {t4}, {t2}")
    A(f"v_lshlrev_b32 {pa}, 3, {lane}")
    for i in range(10):
        A(f"v_cvt_pk_bf16_f32 {pp[i]}, {acc[1][2 * i]}, {acc[1][2 * i + 1]}")
        if i in (3, 7):
            A(f"buffer_store_dwordx4 {pp[i - 3:i + 1]}, {c.l16}, {sWS}, {t3} offen offset:{256 * (i - 3)}")
    A(f"buffer_store_dwordx2 {pp[8:10]}, {pa}, {sWS}, {t3} offen offset:2048")
    signal(c, 4)
    f, tmp = V.alloc(2), V.alloc(1)
    od = V.alloc(12, 4)
    lw, lr, go = V.alloc(1), V.alloc(1), V.alloc(3)
    A(f"s_mul_i32 {t2}, {sW4}, 2560")
    A(f"s_add_u32 {t2}, {t2}, {L_OUT}")
    A(f"v_and_b32 {f[0]}, 15, {lane}")
    A(f"v_mul_u32_u24 {f[0]}, 0xa0, {f[0]}")
    A(f"v_lshrrev_b32 {f[1]}, 4, {lane}")
    A(f"v_lshl_add_u32 {f[0]}, {f[1]}, 3, {f[0]}")
    A(f"v_add_u32 {lw}, {t2}, {f[0]}")
    A(f"v_add_u32 {lr}, {t2}, {c.l16}")
    A(f"s_lshl_b32 {t0}, {sI}, 6")
    A(f"s_lshl_b32 {t1}, {sW4}, 4")
    A(f"s_add_u32 {t0}, {t0}, {t1}")
    A(f"s_mul_i32 {t0}, {t0}, 1280")
    A(f"s_mul_i32 {t1}, {sN}, 160")
    A(f"s_add_u32 {t0}, {t0}, {t1}")
    A(f"s_mul_i32 {t1}, {sG}, {ACT}")
    A(f"s_add_u32 {t1}, {t1}, {t0}")
    for k in range(3):
        A(f"v_add_u32 {f[0]}, {64 * k}, {lane}")
        A(f"v_mul_u32_u24 {f[1]}, 0x199a, {f[0]}")
        A(f"v_lshrrev_b32 {f[1]}, 16, {f[1]}")
        A(f"v_mul_u32_u24 {f[1]}, 0x460, {f[1]}")
        A(f"v_lshl_add_u32 {go[k]}, {f[0]}, 4, {f[1]}")
    A(f"s_xor_b32 {t2}, {sJ}, 8")
    A(f"s_lshl_b32 {t2}, {t2}, 4")
    A(f"s_lshl_b32 {t3}, {sW4}, 2")
    A(f"s_add_u32 {t2}, {t2}, {t3}")
    A(f"s_lshl_b32 {t3}, {sG}, 12")
    A(f"s_add_u32 {t2}, {t2}, {t3}")
    A(f"s_add_u32 {t2}, {t2}, {WS_FLAG + 512 * 4}")
    A(f"v_mov_b32 {f[0]}, 0")
    poll(c, [f"buffer_load_dword {f[1]}, {f[0]}, {sWS}, {t2} offen sc1"], lambda: A(f"v_cmp_ne_u32 vcc, {sT[0]}, {f[1]}"))
    qq = acc[1]
    A(f"buffer_load_dwordx4 {qq[0:4]}, {c.l16}, {sWS}, {t4} offen sc1")
    A(f"buffer_load_dwordx4 {qq[4:8]}, {c.l16}, {sWS}, {t4} offen offset:1024 sc1")
    A(f"buffer_load_dwordx2 {qq[8:10]}, {pa}, {sWS}, {t4} offen offset:2048 sc1")
    a = acc[0]
    c.stamp("z_red", "d")
    for i in range(0, 20, 2):
        unpack(f[0], f[1], qq[i // 2])
        A(f"v_pk_add_f32 {a[i:i + 2]}, {a[i:i + 2]}, {f}")
        A(f"v_pk_fma_f32 {a[i:i + 2]}, {a[i:i + 2]}, {c.gb[i:i + 2]}, {c.x1[i:i + 2]}")
        A(f"v_cvt_pk_bf16_f32 {od[i // 2]}, {a[i]}, {a[i + 1]}")
        if i % 4 == 2:
            ct = i // 4
            A(f"ds_write_b64 {lw}, {od[2 * ct:2 * ct + 2]} offset:{32 * ct}")
    for k in range(3):
        A(f"ds_read_b128 {a[4 * k:4 * k + 4]}, {lr} offset:{1024 * k}")
    for k in range(3):
        if k == 2:
            A("s_mov_b32 exec_hi, 0")
        A(f"buffer_store_dwordx4 {a[4 * k:4 * k + 4]}, {go[k]}, {sOUT}, {t1} offen{' sc1' if OPT['out_sc1'] else ''}")
    A("s_mov_b32 exec_hi, -1")
    c.stamp("z_out", "d")
    prof_dump(c, 0)
    A("s_endpgm")
    for f_ in c.cold:
        f_()
    return V.high


def helper_role(c0):
    c = Ctx(c0.V.clone())
    c.__dict__.update({k: v for k, v in c0.__dict__.items() if k not in ("V", "cold")})
    V = c.V
    lane = c.lane
    A.label("L_helper")
    A.restore("split")
    t, u = V.alloc(1), c.dummy
    z = V.alloc(4, 4)
    for i in range(4):
        A(f"v_mov_b32 {z[i]}, 0")
    A(f"ds_write_b128 {z[0]}, {z} offset:{L_CNT}")
    A(f"ds_write_b128 {z[0]}, {z} offset:{L_CNT + 16}")
    late_setup()
    qkv_role()
    wq, x_ = V.alloc(1), V.alloc(1)
    A(f"v_lshrrev_b32 {t}, 4, {lane}")
    A(f"v_lshlrev_b32 {x_}, 2, {t}")
    A(f"v_and_b32 {wq}, 15, {lane}")
    A(f"v_xor_b32 {wq}, {wq}, {x_}")
    A(f"v_lshlrev_b32 {wq}, 4, {wq}")
    A(f"v_mul_u32_u24 {t}, 0xf00, {t}")
    A(f"s_lshl_b32 {t0}, {sCB}, 8")
    A(f"s_mul_i32 {t1}, {sW4}, {4 * 3840}")
    A(f"s_add_u32 {t0}, {t0}, {t1}")
    A(f"v_add3_u32 {wq}, {wq}, {t}, {t0}")
    A(f"s_mul_i32 {t6}, {sRH}, {20 * 61440}")
    A(f"s_mul_i32 {t5}, {sRH}, {40 * 61440}")
    A(f"s_sub_u32 {t5}, 61440, {t5}")
    A(f"s_lshl_b32 {t7}, {sW4}, 10")
    wtags = []

    def pace(win):
        if win:
            A(f"s_waitcnt vmcnt({win - 1})")

    def wq_dma(hi, win):
        while len(wtags) < hi:
            p = len(wtags)
            pace(win)
            A(f"s_add_u32 m0, {t7}, {L_WQ + 4096 * (p if p < 37 else p - 37)}")
            wtags.append(A.tagged(f"buffer_load_dwordx4 {wq}, {sWQ}, {t6} offen lds"))
            if p < 39:
                A(f"s_add_u32 {t6}, {t6}, {t5 if p == 19 else 61440}")
    A("s_waitcnt lgkmcnt(0)")
    wq_dma(OPT["n0"], 0)
    c.stamp("z_p0", "s")
    A(f"s_load_dword {sT[0]}, {sWS[0:2]}, {WS_E}")
    srd_words((sWS,))
    tag_setup()
    A(f"s_cmp_eq_u32 {sW4}, 0")
    A(f"s_cselect_b32 {t4}, 0, {OOB}")
    A(f"s_add_u32 {t4}, {t4}, {WS_CENSUS}")
    A(f"s_lshl_b32 {t1}, {sG}, 5")
    A(f"s_add_u32 {t1}, {t1}, {sJ}")
    A(f"s_lshl_b32 {t1}, {t1}, 4")
    A(f"s_add_u32 {t1}, {t1}, {t4}")
    A(f"s_xor_b32 {t2}, {sT[1]}, {sXCC}")
    A(f"v_mov_b32 {z[2]}, {sT[0]}")
    A(f"v_mov_b32 {z[3]}, {t2}")
    A("s_mov_b64 exec, 1")
    A(f"buffer_store_dwordx4 {z}, {z[0]}, {sWS}, {t1} offen sc1")
    A("s_mov_b64 exec, -1")
    A("s_nop 1")
    V.release(z)
    A(f"s_lshl_b32 {t3}, {sJ}, 2")
    A(f"s_add_u32 {t3}, {t3}, {sW4}")

    def share(dst, per_group, per_wave, base, idx=t3):
        A(f"s_mul_i32 {t1}, {sG}, {per_group}")
        A(f"s_mul_i32 {t2}, {idx}, {per_wave}")
        A(f"s_add_u32 {t1}, {t1}, {t2}")
        A(f"s_add_u32 {t1}, {t1}, {base}")
        A(f"s_add_u32 {dst[0]}, {sWS[0]}, {t1}")
        A(f"s_addc_u32 {dst[1]}, {sWS[1]}, 0")
    wd_pattern(c)
    gs = V.alloc(3)
    A(f"s_and_b32 {t0}, {sJ}, 15")
    A(f"s_mul_i32 {t0}, {t0}, 192")
    for i in range(3):
        A(f"v_add_u32 {t}, {64 * i}, {lane}")
        A(f"v_mul_u32_u24 {x_}, 0x1556, {t}")
        A(f"v_lshrrev_b32 {x_}, 16, {x_}")
        A(f"v_lshlrev_b32 {t}, 4, {t}")
        A(f"v_mul_u32_u24 {gs[i]}, 0xb40, {x_}")
        A(f"v_add3_u32 {gs[i]}, {gs[i]}, {t}, {t0}")
    V.release(x_)
    A(f"s_bitcmp1_b32 {sW4}, 0")
    A(f"s_cselect_b32 {sWG[0]}, {sWU[0]}, {sWG[0]}")
    A(f"s_cselect_b32 {sWG[1]}, {sWU[1]}, {sWG[1]}")
    sIDX, sIDG = S(49), S(50)
    A(f"s_mov_b32 {sIDX}, {t3}")
    A(f"s_lshr_b32 {sIDG}, {t3}, 2")
    A(f"s_lshl_b32 {sIDG}, {sIDG}, 1")
    A(f"s_lshr_b32 {t0}, {sW4}, 1")
    A(f"s_add_u32 {sIDG}, {sIDG}, {t0}")
    wd_order = [24 * kh + 12 * r + p for p in range(12) for kh in range(2) for r in range(2)]
    todo = [(sWO, sIDX, 320, 40960 * b + 64 * i) for b in range(20) for i in range(5)]
    todo += [(sWG, sIDG, 768, 49152 * b + 64 * i) for b in range(40) for i in range(12)]
    n_gu_end = len(todo)
    todo += [(sWD, sIDX, 320, 40960 * b + 64 * i) for b in wd_order for i in range(5)]
    cur = dict(pos=0, key=None)

    def touch_at(srd, idx, share_b, off):
        key = (srd.b, share_b, off >> 19)
        if cur["key"] != key:
            A(f"s_mul_i32 {t0}, {idx}, {share_b}")
            if off >> 19:
                A(f"s_add_u32 {t0}, {t0}, {off >> 19 << 19}")
            A(f"s_add_u32 {p0[0]}, {srd[0]}, {t0}")
            A(f"s_addc_u32 {p0[1]}, {srd[1]}, 0")
            cur["key"] = key
        A.raw(f"s_load_dword {sDUM}, {p0}, {off & 0x7ffff}")

    def warm(n, limit=None):
        if OPT["nobulk"]:
            return
        while n > 0 and cur["pos"] < (limit or len(todo)):
            touch_at(*todo[cur["pos"]])
            cur["pos"] += 1
            n -= 1
    if OPT["overlay"]:
        A(f"s_and_b32 {t4}, {t3}, 63")
        share(p1, 4096, 64, WS_FLAG, t4)
        l2_touch(p1, 0, 1)
        share(p1, ACT, 2560, WS_A)
        l2_touch(p1, 0, OPT["ta1"])
    c.stamp("z_set", "s")
    A("s_barrier")
    wq_dma(OPT["n1"], 0)
    c.stamp("s_p1")
    if OPT["overlay"]:
        l2_touch(p1, OPT["ta1"], 40 - OPT["ta1"])
        share(p1, 32768, 256, WS_STATS)
        l2_touch(p1, 0, 4)
        share(sHB, HBG, 6144, WS_B)
    if OPT["tgap"] and OPT["n1"] < 20 and not OPT["nobulk"]:
        for b in range(OPT["n1"] // 2, 10):
            for h in range(2):
                for i in range(15):
                    touch_at(sWQ, sIDX, 960, 122880 * (b + 10 * h) + 64 * i)
    c.stamp("s_gap")
    lds_spin(c, L_CNT + 8, 4)
    c.stamp("s_spin")
    NQ = OPT["NP"] // 2
    gu = V.alloc(12 * NQ, 4)
    gl = V.alloc(1)
    ngu = [0]
    sGU, sGW, sGL = S(48), S(51), S(45)
    A(f"s_lshr_b32 {t0}, {sJ}, 4")
    A(f"s_mul_i32 {sGW}, {t0}, {40 * 49152}")
    A(f"s_sub_u32 {sGW}, {2 * 49152}, {sGW}")
    A(f"s_mul_i32 {t0}, {t0}, 20")
    A(f"s_lshr_b32 {t1}, {sW4}, 1")
    A(f"s_add_u32 {t0}, {t0}, {t1}")
    A(f"s_mul_i32 {sGU}, {t0}, 49152")
    A(f"s_mul_i32 {sGL}, {t1}, 3072")
    A(f"s_and_b32 {t1}, {sW4}, 1")
    A(f"s_mul_i32 {t1}, {t1}, {L_U - L_G}")
    A(f"s_add_u32 {sGL}, {sGL}, {t1}")
    A(f"s_add_u32 {sGL}, {sGL}, {L_G}")
    A(f"v_add_u32 {gl}, {sGL}, {c.l16}")
    gtag = {}

    def gu_load(n, win, limit=None):
        for _ in range(n):
            k = ngu[0]
            if k >= 3 * (limit or NQ):
                return
            q, i = divmod(k, 3)
            pace(win)
            if q < NQ:
                A(f"buffer_load_dwordx4 {gu[4 * k:4 * k + 4]}, {gs[i]}, {sWG}, {sGU} offen")
            else:
                A(f"s_add_u32 m0, {sGL}, {(q % 13) * 6144 + 1024 * i}")
                gtag[q] = A.tagged(f"buffer_load_dwordx4 {gs[i]}, {sWG}, {sGU} offen lds")
            if i == 2 and q < 19:
                A(f"s_add_u32 {sGU}, {sGU}, {sGW if q == 9 else 2 * 49152}")
            ngu[0] += 1
    for k in range(5):
        wq_dma(8 * k + 8, OPT["wq_win"])
        A.wait_vm(wtags[8 * k + 7])
        c.stamp("z_r%d" % k, "q")
        A("s_barrier")
        c.stamp("z_q%d" % k, "q")
        if k < 4:
            wq_dma(min(8 * k + 16, 37 if k == 0 else 40), OPT["wq_win"])
            warm(OPT["tq"])
    V.release(wq)
    c.stamp("q_w")
    gu_load(OPT["gu_q"], OPT["gu_win"])
    warm(OPT["tq5"])
    one = V.alloc(4, 4)
    A(f"v_mov_b32 {one[0]}, 0x3f80")
    A(f"v_mov_b32 {one[1]}, 0")
    A(f"v_mov_b32 {one[2]}, 0x3f80")
    A(f"v_mov_b32 {one[3]}, 0")
    A(f"v_add_u32 {t}, {t7}, {c.l16}")
    A("s_barrier")
    c.stamp("q_bq")
    A(f"ds_write_b128 {t}, {one} offset:{L_K + 10 * KVS}")
    A("s_waitcnt lgkmcnt(0)")
    V.release(one)
    gu_load(OPT.get("gu_x", 0), OPT["gu_win"])
    warm(OPT["tx"], n_gu_end)
    c.stamp("x_touch")
    A("s_barrier")
    c.stamp("x_kv")
    for q in range(5):
        A(f"s_add_u32 {t2}, {sI}, {q}")
        A(f"s_cmp_ge_u32 {t2}, 5")
        A(f"s_cselect_b32 {t3}, 5, 0")
        A(f"s_sub_u32 {t2}, {t2}, {t3}")
        A(f"s_lshl_b32 {t2}, {t2}, 2")
        A(f"s_add_u32 {t2}, {t2}, {sW4}")
        A(f"s_mul_i32 {t3}, {t2}, 40960")
        A(f"s_mul_i32 {t2}, {t2}, 5120")
        A(f"s_add_u32 {t2}, {t2}, {L_WO}")
        wo_tag = dma_slab(c, sWO, t3, t2, OPT["wo_win"])
    c.stamp("a_wo")

    def mixed(nload, ntouch):
        per = ntouch // max(nload, 1)
        for k in range(nload):
            warm(per, n_gu_end)
            gu_load(1, OPT["gu_win"])
        warm(ntouch - per * nload, n_gu_end)
    mixed(OPT["gu_a"], OPT["ta"])
    A.wait_vm(wo_tag)
    c.stamp("a_gu")
    A("s_barrier")
    c.stamp("b_b8")
    if OPT["bsync"]:
        A("s_barrier")
    mixed(OPT["gu_b"], OPT["tb"])
    if OPT["overlay"] and not OPT["h_sc1"]:
        l2_touch(sHB, 0, OPT.get("nb1", 40))
    A("s_barrier")
    c.stamp("b_b9")
    gu_load(OPT["gu_c"], OPT["gu_win"])
    written = [0]

    def gu_write(hi):
        while written[0] < min(hi, 3 * NQ):
            k = written[0]
            q, i = divmod(k, 3)
            if k == 30:
                A(f"v_add_u32 {gl}, {10 * 6144}, {gl}")
            A(f"ds_write_b128 {gl}, {gu[4 * k:4 * k + 4]} offset:{(q % 10) * 6144 + 1024 * i}")
            written[0] += 1
    gu_write(min(ngu[0] - OPT["gu_c"], 15))
    lds_spin(c, L_CNT + 12, 4)
    gu_load(OPT["gu_d"], OPT["gu_win"], 13)
    need = list(G_AT) + [40]
    allowed = [13, 17, 20, 20, 20, 20]
    ahead = OPT.get("gahead", 3)
    for k in range(6):
        qn = (need[k] + 1) // 2
        gu_load(3 * qn - ngu[0], OPT["gc_win"], 13 if k == 0 else allowed[k - 1])
        assert ngu[0] >= 3 * qn
        gu_write(3 * qn)
        if qn > NQ:
            A.wait_vm(gtag[qn - 1])
        c.stamp("z_r%d" % k, "c")
        barrier()
        if k in (0, 5):
            c.stamp("c_g%d" % k)
        if k < 5:
            gu_write(3 * NQ)
            gu_load(3 * ((need[k + 1] + 1) // 2 + ahead) - ngu[0], OPT["gc_win"], allowed[k])
    V.release(gs, gu, gl)
    cur["pos"] = n_gu_end
    if OPT["overlay"] and not OPT["h_sc1"]:
        l2_touch(sHB, OPT.get("nb1", 40), 96 - OPT.get("nb1", 40))
    nreg = OPT["nreg"]
    wd = V.alloc(20 * nreg, 4) if nreg else None
    wl = V.alloc(1)
    A(f"s_and_b32 {t4}, {sI}, 1")
    d_rot(t5, t1)
    A(f"s_mul_i32 {t6}, {t4}, 24")
    A(f"s_lshl_b32 {t1}, {t5}, 2")
    A(f"s_add_u32 {t6}, {t6}, {t1}")
    A(f"s_add_u32 {t6}, {t6}, {sW4}")
    A(f"s_mul_i32 {t6}, {t6}, 40960")
    A(f"s_sub_u32 {t5}, 5, {t5}")
    A(f"s_mul_i32 {t7}, {sW4}, 5120")
    A(f"s_add_u32 {t7}, {t7}, {L_WD}")
    A(f"v_add_u32 {wl}, {t7}, {c.l16}")
    dt = {}
    warm(OPT["tw"])
    c.stamp("z_touch", "c")

    def wd_next(q):
        if q < 5:
            A(f"s_cmp_eq_u32 {t5}, {q}")
            A(f"s_cselect_b32 {t2}, -5, 1")
            A(f"s_mul_i32 {t2}, {t2}, {4 * 40960}")
            A(f"s_add_u32 {t6}, {t6}, {t2}")
    for q in range(nreg):
        for i in range(5):
            pace(OPT["wd_win"])
            A(f"buffer_load_dwordx4 {wd[20 * q + 4 * i:20 * q + 4 * i + 4]}, {c.pat[i]}, {sWD}, {t6} offen")
        wd_next(q)
    c.stamp("c_wd")
    A("s_barrier")
    c.stamp("c_b12")
    if OPT.get("dwait"):
        lds_spin(c, L_CNT + 16, 4)
    for q in range(nreg, 6):
        A(f"s_add_u32 {t1}, {t7}, {4 * 5120 * q}")
        dt[q] = dma_slab(c, sWD, t6, t1, OPT["wd_win"])
        wd_next(q)
    c.stamp("z_dma", "d")
    for st in range(3):
        for q in (2 * st, 2 * st + 1):
            if q in dt:
                A.wait_vm(dt[q])
            else:
                if q == 3:
                    pass
                for i in range(5):
                    of = 4 * 5120 * q + 1024 * i
                    if of >= 65536 and not getattr(c, "wl_hi", False):
                        A(f"v_add_u32 {wl}, 61440, {wl}")
                        c.wl_hi = True
                    A(f"ds_write_b128 {wl}, {wd[20 * q + 4 * i:20 * q + 4 * i + 4]} offset:{of - (61440 if getattr(c, 'wl_hi', False) else 0)}")
        barrier()
        if st == 0:
            c.stamp("d_d0")
    if OPT["clean"] & 2:
        skip = lab("noclean")
        A(f"s_lshl_b32 {t0}, {sJ}, 2")
        A(f"s_add_u32 {t0}, {t0}, {sW4}")
        A(f"s_cmp_lg_u32 {t0}, 3")
        A.branch(f"s_cbranch_scc1 {skip}")
        A("buffer_wbl2 sc1")
        A.label(skip)
    skip = lab("noepoch")
    A(f"s_lshl_b32 {t0}, s2, 2")
    A(f"s_add_u32 {t0}, {t0}, {sW4}")
    A(f"s_cmp_lg_u32 {t0}, 0")
    A.branch(f"s_cbranch_scc1 {skip}")
    e = V.alloc(4)
    A(f"s_mov_b32 {t1}, {WS_CENSUS + 8}")

    def chk():
        A(f"v_cmp_ne_u32 vcc, {sT[0]}, {e[0]}")
        for i in range(1, 4):
            A(f"v_cmp_ne_u32 {p0}, {sT[0]}, {e[i]}")
            A(f"s_or_b64 vcc, vcc, {p0}")
    poll(c, [f"buffer_load_dword {e[i]}, {c.l16}, {sWS}, {t1} offen offset:{1024 * i} sc1" for i in range(4)], chk, acquire=False)
    A(f"v_mov_b32 {t}, 0")
    A(f"v_mov_b32 {u}, {sT[0]}")
    A("s_mov_b64 exec, 1")
    A(f"buffer_store_dword {u}, {t}, {sWS}, 0 offen offset:{WS_E} sc1")
    A("s_mov_b64 exec, -1")
    A.label(skip)
    prof_dump(c, 1)
    A("s_endpgm")
    for f_ in c.cold:
        f_()
    return V.high


def main():
    c = prologue()
    h1 = compute_role(c)
    h2 = helper_role(c)
    A.label("L_end")
    A("s_endpgm")
    body = finish(A)
    ref = open(os.path.join(os.path.dirname(os.path.abspath(__file__)), "..", "cdna_kernels", NAME + ".s.ref")).read().split("\n")
    head = [l for l in ref if l.startswith(";") and "@launch" not in l and "Override launch" not in l and "grid=ceil" not in l]
    head += ["; stamps " + " ".join(n) for n in NAMES]
    txt = "\n".join(head) + f"\n; @launch grid=(256,1,1) block=(512,1,1) lds={LDS_BYTES}\n"
    txt += f'.amdgcn_target "amdgcn-amd-amdhsa--gfx950"\n.text\n.globl {NAME}_kernel\n.p2align 8\n.type {NAME}_kernel,@function\n{NAME}_kernel:\n'
    txt += body + "\n"
    txt += f'''.section .rodata,"a"
.p2align 6
.amdhsa_kernel {NAME}_kernel
  .amdhsa_next_free_vgpr 256
  .amdhsa_next_free_sgpr 102
  .amdhsa_accum_offset 256
  .amdhsa_group_segment_fixed_size 0
  .amdhsa_kernarg_size 96
  .amdhsa_user_sgpr_count 2
  .amdhsa_user_sgpr_kernarg_segment_ptr 1
  .amdhsa_system_sgpr_workgroup_id_x 1
.end_amdhsa_kernel
'''
    open(sys.argv[1], "w").write(txt)
    print("vgpr high water: compute %d helper %d; %d lines" % (h1, h2, txt.count("\n")))


main()
```
